```python
import torch

def _softmax(x, axis=-1):
    return torch.softmax(x, dim=axis)
def _gelu(x):
    return torch.nn.functional.gelu(x, approximate="tanh")
def _silu(x):
    return torch.nn.functional.silu(x)
def _sigmoid(x):
    return torch.sigmoid(x)
def _layernorm(x, axis=-1, eps=1e-5):
    m = x.mean(dim=axis, keepdim=True)
    v = x.var(dim=axis, keepdim=True, unbiased=False)
    return (x - m) / torch.sqrt(v + eps)
def _scatter_add(tgt, idx, src, axis=0):
    return tgt.clone().index_add_(axis, idx, src)
def _segment_sum(src, seg, n):
    out = torch.zeros((n,) + src.shape[1:], dtype=src.dtype)
    return out.index_add_(0, seg, src)
def _pad(x, pw):
    flat = tuple(v for pair in reversed(pw) for v in pair)
    return torch.nn.functional.pad(x, flat)

kernel_name = 'sequential_preLN__ssm_conv_s4__mixer_channel_mlp__prompt'

def setup_inputs():

    _w = (lambda a: (lambda t: t.to(torch.bfloat16) if t.is_floating_point() else t)(torch.as_tensor(a)))
    def _A_setup():
        B, L, D, N = 1, 2048, 512, 128
        A_re = -(lambda _x: torch.exp(torch.as_tensor(_x)))((lambda *s: torch.randn(*s, dtype=torch.bfloat16) * 3.2)(D, N))
        A_im = torch.pi * (lambda *s: torch.randn(*s, dtype=torch.bfloat16) * 0.05)(D, N)
        B_re = (lambda *s: torch.randn(*s, dtype=torch.bfloat16) * 0.1)(D, N)
        B_im = (lambda *s: torch.randn(*s, dtype=torch.bfloat16) * 0.1)(D, N)
        C_re = (lambda *s: torch.randn(*s, dtype=torch.bfloat16) * 0.1)(D, N)
        C_im = (lambda *s: torch.randn(*s, dtype=torch.bfloat16) * 0.1)(D, N)
        log_dt = (lambda *s: torch.randn(*s, dtype=torch.bfloat16) * 0.05)(D) * 0.5 - 4.0
        Dskip = (lambda *s: torch.randn(*s, dtype=torch.bfloat16) * 0.05)(D)
        return {
            "u": _w((lambda *s: torch.randn(*s, dtype=torch.bfloat16) * 0.05)(B, L, D)),
            "A_re": _w(A_re),
            "A_im": _w(A_im),
            "B_re": _w(B_re),
            "B_im": _w(B_im),
            "C_re": _w(C_re),
            "C_im": _w(C_im),
            "log_dt": _w(log_dt),
            "Dskip": _w(Dskip),
        }
    _A_in = _A_setup()

    def _B_setup():
        B, S, D, F = 1, 2048, 512, 1792
        return {
            "x": _w((lambda *s: torch.randn(*s, dtype=torch.bfloat16) * 0.05)(B, S, D)),
            "w1": _w((lambda *s: torch.randn(*s, dtype=torch.bfloat16) * 1.6)(D, F) * (D ** -0.5)),
            "b1": _w((lambda *s: torch.randn(*s, dtype=torch.bfloat16) * 0.8)(F)),
            "w2": _w((lambda *s: torch.randn(*s, dtype=torch.bfloat16) * 0.05)(F, D) * (F ** -0.5)),
            "b2": _w((lambda *s: torch.randn(*s, dtype=torch.bfloat16) * 0.05)(D)),
        }
    _B_in = _B_setup()

    return {
        "A_u": _A_in["u"],
        "A_A_re": _A_in["A_re"],
        "A_A_im": _A_in["A_im"],
        "A_B_re": _A_in["B_re"],
        "A_B_im": _A_in["B_im"],
        "A_C_re": _A_in["C_re"],
        "A_C_im": _A_in["C_im"],
        "A_log_dt": _A_in["log_dt"],
        "A_Dskip": _A_in["Dskip"],
        "B_x": _B_in["x"],
        "B_w1": _B_in["w1"],
        "B_b1": _B_in["b1"],
        "B_w2": _B_in["w2"],
        "B_b2": _B_in["b2"],
    }

def reference(A_u, A_A_re, A_A_im, A_B_re, A_B_im, A_C_re, A_C_im, A_log_dt, A_Dskip, B_x, B_w1, B_b1, B_w2, B_b2):
    def _A_ref(u, A_re, A_im, B_re, B_im, C_re, C_im, log_dt, Dskip):
        Bsz, L, D = u.shape
        dt = torch.exp(log_dt)[:, None]
        A = A_re + 1j * A_im
        Bc = B_re + 1j * B_im
        Cc = C_re + 1j * C_im
        logdA = dt * A
        dB = dt * Bc
        l = (lambda x, dt: x.to(dt))(torch.arange(L), A_re.dtype)
        P = torch.exp(logdA[:, :, None] * l[None, None, :])
        K = torch.einsum("dn,dnl,dn->dl", Cc, P, dB).real
        L2 = 2 * L
        Kp = _pad(K, ((0, 0), (0, L)))
        up = (lambda x, *d: x.permute(*d))(u, 0, 2, 1)
        up = _pad(up, ((0, 0), (0, 0), (0, L)))
        Kf = (lambda x, axes=(-2,-1): torch.fft.rfft2(x.float(), dim=axes))(Kp[:, None, :], axes=(-2, -1))
        Uf = (lambda x, axes=(-2,-1): torch.fft.rfft2(x.float(), dim=axes))(up[:, :, None, :], axes=(-2, -1))
        Yf = Uf * Kf[None, :, :, :]
        y = (lambda x, s, axes=(-2,-1): torch.fft.irfft2(x, s=s, dim=axes).to(torch.bfloat16))(Yf, (1, L2), axes=(-2, -1))[:, :, 0, :L]
        y = (lambda x, *d: x.permute(*d))(y, 0, 2, 1) + u * Dskip[None, None, :]
        return y

    def _B_ref(x, w1, b1, w2, b2):
        y = _layernorm(x, axis=-1)
        h = _gelu(torch.einsum("bsd,df->bsf", y, w1) + b1)
        return torch.einsum("bsf,fd->bsd", h, w2) + b2

    x = A_u
    h = x + _A_ref(_layernorm(x, axis=-1), A_A_re, A_A_im, A_B_re, A_B_im, A_C_re, A_C_im, A_log_dt, A_Dskip)
    h2 = h + _B_ref(_layernorm(h, axis=-1), B_w1, B_b1, B_w2, B_b2)
    return h2
```

```python
import re

TRANS = ('v_exp_f32', 'v_log_f32', 'v_rcp_f32', 'v_rsq_f32', 'v_sqrt_f32', 'v_sin_f32', 'v_cos_f32', 'v_rcp_iflag_f32')

def regs_of(tok):
    tok = tok.strip()
    neg = tok.lstrip('-')
    if neg.startswith('abs(') and neg.endswith(')'): neg = neg[4:-1]
    if neg.startswith('|') and neg.endswith('|'): neg = neg[1:-1]
    m = re.fullmatch(r'([vsa])(\d+)', neg)
    if m: return {(m.group(1), int(m.group(2)))}
    m = re.fullmatch(r'([vsa])\[(\d+):(\d+)\]', neg)
    if m: return {(m.group(1), i) for i in range(int(m.group(2)), int(m.group(3)) + 1)}
    if neg in ('vcc', 'vcc_lo', 'vcc_hi'): return {('s', 'vcc')}
    if neg in ('exec', 'exec_lo', 'exec_hi'): return {('s', 'exec')}
    if neg == 'm0': return {('s', 'm0')}
    return set()

class Ins:
    __slots__ = ('text', 'op', 'ops', 'mods', 'dst', 'src', 'cls', 'passes', 'srcC', 'dpp', 'nops')
    def __init__(self, text):
        self.text = text
        t = text.split(';')[0].strip()
        parts = t.split(None, 1)
        self.op = parts[0]
        rest = parts[1] if len(parts) > 1 else ''
        toks = [x.strip() for x in rest.split(',')] if rest else []
        ops = []; mods = ''
        i = 0
        joined = rest
        mm = re.search(r'\s(op_sel|op_sel_hi|neg_lo|neg_hi|offset|offset0|offset1|offen|idxen|lds|sc0|sc1|nt|row_|quad_perm|bound_ctrl|bank_mask|mul:|div:|clamp|cbsz|abid|blgp|dst_sel|src0_sel|src1_sel|off\b|wave_|glc|gds)', ' ' + joined if False else joined)
        if mm:
            mods = joined[mm.start():]
            joined = joined[:mm.start()]
        ops = [x.strip() for x in joined.split(',')] if joined.strip() else []
        self.ops = ops; self.mods = mods
        op = self.op
        self.dst = set(); self.src = set(); self.srcC = set(); self.passes = 0
        self.dpp = ('row_' in mods or 'quad_perm' in mods or 'wave_' in mods)
        R = [regs_of(o) for o in ops]
        if op.startswith('v_mfma'):
            self.cls = 'mfma'
            self.dst = R[0]; self.srcC = R[3]; self.src = R[1] | R[2] | R[3]
            if '32x32x16' in op or '32x32x8' in op: self.passes = 8
            elif '16x16x32' in op or '16x16x16' in op: self.passes = 4
            else: raise ValueError('unknown mfma ' + op)
        elif op.startswith('v_'):
            self.cls = 'valu'
            if op.startswith('v_cmp'):
                self.dst = R[0]; self.src = set().union(*R[1:])
                if op.startswith('v_cmpx'): self.dst = self.dst | {('s', 'exec')}
            elif op in ('v_readlane_b32', 'v_readfirstlane_b32'):
                self.dst = R[0]; self.src = set().union(*R[1:])
            elif op.startswith('v_permlane') and 'swap' in op:
                self.dst = R[0] | R[1]; self.src = R[0] | R[1]
            elif op.startswith(('v_add_co', 'v_sub_co', 'v_addc_co', 'v_subb_co', 'v_subrev_co')):
                self.dst = R[0] | R[1]; self.src = set().union(*R[2:])
            elif op.startswith('v_mad_u64_u32'):
                self.dst = R[0] | R[1]; self.src = set().union(*R[2:])
            else:
                self.dst = R[0]; self.src = set().union(*R[1:]) if len(R) > 1 else set()
                if op.startswith(('v_fmac', 'v_pk_fmac', 'v_dot2c', 'v_writelane', 'v_dot2_', 'v_mac')) or 'dst_unused:UNUSED_PRESERVE' in mods or self.dpp:
                    self.src = self.src | R[0]
                if op.startswith('v_cndmask') and len(ops) == 3: self.src = self.src | {('s', 'vcc')}
            if op.startswith('v_nop'): self.cls = 'valu'
        elif op.startswith(('buffer_', 'global_', 'flat_')):
            self.cls = 'vmem'
            allr = set().union(*R) if R else set()
            if 'load' in op and ' lds' not in (' ' + mods) and '_lds_' not in op:
                self.dst = R[0]; self.src = set().union(*R[1:])
            elif 'atomic' in op and 'sc0' in mods:
                self.dst = R[0]; self.src = allr
            else:
                self.src = allr
        elif op.startswith('ds_'):
            self.cls = 'ds'
            if op.startswith(('ds_read', 'ds_bpermute', 'ds_permute', 'ds_swizzle')) or '_rtn' in op:
                self.dst = R[0]; self.src = set().union(*R[1:]) if len(R) > 1 else set()
                if 'd16' in op: self.src = self.src | R[0]
            else:
                self.src = set().union(*R) if R else set()
        elif op.startswith('s_'):
            self.cls = 'salu'
            if op in ('s_nop', 's_waitcnt', 's_barrier', 's_endpgm', 's_branch', 's_sleep', 's_setprio') or op.startswith('s_cbranch') or op.startswith('s_cmp') or op.startswith('s_bitcmp'):
                self.src = set().union(*R) if R else set()
            else:
                self.dst = R[0] if R else set(); self.src = set().union(*R[1:]) if len(R) > 1 else set()
                if 'saveexec' in op: self.dst = self.dst | {('s', 'exec')}
        else:
            raise ValueError('unknown instruction: ' + text)
        self.nops = 1
        if op == 's_nop': self.nops = int(ops[0], 0) + 1

def is_wide_store(i):
    return i.cls == 'vmem' and ('store_dwordx3' in i.op or 'store_dwordx4' in i.op)

def need(p, c):
    n = 0
    vd = {r for r in p.dst if r[0] in 'va'}
    sd = {r for r in p.dst if r[0] == 's'}
    if p.cls == 'valu':
        if vd:
            if c.cls == 'mfma' and vd & c.src: n = max(n, 2)
            if c.cls == 'valu':
                if c.dpp and vd & c.src: n = max(n, 2)
                if c.op.startswith('v_permlane') and vd & c.src: n = max(n, 2)
                if c.op in ('v_readlane_b32', 'v_readfirstlane_b32') and vd & c.src: n = max(n, 1)
                if p.op.startswith(TRANS) and vd & (c.src): n = max(n, 1)
                if ('op_sel' in p.mods and not p.op.startswith('v_pk_')) or 'dst_sel' in p.mods:
                    if vd & (c.src | c.dst): n = max(n, 1)
            if p.op.startswith(TRANS) and c.cls in ('vmem', 'ds') and vd & c.src: n = max(n, 1)
        if sd:
            if c.cls == 'valu' and sd & c.src:
                n = max(n, 4 if c.op in ('v_readlane_b32', 'v_writelane_b32') else 2)
            if c.cls == 'valu' and ('s', 'exec') in sd:
                if c.dpp: n = max(n, 5)
                if c.op.startswith(('v_readlane', 'v_readfirstlane', 'v_writelane', 'v_permlane')): n = max(n, 4)
            if c.cls == 'mfma' and ('s', 'exec') in sd: n = max(n, 4)
            if c.cls == 'vmem' and sd & c.src: n = max(n, 5)
            if c.cls == 'salu' and sd & c.src: n = max(n, 1)
    if p.cls == 'mfma':
        P = p.passes
        if c.cls == 'mfma':
            if p.dst & c.srcC:
                if p.dst == c.srcC and P == c.passes: n = max(n, 0)
                else: n = max(n, P + 2)
            ab = c.src - c.srcC
            if p.dst & (regs_of(c.ops[1]) | regs_of(c.ops[2])): n = max(n, P + 4)
            if (p.dst & c.dst) and not (p.dst == c.dst and p.dst == c.srcC and P == c.passes): n = max(n, P + 2)
        elif c.cls == 'valu':
            if p.dst & (c.src | c.dst): n = max(n, P + 4)
            if p.srcC & c.dst: n = max(n, P - 1)
        elif c.cls in ('vmem', 'ds'):
            if p.dst & (c.src | c.dst): n = max(n, P + 4)
    if p.cls == 'salu' and ('s', 'm0') in p.dst:
        if (c.cls == 'vmem' and (' lds' in (' ' + c.mods) or '_lds_' in c.op)) or (c.cls == 'ds' and 'addtid' in c.op): n = max(n, 1)
    if is_wide_store(p):
        data = regs_of(p.ops[0]) if p.op.startswith('buffer') else regs_of(p.ops[1])
        if c.dst & data:
            n = max(n, 2 if c.cls == 'valu' else 1)
    return n

WINDOW = 24
class Asm:
    def __init__(self):
        self.items = []
    def __call__(self, s):
        for line in s.split('\n'):
            t = line.strip()
            if not t or t.startswith(';'):
                continue
            if t.endswith(':') and ' ' not in t:
                self.items.append(('l', t[:-1]))
            elif t.startswith('.'):
                self.items.append(('t', t))
            else:
                self.items.append(('i', Ins(t)))
    def label(self, n): self.items.append(('l', n))
    def resolve(self):
        items = self.items
        def scan_need(hist, c):
            dist = 0; extra = 0
            for p in reversed(hist):
                if dist > WINDOW: break
                k = need(p, c)
                if k > dist: extra = max(extra, k - dist)
                dist += p.nops
            return extra
        inserted = 0
        out = []; hist = []
        for kind, x in items:
            if kind == 'i':
                e = scan_need(hist, x)
                while e > 0:
                    k = min(e, 16)
                    nop = Ins(f's_nop {k - 1}'); out.append(('i', nop)); hist.append(nop); e -= k; inserted += 1
                out.append((kind, x)); hist.append(x)
                if x.op in ('s_branch', 's_endpgm'): hist = []
                hist = hist[-WINDOW - 2:]
            else:
                out.append((kind, x))
        items = out
        labels = {x: i for i, (k, x) in enumerate(items) if k == 'l'}
        i = 0; out = []
        for idx, (kind, x) in enumerate(items):
            if kind == 'i' and (x.op == 's_branch' or x.op.startswith('s_cbranch')):
                tgt = x.ops[0]
                hist = [y for k, y in items[max(0, idx - WINDOW - 2):idx + 1] if k == 'i']
                worst = 0; dist_after = 0; h = list(hist)
                j = labels[tgt]
                cnt = 0
                while j < len(items) and cnt < WINDOW:
                    k2, y = items[j]
                    if k2 == 'i':
                        dist = cnt
                        for p in reversed(hist):
                            if dist > WINDOW: break
                            kk = need(p, y)
                            if kk > dist: worst = max(worst, kk - dist)
                            dist += p.nops
                        cnt += y.nops
                        if y.op in ('s_branch', 's_endpgm'): break
                    j += 1
                while worst > 0:
                    k = min(worst, 16)
                    out.append(('i', Ins(f's_nop {k - 1}'))); worst -= k; inserted += 1
            out.append((kind, x))
        self.items = out
        return inserted
    def text(self):
        s = []
        for kind, x in self.items:
            if kind == 'i': s.append('    ' + x.text)
            elif kind == 'l': s.append(x + ':')
            else: s.append(x)
        return '\n'.join(s) + '\n'

def v(a, n=1): return f'v{a}' if n == 1 else f'v[{a}:{a + n - 1}]'
def s(a, n=1): return f's{a}' if n == 1 else f's[{a}:{a + n - 1}]'
def a(a_, n=1): return f'a{a_}' if n == 1 else f'a[{a_}:{a_ + n - 1}]'

def kernel_header(name):
    return f'.globl {name}\n.p2align 8\n.type {name},@function\n{name}:\n'

def kernel_desc(name, nvgpr, nsgpr=102, accum=None, total=None):
    if accum is None: accum = (nvgpr + 3) // 4 * 4
    if total is None: total = nvgpr
    return f'''.amdhsa_kernel {name}
  .amdhsa_next_free_vgpr {total}
  .amdhsa_next_free_sgpr {nsgpr}
  .amdhsa_accum_offset {accum}
  .amdhsa_group_segment_fixed_size 0
  .amdhsa_kernarg_size 136
  .amdhsa_user_sgpr_count 2
  .amdhsa_user_sgpr_kernarg_segment_ptr 1
  .amdhsa_system_sgpr_workgroup_id_x 1
.end_amdhsa_kernel
'''
```

```python
from asmlib import *
WS_XT  = 0x0000000
WS_MU  = 0x0200000
WS_RS  = 0x0202000
WS_CS  = 0x0204000
WS_KR  = 0x0300000
WS_HT  = 0x0500000
WS_W1P = 0x0700000
WS_W2P = 0x0900000
WS_H1  = 0x0B00000
WS_HR  = 0x1200000
WS_A2  = 0x1400000
LOG2E = 0x3fb8aa3b
INV2PI = 0x3e22f983
EPS = 0x3727c5ac

def allsum64(A, regs, tmp):
    for pat in ('quad_perm:[1,0,3,2]', 'quad_perm:[2,3,0,1]', 'row_half_mirror', 'row_mirror'):
        for r in regs:
            A(f'v_add_f32_dpp v{r}, v{r}, v{r} {pat} row_mask:0xf bank_mask:0xf')
    for sw in ('v_permlane16_swap_b32', 'v_permlane32_swap_b32'):
        for r, t in zip(regs, tmp): A(f'v_mov_b32 v{t}, v{r}')
        for r, t in zip(regs, tmp): A(f'{sw} v{r}, v{t}')
        for r, t in zip(regs, tmp): A(f'v_add_f32 v{r}, v{r}, v{t}')

def cmul(A, D, X, Y, T):
    A(f'v_pk_mul_f32 v[{T}:{T+1}], v[{X}:{X+1}], v[{Y}:{Y+1}] op_sel_hi:[1,0]')
    A(f'v_pk_fma_f32 v[{D}:{D+1}], v[{X}:{X+1}], v[{Y}:{Y+1}], v[{T}:{T+1}] op_sel:[1,1,0] op_sel_hi:[0,1,1] neg_lo:[1,0,0]')

def round_bf16(A, d, s_):
    A(f'v_cvt_pk_bf16_f32 v{d}, v{s_}, v{s_}')
    A(f'v_lshlrev_b32 v{d}, 16, v{d}')
```

```python
from common import *
def gen_k0(name='k0_kernel'):
    A = Asm()
    A(f'''
    s_cmp_ge_u32 s2, 140
    s_cbranch_scc1 {name}_end
    s_load_dwordx2 s[4:5], s[0:1], 80
    s_load_dwordx2 s[6:7], s[0:1], 96
    s_load_dwordx2 s[20:21], s[0:1], 128
    v_lshrrev_b32 v1, 6, v0
    v_and_b32 v2, 63, v0
    v_readfirstlane_b32 s22, v1
    v_and_b32 v3, 15, v2
    v_lshrrev_b32 v4, 4, v2
    s_waitcnt lgkmcnt(0)
    s_cmp_ge_u32 s2, 28
    s_cbranch_scc1 {name}_w2
    s_lshl_b32 s23, s2, 2
    s_add_u32 s23, s23, s22
    v_mul_u32_u24 v5, {8 * 3584}, v4
    v_lshlrev_b32 v6, 1, v3
    s_lshl_b32 s24, s23, 5
    v_add3_u32 v5, v5, v6, s24
    s_lshl_b32 s24, s23, 14
    s_add_u32 s24, s24, {WS_W1P}
    v_lshlrev_b32 v7, 4, v2
    v_add_u32 v7, s24, v7
    v_mov_b32 v16, 0
    s_mov_b32 s25, 0
    {name}_l1:
    ''')
    for i in range(8):
        A(f'v_add_u32 v8, {i * 3584}, v5')
        A(f'global_load_ushort v{18 + i}, v8, s[4:5]')
    A('s_waitcnt vmcnt(0)')
    for k in range(4): A(f'v_lshl_or_b32 v{10 + k}, v{19 + 2 * k}, 16, v{18 + 2 * k}')
    A('global_store_dwordx4 v7, v[10:13], s[20:21]')
    for k in range(4):
        A(f'v_lshlrev_b32 v8, 16, v{10 + k}\n v_add_f32 v16, v16, v8\n v_and_b32 v8, 0xffff0000, v{10 + k}\n v_add_f32 v16, v16, v8')
    A(f'''
    v_add_u32 v5, {32 * 3584}, v5
    v_add_u32 v7, 1024, v7
    s_add_u32 s25, s25, 1
    s_cmp_lt_u32 s25, 16
    s_waitcnt vmcnt(0)
    s_cbranch_scc1 {name}_l1
    ''')
    for sw in ('v_permlane16_swap_b32', 'v_permlane32_swap_b32'):
        A(f'v_mov_b32 v17, v16\n {sw} v16, v17\n v_add_f32 v16, v16, v17')
    A(f'''
    s_lshl_b32 s24, s23, 6
    s_add_u32 s24, s24, {WS_CS}
    v_lshlrev_b32 v8, 2, v3
    v_add_u32 v8, s24, v8
    v_cmp_gt_u32 vcc, 16, v2
    s_and_saveexec_b64 s[32:33], vcc
    global_store_dword v8, v16, s[20:21]
    s_endpgm
    {name}_w2:
    s_sub_u32 s23, s2, 28
    s_lshl_b32 s23, s23, 2
    s_add_u32 s23, s23, s22
    s_lshl_b32 s23, s23, 2
    s_mov_b32 s25, 0
    {name}_l2:
    s_mul_hi_u32 s26, s23, {(2**32 + 55) // 56}
    s_mul_i32 s27, s26, 56
    s_sub_u32 s27, s23, s27
    s_lshl_b32 s28, s27, 15
    s_lshl_b32 s29, s26, 5
    s_add_u32 s28, s28, s29
    v_lshlrev_b32 v5, 12, v4
    v_lshlrev_b32 v6, 1, v3
    v_add3_u32 v5, v5, v6, s28
    ''')
    for i in range(8):
        off = (i & 3) * 1024 + (i >> 2) * 16384
        A(f'v_add_u32 v8, {off}, v5')
        A(f'global_load_ushort v{18 + i}, v8, s[6:7]')
    A(f'''
    s_lshl_b32 s28, s23, 10
    s_add_u32 s28, s28, {WS_W2P}
    v_lshlrev_b32 v7, 4, v2
    v_add_u32 v7, s28, v7
    s_waitcnt vmcnt(0)
    v_lshl_or_b32 v10, v19, 16, v18
    v_lshl_or_b32 v11, v21, 16, v20
    v_lshl_or_b32 v12, v23, 16, v22
    v_lshl_or_b32 v13, v25, 16, v24
    global_store_dwordx4 v7, v[10:13], s[20:21]
    s_add_u32 s23, s23, 1
    s_add_u32 s25, s25, 1
    s_cmp_lt_u32 s25, 4
    s_waitcnt vmcnt(0)
    s_cbranch_scc1 {name}_l2
    {name}_end:
    s_endpgm
    ''')
    A.resolve()
    return A.text(), dict(name=name, grid=140, block=256, lds=0, nvgpr=32)
```

```python
from common import *
def gen_k1(name='k1_kernel'):
    A = Asm()
    L_XS = 0; L_XY = 8192; WSZ = 17408; PITCH = 272; L_T = L_XY + 4 * WSZ; TSZ = 2688
    LDS = L_T + 2 * TSZ
    A(f'''
    s_cmp_ge_u32 s2, 256
    s_cbranch_scc1 {name}_end
    s_load_dwordx16 s[4:19], s[0:1], 0
    s_load_dwordx2 s[20:21], s[0:1], 128
    v_lshrrev_b32 v1, 6, v0
    v_and_b32 v2, 63, v0
    v_readfirstlane_b32 s22, v1
    s_and_b32 s23, s2, 7
    s_lshl_b32 s23, s23, 8
    s_lshr_b32 s24, s2, 3
    s_lshl_b32 s24, s24, 3
    s_add_u32 s23, s23, s24
    s_lshl_b32 s25, s22, 1
    s_add_u32 s25, s25, s23
    s_lshl_b32 s26, s25, 10
    v_lshlrev_b32 v3, 4, v2
    v_add_u32 v3, s26, v3
    s_lshr_b32 s27, s22, 1
    s_lshl_b32 s28, s2, 1
    s_add_u32 s27, s27, s28
    s_and_b32 s28, s22, 1
    s_lshl_b32 s28, s28, 6
    s_lshl_b32 s29, s27, 7
    s_add_u32 s29, s29, s28
    v_add_u32 v4, s29, v2
    v_lshlrev_b32 v4, 1, v4
    s_lshl_b32 s30, s27, 1
    v_mov_b32 v5, s30
    s_waitcnt lgkmcnt(0)
    global_load_dwordx4 v[8:11], v3, s[4:5]
    global_load_dwordx4 v[12:15], v3, s[4:5] offset:1024
    global_load_ushort v16, v4, s[6:7]
    global_load_ushort v17, v4, s[8:9]
    global_load_ushort v18, v4, s[10:11]
    global_load_ushort v19, v4, s[12:13]
    global_load_ushort v20, v4, s[14:15]
    global_load_ushort v21, v4, s[16:17]
    global_load_ushort v22, v5, s[18:19]
    ''')
    A(f'''
    v_mov_b32 v6, 0
    v_lshlrev_b32 v7, 2, v0
    v_add_u32 v7, {L_T}, v7
    ''')
    for i in range(5): A(f'ds_write_b32 v7, v6 offset:{1024 * i}')
    A(f'''
    v_cmp_gt_u32 vcc, 64, v0
    s_and_saveexec_b64 s[32:33], vcc
    ds_write_b32 v7, v6 offset:5120
    s_mov_b64 exec, s[32:33]
    ''')
    A(f'''
    v_lshlrev_b32 v23, 3, v0
    v_sub_u32 v23, 2047, v23
    s_movk_i32 s30, 0x4280
    ''')
    for e in range(8):
        A(f'''
        v_subrev_u32 v32, {e}, v23
        v_cvt_f32_u32 v33, v32
        v_cvt_pk_bf16_f32 v33, v33, v33
        v_and_b32 v33, 0xffff, v33
        v_subrev_u32 v33, s30, v33
        v_cmp_gt_u32 vcc, 128, v32
        v_cndmask_b32 v33, v33, v32, vcc
        v_lshlrev_b32 v33, 2, v33
        v_add_u32 v{24 + e}, {L_T}, v33
        ''')
    A(f'''
    v_and_b32 v32, 31, v2
    v_lshrrev_b32 v33, 5, v2
    s_lshr_b32 s30, s22, 1
    s_mul_i32 s30, s30, {TSZ}
    s_add_u32 s30, s30, {L_T}
    v_cmp_eq_u32 vcc, 1, v33
    v_lshlrev_b32 v34, 5, v32
    v_lshlrev_b32 v35, 4, v33
    v_add3_u32 v40, v34, v35, s30
    ''')
    for r in range(4, 12):
        if r < 8:
            c0, s0 = 256 + (r - 4), 4
            c1, s1 = 384 + 64 * ((r - 4) >> 1) + ((r - 4) & 1), 2
        else:
            c0, s0 = 512 + 32 * (r - 8), 1
            c1, s1 = (640, 1) if r == 8 else (671, 0)
        A(f'''
        v_mul_u32_u24 v34, {4 * s0}, v32
        v_add_u32 v34, {4 * c0}, v34
        v_mul_u32_u24 v35, {4 * s1}, v32
        v_add_u32 v35, {4 * c1}, v35
        v_cndmask_b32 v34, v34, v35, vcc
        v_add_u32 v{37 + r}, s30, v34
        ''')
    A('s_waitcnt vmcnt(7)')
    for row in range(2):
        for k in range(4):
            src = 8 + 4 * row + k
            A(f'v_lshlrev_b32 v{64 + 8 * row + 2 * k}, 16, v{src}')
            A(f'v_and_b32 v{65 + 8 * row + 2 * k}, 0xffff0000, v{src}')
    A(f'''
    s_lshl_b32 s30, s22, 11
    v_lshlrev_b32 v34, 4, v2
    v_add_u32 v34, s30, v34
    ds_write_b128 v34, v[8:11]
    ds_write_b128 v34, v[12:15] offset:1024
    ''')
    for row in range(2):
        b = 64 + 8 * row
        A(f'v_add_f32 v{80 + row}, v{b}, v{b + 1}')
        for k in range(2, 8): A(f'v_add_f32 v{80 + row}, v{80 + row}, v{b + k}')
    allsum64(A, [80, 81], [82, 83])
    for row in range(2): A(f'v_mul_f32 v{80 + row}, 0x3b000000, v{80 + row}')
    for row in range(2):
        b = 64 + 8 * row
        for k in range(8): A(f'v_sub_f32 v{b + k}, v{b + k}, v{80 + row}')
        A(f'v_mul_f32 v{84 + row}, v{b}, v{b}')
        for k in range(1, 8): A(f'v_fmac_f32 v{84 + row}, v{b + k}, v{b + k}')
    allsum64(A, [84, 85], [82, 83])
    for row in range(2):
        A(f'v_mul_f32 v{84 + row}, 0x3b000000, v{84 + row}')
        round_bf16(A, 84 + row, 84 + row)
        A(f'v_add_f32 v{84 + row}, {EPS:#x}, v{84 + row}')
        round_bf16(A, 84 + row, 84 + row)
        A(f'v_sqrt_f32 v{84 + row}, v{84 + row}')
        round_bf16(A, 84 + row, 84 + row)
        A(f'v_rcp_f32 v{84 + row}, v{84 + row}')
        round_bf16(A, 80 + row, 80 + row)
    A(f'''
    s_lshl_b32 s30, s25, 2
    v_mov_b32 v34, s30
    v_add_u32 v35, {WS_RS - WS_MU}, v34
    s_add_u32 s34, s20, {WS_MU}
    s_addc_u32 s35, s21, 0
    v_cmp_eq_u32 vcc, 0, v2
    s_and_saveexec_b64 s[32:33], vcc
    global_store_dwordx2 v34, v[80:81], s[34:35]
    global_store_dwordx2 v35, v[84:85], s[34:35]
    s_mov_b64 exec, s[32:33]
    s_waitcnt lgkmcnt(0)
    s_barrier
    v_lshlrev_b32 v34, 2, v0
    ''')
    for r in range(8): A(f'ds_read_b32 v{64 + r}, v34 offset:{L_XS + 1024 * r}')
    A('s_waitcnt lgkmcnt(0)')
    A('s_mov_b32 s30, 0x05040100\n s_mov_b32 s31, 0x07060302')
    for k in range(4):
        A(f'v_perm_b32 v{72 + k}, v{65 + 2 * k}, v{64 + 2 * k}, s30')
        A(f'v_perm_b32 v{76 + k}, v{65 + 2 * k}, v{64 + 2 * k}, s31')
    A(f'''
    v_lshlrev_b32 v34, 13, v0
    s_lshl_b32 s30, s23, 1
    v_add_u32 v34, s30, v34
    global_store_dwordx4 v34, v[72:75], s[20:21]
    v_add_u32 v35, 4096, v34
    global_store_dwordx4 v35, v[76:79], s[20:21]
    ''')
    A('s_waitcnt vmcnt(4)')
    A('s_waitcnt vmcnt(0)')
    for i in range(16, 23): A(f'v_lshlrev_b32 v{i}, 16, v{i}')
    A(f'''
    v_mul_f32 v22, {LOG2E:#x}, v22
    v_exp_f32 v22, v22
    ''')
    round_bf16(A, 22, 22)
    A(f'''
    v_mul_f32 v16, v22, v16
    v_mul_f32 v17, v22, v17
    v_mul_f32 v18, v22, v18
    v_mul_f32 v19, v22, v19
    v_mul_f32 v16, {LOG2E:#x}, v16
    v_mul_f32 v17, {INV2PI:#x}, v17
    ''')
    cmul(A, 50, 20, 18, 52)
    def P(dst, p):
        A(f'''
        v_mul_f32 v54, {float(p)!r}, v16
        v_mul_f32 v55, {float(p)!r}, v17
        ''' if p in (1, 2, 4) else f'''
        v_mul_f32 v54, {hex(f2u(p))}, v16
        v_mul_f32 v55, {hex(f2u(p))}, v17
        ''')
        A(f'''
        v_exp_f32 v54, v54
        v_fract_f32 v55, v55
        v_cos_f32 v{dst}, v55
        v_sin_f32 v{dst + 1}, v55
        v_pk_mul_f32 v[{dst}:{dst + 1}], v[{dst}:{dst + 1}], v[54:55] op_sel_hi:[1,0]
        ''')
    import struct
    f2u = lambda x: struct.unpack('<I', struct.pack('<f', float(x)))[0]
    Z1, Z2, Z4, Z8, Z32, Z256 = 56, 58, 60, 62, 64, 66
    P(Z1, 1); P(Z8, 8); P(Z32, 32); P(Z256, 256)
    cmul(A, Z2, Z1, Z1, 52)
    cmul(A, Z4, Z2, Z2, 52)
    A(f'''
    s_mul_i32 s30, s22, {WSZ}
    s_add_u32 s30, s30, {L_XY}
    v_lshlrev_b32 v34, 2, v2
    v_add_u32 v34, s30, v34
    ''')
    def putX(row, reg):
        A(f'v_cvt_pk_bf16_f32 v36, v{reg}, v{reg + 1}')
        A(f'ds_write_b32 v34, v36 offset:{row * PITCH}')
    def putY(row, reg):
        A(f'v_cvt_pk_bf16_f32 v37, v{reg}, -v{reg + 1}')
        A(f'ds_write_b32 v34, v37 offset:{8704 + row * PITCH}')
    Y = [68, 70, 72, 74]
    A('v_mov_b32 v68, 1.0\n v_mov_b32 v69, 0\n v_mov_b32 v70, v62\n v_mov_b32 v71, v63')
    cmul(A, 72, Z8, Z8, 52)
    cmul(A, 74, 72, Z8, 52)
    TM = [76, 78, 80, 82]
    for it in range(8):
        for c in range(4): putY(4 * it + c, Y[c])
        if it < 7:
            for c in range(4):
                A(f'v_pk_mul_f32 v[{TM[c]}:{TM[c]+1}], v[{Y[c]}:{Y[c]+1}], v[{Z32}:{Z32+1}] op_sel_hi:[1,0]')
            for c in range(4):
                A(f'v_pk_fma_f32 v[{Y[c]}:{Y[c]+1}], v[{Y[c]}:{Y[c]+1}], v[{Z32}:{Z32+1}], v[{TM[c]}:{TM[c]+1}] op_sel:[1,1,0] op_sel_hi:[0,1,1] neg_lo:[1,0,0]')
    Wc = 84
    A('v_mov_b32 v84, v50\n v_mov_b32 v85, v51')
    putX(0, 50)
    for p in range(1, 8):
        cmul(A, 50, 50, Z1, 52); putX(p, 50)
    cmul(A, Wc, Wc, Z256, 52); putX(8, Wc)
    cmul(A, 50, Wc, Z2, 52); putX(9, 50)
    cmul(A, 50, 50, Z2, 52); putX(10, 50)
    cmul(A, 50, 50, Z2, 52); putX(11, 50)
    cmul(A, Wc, Wc, Z256, 52); putX(12, Wc)
    cmul(A, 50, Wc, Z4, 52); putX(13, 50)
    cmul(A, Wc, Wc, Z256, 52); putX(14, Wc)
    cmul(A, 50, Wc, Z4, 52); putX(15, 50)
    for row in range(16, 21):
        cmul(A, Wc, Wc, Z256, 52); putX(row, Wc)
    A(f'''
    v_and_b32 v32, 31, v2
    v_lshrrev_b32 v33, 5, v2
    v_mul_u32_u24 v32, {PITCH}, v32
    v_lshlrev_b32 v33, 4, v33
    v_add3_u32 v35, v32, v33, s30
    s_waitcnt lgkmcnt(0)
    ''')
    for t in range(8):
        A(f'ds_read_b128 v[{88 + 8 * (t % 4)}:{91 + 8 * (t % 4)}], v35 offset:{32 * t}')
        A(f'ds_read_b128 v[{92 + 8 * (t % 4)}:{95 + 8 * (t % 4)}], v35 offset:{8704 + 32 * t}')
        if t % 4 == 3:
            A('s_waitcnt lgkmcnt(0)')
            for tt in range(t - 3, t + 1):
                b = 88 + 8 * (tt % 4)
                cin = '0' if tt == 0 else 'v[120:135]'
                A(f'v_mfma_f32_32x32x16_bf16 v[120:135], v[{b}:{b+3}], v[{b+4}:{b+7}], {cin}')
    A('s_barrier')
    for r in range(4): A(f'ds_add_f32 v40, v{120 + r} offset:{4 * r}')
    for r in range(4, 12): A(f'ds_add_f32 v{37 + r}, v{120 + r}')
    A('s_waitcnt lgkmcnt(0)\n s_barrier')
    for ch in range(2):
        for e in range(8): A(f'ds_read_b32 v{64 + 8 * ch + e}, v{24 + e} offset:{TSZ * ch}')
    A('s_waitcnt lgkmcnt(0)')
    for ch in range(2):
        for k in range(4): A(f'v_cvt_pk_bf16_f32 v{88 + 4 * ch + k}, v{64 + 8 * ch + 2 * k}, v{65 + 8 * ch + 2 * k}')
    A(f'''
    s_lshl_b32 s30, s2, 13
    v_lshlrev_b32 v34, 4, v0
    v_add_u32 v34, s30, v34
    s_add_u32 s34, s20, {WS_KR}
    s_addc_u32 s35, s21, 0
    global_store_dwordx4 v34, v[88:91], s[34:35]
    v_add_u32 v35, 4096, v34
    global_store_dwordx4 v35, v[92:95], s[34:35]
    {name}_end:
    s_endpgm
    ''')
    n = A.resolve()
    return A.text(), dict(name=name, grid=256, block=256, lds=LDS, nvgpr=136)
```

```python
from common import *
def gen_k2(name='k2_kernel'):
    A = Asm()
    USZ = 4608; XO = 4608; R0 = XO + 4096; R1 = R0 + 4160; CH = R1 + 4160
    RED = 2 * CH
    LDS = RED + 4 * 4096
    A(f'''
    s_cmp_ge_u32 s2, 256
    s_cbranch_scc1 {name}_end
    s_load_dwordx2 s[4:5], s[0:1], 64
    s_load_dwordx2 s[20:21], s[0:1], 128
    v_lshrrev_b32 v1, 6, v0
    v_and_b32 v2, 63, v0
    v_readfirstlane_b32 s22, v1
    s_lshl_b32 s23, s2, 13
    v_lshlrev_b32 v3, 4, v0
    v_add_u32 v4, s23, v3
    v_lshlrev_b32 v5, 5, v0
    s_waitcnt lgkmcnt(0)
    s_add_u32 s24, s20, {WS_MU}
    s_addc_u32 s25, s21, 0
    s_add_u32 s26, s20, {WS_KR}
    s_addc_u32 s27, s21, 0
    s_add_u32 s26, s26, s23
    s_addc_u32 s27, s27, 0
    s_mov_b32 s36, s26
    s_mov_b32 s37, s27
    s_mov_b32 s38, 4096
    s_mov_b32 s39, 0x20000
    s_add_u32 s40, s26, 4096
    s_addc_u32 s41, s27, 0
    s_mov_b32 s42, 4096
    s_mov_b32 s43, 0x20000
    v_add_u32 v6, 4096, v4
    global_load_dwordx4 v[8:11], v4, s[20:21]
    global_load_dwordx4 v[12:15], v6, s[20:21]
    global_load_dwordx4 v[16:19], v5, s[24:25]
    global_load_dwordx4 v[20:23], v5, s[24:25] offset:16
    v_add_u32 v7, {WS_RS - WS_MU}, v5
    global_load_dwordx4 v[24:27], v7, s[24:25]
    global_load_dwordx4 v[28:31], v7, s[24:25] offset:16
    buffer_load_dwordx4 v[32:35], v3, s[36:39], 0 offen
    buffer_load_dwordx4 v[36:39], v3, s[36:39], 0 offen offset:4
    buffer_load_dwordx4 v[40:43], v3, s[40:43], 0 offen
    buffer_load_dwordx4 v[44:47], v3, s[40:43], 0 offen offset:4
    s_lshr_b32 s28, s22, 1
    s_lshl_b32 s29, s2, 1
    s_add_u32 s29, s29, s28
    s_lshl_b32 s29, s29, 1
    v_mov_b32 v48, s29
    global_load_ushort v49, v48, s[4:5]
    ''')
    A(f'''
    v_mov_b32 v50, 0
    v_mov_b32 v51, 0
    v_mov_b32 v52, 0
    v_mov_b32 v53, 0
    v_cmp_gt_u32 vcc, 30, v0
    s_and_saveexec_b64 s[32:33], vcc
    ds_write_b128 v3, v[50:53]
    ds_write_b128 v3, v[50:53] offset:{CH}
    s_mov_b64 exec, s[32:33]
    v_cmp_gt_u32 vcc, 2, v0
    s_and_saveexec_b64 s[32:33], vcc
    ds_write_b128 v3, v[50:53] offset:{R0 + 2 * 2064}
    ds_write_b128 v3, v[50:53] offset:{R1 + 2 * 2064}
    ds_write_b128 v3, v[50:53] offset:{CH + R0 + 2 * 2064}
    ds_write_b128 v3, v[50:53] offset:{CH + R1 + 2 * 2064}
    s_mov_b64 exec, s[32:33]
    ''')
    A('s_waitcnt vmcnt(1)')
    for ch in range(2):
        a_ = 32 + 8 * ch; b_ = a_ + 4
        A(f'ds_write_b128 v3, v[{a_}:{a_+3}] offset:{ch * CH + R0 + 32}')
        for k in range(4): A(f'v_alignbit_b32 v{b_ + k}, v{b_ + k}, v{a_ + k}, 16')
        A(f'ds_write_b128 v3, v[{b_}:{b_+3}] offset:{ch * CH + R1 + 32}')
    for ch in range(2):
        xs = 8 + 4 * ch
        A(f'ds_write_b128 v3, v[{xs}:{xs+3}] offset:{ch * CH + XO}')
        for k in range(4):
            lo, hi = 56 + 2 * k, 57 + 2 * k
            A(f'v_lshlrev_b32 v{lo}, 16, v{xs + k}')
            A(f'v_and_b32 v{hi}, 0xffff0000, v{xs + k}')
            A(f'v_pk_add_f32 v[{lo}:{hi}], v[{lo}:{hi}], v[{16 + 2 * k}:{17 + 2 * k}] neg_lo:[0,1] neg_hi:[0,1]')
            A(f'v_cvt_pk_bf16_f32 v{lo}, v{lo}, v{hi}')
            A(f'v_and_b32 v{hi}, 0xffff0000, v{lo}')
            A(f'v_lshlrev_b32 v{lo}, 16, v{lo}')
            A(f'v_pk_mul_f32 v[{lo}:{hi}], v[{lo}:{hi}], v[{24 + 2 * k}:{25 + 2 * k}]')
            A(f'v_cvt_pk_bf16_f32 v{64 + k}, v{lo}, v{hi}')
        A(f'ds_write_b128 v3, v[64:67] offset:{ch * CH + 480}')
    A(f'''
    s_mul_i32 s30, s28, {CH}
    s_and_b32 s31, s22, 1
    v_and_b32 v54, 15, v2
    v_lshrrev_b32 v55, 4, v2
    v_lshlrev_b32 v56, 5, v54
    v_lshlrev_b32 v57, 4, v55
    v_add_u32 v56, v56, v57
    s_lshl_b32 s33, s31, 8
    s_sub_u32 s34, s30, s33
    s_add_u32 s34, s34, 448
    v_add_u32 v60, s34, v56
    v_lshrrev_b32 v58, 1, v54
    v_lshlrev_b32 v58, 2, v58
    v_sub_u32 v58, v57, v58
    v_and_b32 v59, 1, v54
    v_sub_u32 v59, 1, v59
    v_mul_u32_u24 v59, 4160, v59
    v_add_u32 v58, v58, v59
    s_sub_u32 s34, s30, s33
    s_add_u32 s34, s34, {R0 + 4092}
    v_add_u32 v58, s34, v58
    ''')
    for k in range(4): A(f'v_subrev_u32 v{61 + k}, {512 * (2 * k + 1)}, v58')
    A('s_waitcnt lgkmcnt(0)\n s_barrier')
    G = [72, 136]; F = [104, 168]; ACC = 200
    def loads(set_):
        for t in range(8):
            A(f'ds_read_b128 v[{G[set_] + 4 * t}:{G[set_] + 4 * t + 3}], v60 offset:{512 * t}')
        for j in range(8):
            k = j >> 1; o = 0 if (j & 1) else 128
            A(f'ds_read2_b32 v[{F[set_] + 4 * j}:{F[set_] + 4 * j + 1}], v{61 + k} offset0:{o} offset1:{o + 1}')
            A(f'ds_read2_b32 v[{F[set_] + 4 * j + 2}:{F[set_] + 4 * j + 3}], v{61 + k} offset0:{o + 2} offset1:{o + 3}')
    def advance():
        A('v_subrev_u32 v60, 64, v60')
        for k in range(4): A(f'v_subrev_u32 v{61 + k}, 64, v{61 + k}')
    def mfmas(set_, first):
        for j in range(8):
            for t in range(8 - j):
                acc = ACC + 4 * (t + j)
                cin = '0' if (first and j == 0) else f'v[{acc}:{acc+3}]'
                A(f'v_mfma_f32_16x16x32_bf16 v[{acc}:{acc+3}], v[{F[set_] + 4 * j}:{F[set_] + 4 * j + 3}], v[{G[set_] + 4 * t}:{G[set_] + 4 * t + 3}], {cin}')
    loads(0); advance()
    for it in range(4):
        A('s_waitcnt lgkmcnt(0)')
        if it < 3:
            loads((it + 1) & 1); advance()
        mfmas(it & 1, it == 0)
    A(f'''
    s_lshl_b32 s33, s22, 12
    s_add_u32 s33, s33, {RED}
    v_lshlrev_b32 v68, 4, v2
    v_add_u32 v69, s33, v68
    s_xor_b32 s34, s33, 4096
    s_xor_b32 s35, s22, 1
    s_lshl_b32 s35, s35, 12
    s_add_u32 s35, s35, {RED}
    v_add_u32 v70, s35, v68
    s_cmp_eq_u32 s31, 0
    s_cbranch_scc0 {name}_odd
    ''')
    for t in range(4): A(f'ds_write_b128 v69, v[{ACC + 16 + 4 * t}:{ACC + 16 + 4 * t + 3}] offset:{1024 * t}')
    A(f's_branch {name}_join\n {name}_odd:')
    for t in range(4): A(f'ds_write_b128 v69, v[{ACC + 4 * t}:{ACC + 4 * t + 3}] offset:{1024 * t}')
    for t in range(16): A(f'v_mov_b32 v{ACC + t}, v{ACC + 16 + t}')
    A(f'{name}_join:\n s_waitcnt lgkmcnt(0)\n s_barrier')
    for t in range(4): A(f'ds_read_b128 v[{72 + 4 * t}:{72 + 4 * t + 3}], v70 offset:{1024 * t}')
    A(f'''
    v_lshlrev_b32 v56, 5, v54
    v_lshlrev_b32 v57, 3, v55
    v_add_u32 v56, v56, v57
    s_lshl_b32 s33, s31, 11
    s_add_u32 s34, s33, s30
    v_add_u32 v57, s34, v56
    ''')
    for t in range(4):
        A(f'ds_read_b64 v[{88 + 2 * t}:{89 + 2 * t}], v57 offset:{480 + 512 * t}')
        A(f'ds_read_b64 v[{96 + 2 * t}:{97 + 2 * t}], v57 offset:{XO + 512 * t}')
    A(f'''
    s_waitcnt vmcnt(0)
    v_lshlrev_b32 v49, 16, v49
    s_lshl_b32 s34, s2, 13
    s_lshl_b32 s35, s28, 12
    s_add_u32 s34, s34, s35
    s_add_u32 s34, s34, s33
    v_add_u32 v58, s34, v56
    s_add_u32 s24, s20, {WS_HT}
    s_addc_u32 s25, s21, 0
    s_waitcnt lgkmcnt(0)
    ''')
    for t in range(4):
        for pr in range(2):
            y0, y1 = ACC + 4 * t + 2 * pr, ACC + 4 * t + 2 * pr + 1
            p0, p1 = 72 + 4 * t + 2 * pr, 72 + 4 * t + 2 * pr + 1
            u = 88 + 2 * t + pr; x = 96 + 2 * t + pr
            A(f'''
            v_pk_add_f32 v[{y0}:{y1}], v[{y0}:{y1}], v[{p0}:{p1}]
            v_cvt_pk_bf16_f32 v{y0}, v{y0}, v{y1}
            v_and_b32 v{y1}, 0xffff0000, v{y0}
            v_lshlrev_b32 v{y0}, 16, v{y0}
            v_lshlrev_b32 v104, 16, v{u}
            v_and_b32 v105, 0xffff0000, v{u}
            v_pk_mul_f32 v[104:105], v[104:105], v[48:49] op_sel:[0,1] op_sel_hi:[1,1]
            v_cvt_pk_bf16_f32 v104, v104, v105
            v_and_b32 v105, 0xffff0000, v104
            v_lshlrev_b32 v104, 16, v104
            v_pk_add_f32 v[{y0}:{y1}], v[{y0}:{y1}], v[104:105]
            v_cvt_pk_bf16_f32 v{y0}, v{y0}, v{y1}
            v_and_b32 v{y1}, 0xffff0000, v{y0}
            v_lshlrev_b32 v{y0}, 16, v{y0}
            v_lshlrev_b32 v104, 16, v{x}
            v_and_b32 v105, 0xffff0000, v{x}
            v_pk_add_f32 v[{y0}:{y1}], v[{y0}:{y1}], v[104:105]
            v_cvt_pk_bf16_f32 v{108 + 2 * t + pr}, v{y0}, v{y1}
            ''')
        A(f'global_store_dwordx2 v58, v[{108 + 2 * t}:{109 + 2 * t}], s[24:25] offset:{512 * t}')
    A(f'{name}_end:\n s_endpgm')
    A.resolve()
    return A.text(), dict(name=name, grid=256, block=256, lds=LDS, nvgpr=232)
```

```python
from common import *
def ln_stats(A, x0, mean, var, t0, t1, nrows=2):
    rows = range(nrows)
    for row in rows:
        b = x0 + 8 * row
        A(f'v_add_f32 v{mean + row}, v{b}, v{b + 1}')
        for k in range(2, 8): A(f'v_add_f32 v{mean + row}, v{mean + row}, v{b + k}')
    allsum64(A, [mean + r for r in rows], [t1 + r for r in rows])
    for row in rows: A(f'v_mul_f32 v{mean + row}, 0x3b000000, v{mean + row}')
    for row in rows:
        b = x0 + 8 * row
        for k in range(8): A(f'v_sub_f32 v{t0 + 8 * row + k}, v{b + k}, v{mean + row}')
        A(f'v_mul_f32 v{var + row}, v{t0 + 8 * row}, v{t0 + 8 * row}')
        for k in range(1, 8): A(f'v_fmac_f32 v{var + row}, v{t0 + 8 * row + k}, v{t0 + 8 * row + k}')
    allsum64(A, [var + r for r in rows], [t1 + r for r in rows])
    for row in rows:
        A(f'v_mul_f32 v{var + row}, 0x3b000000, v{var + row}')
        round_bf16(A, var + row, var + row)
        A(f'v_add_f32 v{var + row}, {EPS:#x}, v{var + row}')
        round_bf16(A, var + row, var + row)
        A(f'v_sqrt_f32 v{var + row}, v{var + row}')
        round_bf16(A, var + row, var + row)
        A(f'v_rcp_f32 v{var + row}, v{var + row}')
        round_bf16(A, mean + row, mean + row)
def ln_apply(A, x0, mean, rs, nrows=2):
    for row in range(nrows):
        for k in range(8):
            r = x0 + 8 * row + k
            A(f'v_sub_f32 v{r}, v{r}, v{mean + row}')
            round_bf16(A, r, r)
            A(f'v_mul_f32 v{r}, v{r}, v{rs + row}')
            round_bf16(A, r, r)
def gen_k2b(name='k2b_kernel'):
    A = Asm()
    A(f'''
    s_cmp_ge_u32 s2, 256
    s_cbranch_scc1 {name}_end
    s_load_dwordx2 s[20:21], s[0:1], 128
    v_lshrrev_b32 v1, 6, v0
    v_and_b32 v2, 63, v0
    v_readfirstlane_b32 s22, v1
    s_lshl_b32 s23, s2, 3
    v_lshlrev_b32 v34, 13, v0
    s_lshl_b32 s30, s23, 1
    s_add_u32 s30, s30, {WS_HT}
    v_add_u32 v34, s30, v34
    v_add_u32 v35, 4096, v34
    s_waitcnt lgkmcnt(0)
    global_load_dwordx4 v[8:11], v34, s[20:21]
    global_load_dwordx4 v[12:15], v35, s[20:21]
    s_mov_b32 s30, 0x05040100
    s_mov_b32 s31, 0x07060302
    v_lshlrev_b32 v36, 2, v0
    s_waitcnt vmcnt(0)
    ''')
    for k in range(4):
        A(f'v_perm_b32 v16, v{12 + k}, v{8 + k}, s30')
        A(f'v_perm_b32 v17, v{12 + k}, v{8 + k}, s31')
        A(f'ds_write_b32 v36, v16 offset:{2048 * k}')
        A(f'ds_write_b32 v36, v17 offset:{2048 * k + 1024}')
    A(f'''
    s_waitcnt lgkmcnt(0)
    s_barrier
    s_lshl_b32 s30, s22, 11
    v_lshlrev_b32 v36, 4, v2
    v_add_u32 v37, s30, v36
    ds_read_b128 v[8:11], v37
    ds_read_b128 v[12:15], v37 offset:1024
    s_lshl_b32 s25, s22, 1
    s_add_u32 s25, s25, s23
    s_lshl_b32 s26, s25, 10
    v_add_u32 v38, s26, v36
    v_add_u32 v39, {WS_HR}, v38
    v_add_u32 v40, {WS_A2}, v38
    s_waitcnt lgkmcnt(0)
    global_store_dwordx4 v39, v[8:11], s[20:21]
    global_store_dwordx4 v39, v[12:15], s[20:21] offset:1024
    ''')
    for row in range(2):
        for k in range(4):
            src = 8 + 4 * row + k
            A(f'v_lshlrev_b32 v{64 + 8 * row + 2 * k}, 16, v{src}')
            A(f'v_and_b32 v{65 + 8 * row + 2 * k}, 0xffff0000, v{src}')
    for rep in range(2):
        ln_stats(A, 64, 80, 84, 90, 82)
        ln_apply(A, 64, 80, 84)
    for row in range(2):
        for k in range(4):
            A(f'v_cvt_pk_bf16_f32 v{16 + 4 * row + k}, v{64 + 8 * row + 2 * k}, v{65 + 8 * row + 2 * k}')
    A(f'''
    global_store_dwordx4 v40, v[16:19], s[20:21]
    global_store_dwordx4 v40, v[20:23], s[20:21] offset:1024
    {name}_end:
    s_endpgm
    ''')
    A.resolve()
    return A.text(), dict(name=name, grid=256, block=256, lds=8192, nvgpr=112)
```

```python
from common import *
import struct
f2u = lambda x: struct.unpack('<I', struct.pack('<f', float(x)))[0]
C1 = -2.0 * 0.7978845608028654 * 1.4426950408889634
C2 = C1 * 0.044715
def gelu4(A, x, t, sc1, sc2):
    for r in range(4): A(f'v_mul_f32 v{t + r}, v{x + r}, v{x + r}')
    for r in range(4): A(f'v_fma_f32 v{t + r}, v{t + r}, s{sc2}, v{sc1}')
    for r in range(4): A(f'v_mul_f32 v{t + r}, v{t + r}, v{x + r}')
    for r in range(4): A(f'v_exp_f32 v{t + r}, v{t + r}')
    for r in range(4): A(f'v_add_f32 v{t + r}, 1.0, v{t + r}')
    for r in range(4): A(f'v_rcp_f32 v{t + r}, v{t + r}')
    for r in range(4): A(f'v_mul_f32 v{x + r}, v{x + r}, v{t + r}')
def gen_k3s(name='k3s_kernel'):
    A = Asm()
    A(f'''
    s_cmp_ge_u32 s2, 256
    s_cbranch_scc1 {name}_end
    s_load_dwordx2 s[4:5], s[0:1], 88
    s_load_dwordx2 s[20:21], s[0:1], 128
    v_lshrrev_b32 v1, 6, v0
    v_and_b32 v2, 63, v0
    v_readfirstlane_b32 s22, v1
    v_and_b32 v3, 15, v2
    v_lshrrev_b32 v4, 4, v2
    s_and_b32 s23, s2, 15
    s_lshr_b32 s24, s2, 4
    s_mul_i32 s25, s23, {7 * 16384}
    s_add_u32 s25, s25, {WS_W1P}
    v_lshlrev_b32 v5, 4, v2
    v_add_u32 v5, s25, v5
    s_lshl_b32 s26, s24, 7
    s_lshl_b32 s27, s22, 5
    s_add_u32 s26, s26, s27
    v_add_u32 v6, s26, v3
    v_lshlrev_b32 v6, 10, v6
    v_lshlrev_b32 v7, 4, v4
    v_add_u32 v6, v6, v7
    v_add_u32 v6, {WS_A2}, v6
    v_add_u32 v7, 16384, v6
    s_waitcnt lgkmcnt(0)
    ''')
    SET = [16, 56]; ACC = 96
    def loads(st, s_):
        for i in range(7):
            A(f'v_add_u32 v8, {i * 16384 + s_ * 1024}, v5')
            A(f'global_load_dwordx4 v[{SET[st] + 4 * i}:{SET[st] + 4 * i + 3}], v8, s[20:21]')
        A(f'global_load_dwordx4 v[{SET[st] + 28}:{SET[st] + 31}], v6, s[20:21] offset:{64 * s_}')
        A(f'global_load_dwordx4 v[{SET[st] + 32}:{SET[st] + 35}], v7, s[20:21] offset:{64 * s_}')
    loads(0, 0)
    for s_ in range(16):
        if s_ < 15:
            loads((s_ + 1) & 1, s_ + 1); A('s_waitcnt vmcnt(9)')
        else: A('s_waitcnt vmcnt(0)')
        st = SET[s_ & 1]
        for i in range(7):
            for m in range(2):
                acc = ACC + 4 * (2 * i + m)
                cin = '0' if s_ == 0 else f'v[{acc}:{acc+3}]'
                A(f'v_mfma_f32_16x16x32_bf16 v[{acc}:{acc+3}], v[{st + 4 * i}:{st + 4 * i + 3}], v[{st + 28 + 4 * m}:{st + 31 + 4 * m}], {cin}')
    A(f'''
    s_mul_i32 s28, s23, 7
    v_lshlrev_b32 v9, 3, v4
    s_lshl_b32 s29, s28, 5
    v_add_u32 v9, s29, v9
    v_mov_b32 v10, {hex(f2u(C1))}
    s_mov_b32 s31, {hex(f2u(C2))}
    s_lshr_b32 s26, s26, 4
    s_mul_i32 s26, s26, {56 * 1024}
    s_add_u32 s26, s26, {WS_H1}
    v_lshlrev_b32 v11, 4, v2
    v_add_u32 v11, s26, v11
    ''')
    for i in range(7): A(f'global_load_dwordx2 v[{16 + 2 * i}:{17 + 2 * i}], v9, s[4:5] offset:{32 * i}')
    A('s_waitcnt vmcnt(0)')
    for i in range(7):
        A(f'''
        v_lshlrev_b32 v32, 16, v{16 + 2 * i}
        v_and_b32 v33, 0xffff0000, v{16 + 2 * i}
        v_lshlrev_b32 v34, 16, v{17 + 2 * i}
        v_and_b32 v35, 0xffff0000, v{17 + 2 * i}
        s_add_u32 s30, s28, {i}
        s_lshr_b32 s33, s30, 1
        s_lshl_b32 s33, s33, 10
        s_and_b32 s34, s30, 1
        s_lshl_b32 s34, s34, 3
        s_add_u32 s33, s33, s34
        v_add_u32 v12, s33, v11
        v_add_u32 v13, {56 * 1024}, v12
        ''')
        for m in range(2):
            acc = ACC + 4 * (2 * i + m)
            for r in range(4): A(f'v_add_f32 v{acc + r}, v{acc + r}, v{32 + r}')
            gelu4(A, acc, 40, 10, 31)
            A(f'v_cvt_pk_bf16_f32 v{44}, v{acc}, v{acc + 1}')
            A(f'v_cvt_pk_bf16_f32 v{45}, v{acc + 2}, v{acc + 3}')
            A(f'global_store_dwordx2 v{12 + m}, v[44:45], s[20:21]')
            A('s_nop 1')
    A(f'{name}_end:\n s_endpgm')
    A.resolve()
    return A.text(), dict(name=name, grid=256, block=256, lds=0, nvgpr=152)
```

```python
from common import *
def gen_k4(name='k4_kernel'):
    A = Asm()
    LDS = 49152
    A(f'''
    s_cmp_ge_u32 s2, 256
    s_cbranch_scc1 {name}_end
    s_load_dwordx2 s[4:5], s[0:1], 104
    s_load_dwordx2 s[6:7], s[0:1], 112
    s_load_dwordx2 s[20:21], s[0:1], 128
    v_lshrrev_b32 v1, 6, v0
    v_and_b32 v2, 63, v0
    v_readfirstlane_b32 s22, v1
    v_and_b32 v3, 15, v2
    v_lshrrev_b32 v4, 4, v2
    s_and_b32 s23, s2, 7
    s_lshl_b32 s23, s23, 2
    s_lshr_b32 s24, s2, 6
    s_add_u32 s23, s23, s24
    s_lshr_b32 s24, s2, 3
    s_and_b32 s24, s24, 7
    s_mul_i32 s25, s24, {4 * 56}
    s_mul_i32 s26, s22, 14
    s_add_u32 s25, s25, s26
    s_lshl_b32 s25, s25, 10
    s_mul_i32 s27, s23, {4 * 56}
    s_add_u32 s27, s27, s26
    s_lshl_b32 s27, s27, 10
    v_lshlrev_b32 v5, 4, v2
    s_waitcnt lgkmcnt(0)
    s_add_u32 s28, s20, {WS_W2P}
    s_addc_u32 s29, s21, 0
    s_add_u32 s28, s28, s25
    s_addc_u32 s29, s29, 0
    s_add_u32 s30, s20, {WS_H1}
    s_addc_u32 s31, s21, 0
    s_add_u32 s30, s30, s27
    s_addc_u32 s31, s31, 0
    ''')
    for i in range(4): A(f'v_add_u32 v{8 + i}, {i * 56 * 1024}, v5')
    NS = 3
    SET = [16 + 32 * k for k in range(NS)]; ACC = 16 + 32 * NS
    def loads(s_):
        st = SET[s_ % NS]
        o = (s_ % 4) * 1024
        if s_ % 4 == 0 and s_ > 0:
            for i in range(4): A(f'v_add_u32 v{8 + i}, 4096, v{8 + i}')
        for i in range(4):
            A(f'global_load_dwordx4 v[{st + 4 * i}:{st + 4 * i + 3}], v{8 + i}, s[28:29] offset:{o}')
            A(f'global_load_dwordx4 v[{st + 16 + 4 * i}:{st + 16 + 4 * i + 3}], v{8 + i}, s[30:31] offset:{o}')
    for s_ in range(NS - 1): loads(s_)
    for s_ in range(14):
        if s_ + NS - 1 < 14:
            loads(s_ + NS - 1); A(f's_waitcnt vmcnt({8 * (NS - 1)})')
        else:
            A(f's_waitcnt vmcnt({8 * (13 - s_)})')
        st = SET[s_ % NS]
        for i in range(4):
            for m in range(4):
                acc = ACC + 4 * (4 * i + m)
                cin = '0' if s_ == 0 else f'v[{acc}:{acc+3}]'
                A(f'v_mfma_f32_16x16x32_bf16 v[{acc}:{acc+3}], v[{st + 4 * i}:{st + 4 * i + 3}], v[{st + 16 + 4 * m}:{st + 16 + 4 * m + 3}], {cin}')
    A(f'''
    s_lshl_b32 s33, s23, 6
    v_add_u32 v6, s33, v3
    v_lshlrev_b32 v6, 10, v6
    s_lshl_b32 s34, s24, 7
    s_lshl_b32 s35, s22, 5
    s_add_u32 s34, s34, s35
    v_lshlrev_b32 v7, 3, v4
    v_add_u32 v7, s34, v7
    v_add_u32 v6, v6, v7
    s_add_u32 s36, s20, {WS_HR}
    s_addc_u32 s37, s21, 0
    global_load_dwordx2 v[12:13], v7, s[4:5]
    ''')
    for m in range(4):
        A(f'v_add_u32 v{8 + m}, {m * 16384}, v6')
        A(f'global_load_dwordx2 v[{16 + 2 * m}:{17 + 2 * m}], v{8 + m}, s[36:37]')
    A(f's_mul_i32 s38, s22, {3 * 4096}\n v_add_u32 v14, s38, v5')
    for w in range(4):
        A(f's_cmp_eq_u32 s22, {w}\n s_cbranch_scc0 {name}_r{w}')
        for idx in range(3):
            i = (w + 1 + idx) & 3
            for m in range(4):
                acc = ACC + 4 * (4 * i + m)
                A(f'ds_write_b128 v14, v[{acc}:{acc+3}] offset:{idx * 4096 + m * 1024}')
        if w != 0:
            for k in range(16): A(f'v_mov_b32 v{ACC + k}, v{ACC + 16 * w + k}')
        A('s_waitcnt lgkmcnt(0)\n s_barrier')
        for q in range(3):
            wp = (w + 1 + q) & 3
            idx = (w - wp - 1) & 3
            for m in range(4):
                A(f'ds_read_b128 v[{32 + 16 * q + 4 * m}:{32 + 16 * q + 4 * m + 3}], v5 offset:{(wp * 3 + idx) * 4096 + m * 1024}')
        A(f's_branch {name}_fin\n {name}_r{w}:')
    A(f'{name}_fin:\n s_waitcnt vmcnt(0) lgkmcnt(0)')
    A(f'''
    v_lshlrev_b32 v24, 16, v12
    v_and_b32 v25, 0xffff0000, v12
    v_lshlrev_b32 v26, 16, v13
    v_and_b32 v27, 0xffff0000, v13
    ''')
    for m in range(4):
        acc = ACC + 4 * m
        for q in range(3):
            for pr in range(2):
                A(f'v_pk_add_f32 v[{acc + 2 * pr}:{acc + 2 * pr + 1}], v[{acc + 2 * pr}:{acc + 2 * pr + 1}], v[{32 + 16 * q + 4 * m + 2 * pr}:{32 + 16 * q + 4 * m + 2 * pr + 1}]')
        for pr in range(2):
            y0, y1 = acc + 2 * pr, acc + 2 * pr + 1
            A(f'''
            v_cvt_pk_bf16_f32 v{y0}, v{y0}, v{y1}
            v_and_b32 v{y1}, 0xffff0000, v{y0}
            v_lshlrev_b32 v{y0}, 16, v{y0}
            v_pk_add_f32 v[{y0}:{y1}], v[{y0}:{y1}], v[{24 + 2 * pr}:{25 + 2 * pr}]
            v_cvt_pk_bf16_f32 v{y0}, v{y0}, v{y1}
            v_and_b32 v{y1}, 0xffff0000, v{y0}
            v_lshlrev_b32 v{y0}, 16, v{y0}
            v_lshlrev_b32 v28, 16, v{16 + 2 * m + pr}
            v_and_b32 v29, 0xffff0000, v{16 + 2 * m + pr}
            v_pk_add_f32 v[{y0}:{y1}], v[{y0}:{y1}], v[28:29]
            v_cvt_pk_bf16_f32 v{30 + pr}, v{y0}, v{y1}
            ''')
        A(f'global_store_dwordx2 v{8 + m}, v[30:31], s[6:7]')
        A('s_nop 1')
    A(f'{name}_end:\n s_endpgm')
    A.resolve()
    return A.text(), dict(name=name, grid=256, block=256, lds=LDS, nvgpr=ACC + 64)
```

```python
import sys, importlib
from asmlib import *
HEADER = open('sequential_preLN__ssm_conv_s4__mixer_channel_mlp__prompt.s.ref').read().split('; Override launch')[0]
def build(kernels, path, order=None):
    metas = {m['name']: m for _, m in kernels}
    order = order or [m['name'] for _, m in kernels]
    s = HEADER
    for n in order:
        m = metas[n]
        s += f"; @launch kernel={n} grid=({m['grid']},1,1) block=({m['block']},1,1) lds={m['lds']}\n"
    s += '.amdgcn_target "amdgcn-amd-amdhsa--gfx950"\n.text\n'
    for t, m in kernels:
        s += kernel_header(m['name']) + t
    s += '.section .rodata,"a"\n.p2align 6\n'
    for t, m in kernels:
        s += '.p2align 6\n' + kernel_desc(m['name'], m['nvgpr'], m.get('nsgpr', 102), m.get('accum'), m.get('total'))
    open(path, 'w').write(s)
if __name__ == '__main__':
    import k0, k1, k2, k2b, k3s, k4
    ks = [k0.gen_k0(), k1.gen_k1(), k2.gen_k2(), k2b.gen_k2b(), k3s.gen_k3s(), k4.gen_k4()]
    build(ks, 'sequential_preLN__ssm_conv_s4__mixer_channel_mlp__prompt.s')
```

```python
from build import *
import k0, k1, k2, k2b, k3s, k4
def triv(name): return ('    s_endpgm\n', dict(name=name, grid=256, block=256, lds=0, nvgpr=8))
ks = [k0.gen_k0(), k1.gen_k1(), k2.gen_k2(), k2b.gen_k2b(), k3s.gen_k3s(), k4.gen_k4(), triv('t_kernel')]
base = ['k0_kernel', 'k1_kernel', 'k2_kernel', 'k2b_kernel', 'k3s_kernel', 'k4_kernel']
import os
os.makedirs('var', exist_ok=True)
build(ks, 'v0.s', base)
build(ks, 'v1.s', base + ['t_kernel'] * 4)
build(ks, 'v2.s', ['t_kernel'] * 4 + base)
build(ks, 'v3.s', base + ['t_kernel'] * 8)
```

```python
import re

TRANS = ('v_exp_f32', 'v_log_f32', 'v_rcp_f32', 'v_rsq_f32', 'v_sqrt_f32', 'v_sin_f32', 'v_cos_f32', 'v_rcp_iflag_f32')

def regs_of(tok):
    tok = tok.strip()
    neg = tok.lstrip('-')
    if neg.startswith('abs(') and neg.endswith(')'): neg = neg[4:-1]
    if neg.startswith('|') and neg.endswith('|'): neg = neg[1:-1]
    m = re.fullmatch(r'([vsa])(\d+)', neg)
    if m: return {(m.group(1), int(m.group(2)))}
    m = re.fullmatch(r'([vsa])\[(\d+):(\d+)\]', neg)
    if m: return {(m.group(1), i) for i in range(int(m.group(2)), int(m.group(3)) + 1)}
    if neg in ('vcc', 'vcc_lo', 'vcc_hi'): return {('s', 'vcc')}
    if neg in ('exec', 'exec_lo', 'exec_hi'): return {('s', 'exec')}
    if neg == 'm0': return {('s', 'm0')}
    return set()

class Ins:
    __slots__ = ('text', 'op', 'ops', 'mods', 'dst', 'src', 'cls', 'passes', 'srcC', 'dpp', 'nops')
    def __init__(self, text):
        self.text = text
        t = text.split(';')[0].strip()
        parts = t.split(None, 1)
        self.op = parts[0]
        rest = parts[1] if len(parts) > 1 else ''
        toks = [x.strip() for x in rest.split(',')] if rest else []
        ops = []; mods = ''
        i = 0
        joined = rest
        mm = re.search(r'\s(op_sel|op_sel_hi|neg_lo|neg_hi|offset|offset0|offset1|offen|idxen|lds|sc0|sc1|nt|row_|quad_perm|bound_ctrl|bank_mask|mul:|div:|clamp|cbsz|abid|blgp|dst_sel|src0_sel|src1_sel|off\b|wave_|glc|gds)', ' ' + joined if False else joined)
        if mm:
            mods = joined[mm.start():]
            joined = joined[:mm.start()]
        ops = [x.strip() for x in joined.split(',')] if joined.strip() else []
        self.ops = ops; self.mods = mods
        op = self.op
        self.dst = set(); self.src = set(); self.srcC = set(); self.passes = 0
        self.dpp = ('row_' in mods or 'quad_perm' in mods or 'wave_' in mods)
        R = [regs_of(o) for o in ops]
        if op.startswith('v_mfma'):
            self.cls = 'mfma'
            self.dst = R[0]; self.srcC = R[3]; self.src = R[1] | R[2] | R[3]
            if '32x32x16' in op or '32x32x8' in op: self.passes = 8
            elif '16x16x32' in op or '16x16x16' in op: self.passes = 4
            else: raise ValueError('unknown mfma ' + op)
        elif op.startswith('v_'):
            self.cls = 'valu'
            if op.startswith('v_cmp'):
                self.dst = R[0]; self.src = set().union(*R[1:])
                if op.startswith('v_cmpx'): self.dst = self.dst | {('s', 'exec')}
            elif op in ('v_readlane_b32', 'v_readfirstlane_b32'):
                self.dst = R[0]; self.src = set().union(*R[1:])
            elif op.startswith('v_permlane') and 'swap' in op:
                self.dst = R[0] | R[1]; self.src = R[0] | R[1]
            elif op.startswith(('v_add_co', 'v_sub_co', 'v_addc_co', 'v_subb_co', 'v_subrev_co')):
                self.dst = R[0] | R[1]; self.src = set().union(*R[2:])
            elif op.startswith('v_mad_u64_u32'):
                self.dst = R[0] | R[1]; self.src = set().union(*R[2:])
            else:
                self.dst = R[0]; self.src = set().union(*R[1:]) if len(R) > 1 else set()
                if op.startswith(('v_fmac', 'v_pk_fmac', 'v_dot2c', 'v_writelane', 'v_dot2_', 'v_mac')) or 'dst_unused:UNUSED_PRESERVE' in mods or self.dpp:
                    self.src = self.src | R[0]
                if op.startswith('v_cndmask') and len(ops) == 3: self.src = self.src | {('s', 'vcc')}
            if op.startswith('v_nop'): self.cls = 'valu'
        elif op.startswith(('buffer_', 'global_', 'flat_')):
            self.cls = 'vmem'
            allr = set().union(*R) if R else set()
            if 'load' in op and ' lds' not in (' ' + mods) and '_lds_' not in op:
                self.dst = R[0]; self.src = set().union(*R[1:])
            elif 'atomic' in op and 'sc0' in mods:
                self.dst = R[0]; self.src = allr
            else:
                self.src = allr
        elif op.startswith('ds_'):
            self.cls = 'ds'
            if op.startswith(('ds_read', 'ds_bpermute', 'ds_permute', 'ds_swizzle')) or '_rtn' in op:
                self.dst = R[0]; self.src = set().union(*R[1:]) if len(R) > 1 else set()
                if 'd16' in op: self.src = self.src | R[0]
            else:
                self.src = set().union(*R) if R else set()
        elif op.startswith('s_'):
            self.cls = 'salu'
            if op in ('s_nop', 's_waitcnt', 's_barrier', 's_endpgm', 's_branch', 's_sleep', 's_setprio') or op.startswith('s_cbranch') or op.startswith('s_cmp') or op.startswith('s_bitcmp'):
                self.src = set().union(*R) if R else set()
            else:
                self.dst = R[0] if R else set(); self.src = set().union(*R[1:]) if len(R) > 1 else set()
                if 'saveexec' in op: self.dst = self.dst | {('s', 'exec')}
        else:
            raise ValueError('unknown instruction: ' + text)
        self.nops = 1
        if op == 's_nop': self.nops = int(ops[0], 0) + 1

def is_wide_store(i):
    return i.cls == 'vmem' and ('store_dwordx3' in i.op or 'store_dwordx4' in i.op)

def need(p, c):
    n = 0
    vd = {r for r in p.dst if r[0] in 'va'}
    sd = {r for r in p.dst if r[0] == 's'}
    if p.cls == 'valu':
        if vd:
            if c.cls == 'mfma' and vd & c.src: n = max(n, 2)
            if c.cls == 'valu':
                if c.dpp and vd & c.src: n = max(n, 2)
                if c.op.startswith('v_permlane') and vd & c.src: n = max(n, 2)
                if c.op in ('v_readlane_b32', 'v_readfirstlane_b32') and vd & c.src: n = max(n, 1)
                if p.op.startswith(TRANS) and vd & (c.src): n = max(n, 1)
                if ('op_sel' in p.mods and not p.op.startswith('v_pk_')) or 'dst_sel' in p.mods:
                    if vd & (c.src | c.dst): n = max(n, 1)
            if p.op.startswith(TRANS) and c.cls in ('vmem', 'ds') and vd & c.src: n = max(n, 1)
        if sd:
            if c.cls == 'valu' and sd & c.src:
                n = max(n, 4 if c.op in ('v_readlane_b32', 'v_writelane_b32') else 2)
            if c.cls == 'valu' and ('s', 'exec') in sd:
                if c.dpp: n = max(n, 5)
                if c.op.startswith(('v_readlane', 'v_readfirstlane', 'v_writelane', 'v_permlane')): n = max(n, 4)
            if c.cls == 'mfma' and ('s', 'exec') in sd: n = max(n, 4)
            if c.cls == 'vmem' and sd & c.src: n = max(n, 5)
            if c.cls == 'salu' and sd & c.src: n = max(n, 1)
    if p.cls == 'valu' and p.op.startswith('v_dot'):
        if c.cls in ('valu', 'vmem', 'ds', 'mfma') and (vd & (c.src | c.dst)):
            same_acc = (c.op == p.op) and not (vd & (regs_of(c.ops[1]) | regs_of(c.ops[2])))
            if not same_acc: n = max(n, 3)
    if p.cls == 'mfma':
        P = p.passes
        if c.cls == 'mfma':
            if p.dst & c.srcC:
                if p.dst == c.srcC and P == c.passes: n = max(n, 0)
                else: n = max(n, P + 2)
            ab = c.src - c.srcC
            if p.dst & (regs_of(c.ops[1]) | regs_of(c.ops[2])): n = max(n, P + 4)
            if (p.dst & c.dst) and not (p.dst == c.dst and p.dst == c.srcC and P == c.passes): n = max(n, P + 2)
        elif c.cls == 'valu':
            if p.dst & (c.src | c.dst): n = max(n, P + 4)
            if p.srcC & c.dst: n = max(n, P - 1)
        elif c.cls in ('vmem', 'ds'):
            if p.dst & (c.src | c.dst): n = max(n, P + 4)
    if p.cls == 'salu' and ('s', 'm0') in p.dst:
        if (c.cls == 'vmem' and (' lds' in (' ' + c.mods) or '_lds_' in c.op)) or (c.cls == 'ds' and 'addtid' in c.op): n = max(n, 1)
    if is_wide_store(p):
        data = regs_of(p.ops[0]) if p.op.startswith('buffer') else regs_of(p.ops[1])
        if c.dst & data:
            n = max(n, 2 if c.cls == 'valu' else 1)
    return n

WINDOW = 24
class Asm:
    def __init__(self):
        self.items = []
    def __call__(self, s):
        for line in s.split('\n'):
            t = line.strip()
            if not t or t.startswith(';'):
                continue
            if t.endswith(':') and ' ' not in t:
                self.items.append(('l', t[:-1]))
            elif t.startswith('.'):
                self.items.append(('t', t))
            else:
                self.items.append(('i', Ins(t)))
    def label(self, n): self.items.append(('l', n))
    def auto(self, on): self.items.append(('m', 'on' if on else 'off'))
    def auto_waits(self):
        out = []; on = False; ds = []; vm = []
        def parse_wait(x):
            t = x.text
            m = re.search(r'lgkmcnt\((\d+)\)', t); l = int(m.group(1)) if m else None
            m = re.search(r'vmcnt\((\d+)\)', t); v = int(m.group(1)) if m else None
            return l, v
        for kind, x in self.items:
            if kind == 'm':
                on = (x == 'on'); ds = []; vm = []
                continue
            if kind == 'l' and on: raise ValueError('label inside auto region: ' + x)
            if kind == 'i' and on:
                if x.op == 's_waitcnt':
                    l, v = parse_wait(x)
                    if l is not None: ds = ds[len(ds) - l:] if l < len(ds) else ds
                    if l == 0: ds = []
                    if v is not None: vm = vm[len(vm) - v:] if v < len(vm) else vm
                    if v == 0: vm = []
                else:
                    touched = x.src | x.dst
                    need_l = None; need_v = None
                    for i, d in enumerate(ds):
                        if d & touched: need_l = len(ds) - 1 - i
                    for i, d in enumerate(vm):
                        if d & touched: need_v = len(vm) - 1 - i
                    if need_l is not None:
                        n = min(need_l, 15)
                        out.append(('i', Ins(f's_waitcnt lgkmcnt({n})'))); ds = ds[len(ds) - n:] if n else []
                    if need_v is not None:
                        n = min(need_v, 63)
                        out.append(('i', Ins(f's_waitcnt vmcnt({n})'))); vm = vm[len(vm) - n:] if n else []
                    if x.cls == 'ds': ds.append(set(x.dst))
                    if x.cls == 'vmem': vm.append(set(x.dst))
            out.append((kind, x))
        self.items = out
    def resolve(self):
        self.auto_waits()
        items = self.items
        def scan_need(hist, c):
            dist = 0; extra = 0
            for p in reversed(hist):
                if dist > WINDOW: break
                k = need(p, c)
                if k > dist: extra = max(extra, k - dist)
                dist += p.nops
            return extra
        inserted = 0
        out = []; hist = []
        for kind, x in items:
            if kind == 'i':
                e = scan_need(hist, x)
                while e > 0:
                    k = min(e, 16)
                    nop = Ins(f's_nop {k - 1}'); out.append(('i', nop)); hist.append(nop); e -= k; inserted += 1
                out.append((kind, x)); hist.append(x)
                if x.op in ('s_branch', 's_endpgm'): hist = []
                hist = hist[-WINDOW - 2:]
            else:
                out.append((kind, x))
        items = out
        labels = {x: i for i, (k, x) in enumerate(items) if k == 'l'}
        i = 0; out = []
        for idx, (kind, x) in enumerate(items):
            if kind == 'i' and (x.op == 's_branch' or x.op.startswith('s_cbranch')):
                tgt = x.ops[0]
                hist = [y for k, y in items[max(0, idx - WINDOW - 2):idx + 1] if k == 'i']
                worst = 0; dist_after = 0; h = list(hist)
                j = labels[tgt]
                cnt = 0
                while j < len(items) and cnt < WINDOW:
                    k2, y = items[j]
                    if k2 == 'i':
                        dist = cnt
                        for p in reversed(hist):
                            if dist > WINDOW: break
                            kk = need(p, y)
                            if kk > dist: worst = max(worst, kk - dist)
                            dist += p.nops
                        cnt += y.nops
                        if y.op in ('s_branch', 's_endpgm'): break
                    j += 1
                while worst > 0:
                    k = min(worst, 16)
                    out.append(('i', Ins(f's_nop {k - 1}'))); worst -= k; inserted += 1
            out.append((kind, x))
        self.items = out
        return inserted
    def text(self):
        s = []
        for kind, x in self.items:
            if kind == 'i': s.append('    ' + x.text)
            elif kind == 'l': s.append(x + ':')
            else: s.append(x)
        return '\n'.join(s) + '\n'

def v(a, n=1): return f'v{a}' if n == 1 else f'v[{a}:{a + n - 1}]'
def s(a, n=1): return f's{a}' if n == 1 else f's[{a}:{a + n - 1}]'
def a(a_, n=1): return f'a{a_}' if n == 1 else f'a[{a_}:{a_ + n - 1}]'

def kernel_header(name):
    return f'.globl {name}\n.p2align 8\n.type {name},@function\n{name}:\n'

def kernel_desc(name, nvgpr, nsgpr=102, accum=None, total=None):
    if accum is None: accum = (nvgpr + 3) // 4 * 4
    if total is None: total = nvgpr
    return f'''.amdhsa_kernel {name}
  .amdhsa_next_free_vgpr {total}
  .amdhsa_next_free_sgpr {nsgpr}
  .amdhsa_accum_offset {accum}
  .amdhsa_group_segment_fixed_size 0
  .amdhsa_kernarg_size 136
  .amdhsa_user_sgpr_count 2
  .amdhsa_user_sgpr_kernarg_segment_ptr 1
  .amdhsa_system_sgpr_workgroup_id_x 1
.end_amdhsa_kernel
'''
```

```python
import sys, importlib
from asmlib import *
HEADER = open('sequential_preLN__ssm_conv_s4__mixer_channel_mlp__prompt.s.ref').read().split('; Override launch')[0]
def build(kernels, path, order=None, single=False):
    metas = {m['name']: m for _, m in kernels}
    order = order or [m['name'] for _, m in kernels]
    s = HEADER
    for n in order:
        m = metas[n]
        if single: s += f"; @launch grid=({m['grid']},1,1) block=({m['block']},1,1) lds={m['lds']}\n"
        else: s += f"; @launch kernel={n} grid=({m['grid']},1,1) block=({m['block']},1,1) lds={m['lds']}\n"
    s += '.amdgcn_target "amdgcn-amd-amdhsa--gfx950"\n.text\n'
    for t, m in kernels:
        s += kernel_header(m['name']) + t
    s += '.section .rodata,"a"\n.p2align 6\n'
    for t, m in kernels:
        s += '.p2align 6\n' + kernel_desc(m['name'], m['nvgpr'], m.get('nsgpr', 102), m.get('accum'), m.get('total'))
    open(path, 'w').write(s)
if __name__ == '__main__':
    import k1, k2, k3, k4
    ks = [k1.gen_k1(), k2.gen_k2(), k3.gen_k3(), k4.gen_k4()]
    build(ks, sys.argv[1] if len(sys.argv) > 1 else 'sequential_preLN__ssm_conv_s4__mixer_channel_mlp__prompt.s')
```

```python
from asmlib import *
WS_XT  = 0x0000000
WS_MU  = 0x0200000
WS_RS  = 0x0202000
WS_CS  = 0x0204000
WS_KR  = 0x0300000
WS_HT  = 0x0500000
WS_W1P = 0x0700000
WS_W2P = 0x0900000
WS_H1  = 0x0B00000
WS_HR  = 0x1200000
WS_A2  = 0x1400000
LOG2E = 0x3fb8aa3b
INV2PI = 0x3e22f983
EPS = 0x3727c5ac

def allsum64(A, regs, tmp):
    for pat in ('quad_perm:[1,0,3,2]', 'quad_perm:[2,3,0,1]', 'row_half_mirror', 'row_mirror'):
        for r in regs:
            A(f'v_add_f32_dpp v{r}, v{r}, v{r} {pat} row_mask:0xf bank_mask:0xf')
    for sw in ('v_permlane16_swap_b32', 'v_permlane32_swap_b32'):
        for r, t in zip(regs, tmp): A(f'v_mov_b32 v{t}, v{r}')
        for r, t in zip(regs, tmp): A(f'{sw} v{r}, v{t}')
        for r, t in zip(regs, tmp): A(f'v_add_f32 v{r}, v{r}, v{t}')

def cmul(A, D, X, Y, T):
    A(f'v_pk_mul_f32 v[{T}:{T+1}], v[{X}:{X+1}], v[{Y}:{Y+1}] op_sel_hi:[1,0]')
    A(f'v_pk_fma_f32 v[{D}:{D+1}], v[{X}:{X+1}], v[{Y}:{Y+1}], v[{T}:{T+1}] op_sel:[1,1,0] op_sel_hi:[0,1,1] neg_lo:[1,0,0]')

def round_bf16(A, d, s_):
    A(f'v_cvt_pk_bf16_f32 v{d}, v{s_}, v{s_}')
    A(f'v_lshlrev_b32 v{d}, 16, v{d}')

import os
STAMPS = os.environ.get('STAMPS', '0') == '1'
WS_STAMP = 0x3000000
_stamp_state = {'last': None, 'names': []}
STAMP_SEL = os.environ.get('STSEL', '')
def stamp(A, i):
    if not STAMPS: return
    st = _stamp_state
    name = str(i)
    if name == '0' or name == 'start': st['last'] = None; st['names'] = []
    sel = STAMP_SEL.split(',') if STAMP_SEL else None
    if name not in ('0', 'start'):
        if sel is None:
            if not name[0].isdigit(): return
        elif not any(name == p or (p.endswith('*') and name.startswith(p[:-1])) for p in sel): return
    k = len(st['names']); assert k < 18, st['names']
    st['names'].append(name)
    if st['last'] is not None:
        A(f's_waitcnt lgkmcnt(0)\n s_mov_b32 s{80 + st["last"][0]}, s{st["last"][1]}')
    tmp = 98 if (st['last'] is None or st['last'][1] == 100) else 100
    A(f's_{"memtime" if os.environ.get("STCLK") == "1" else "memrealtime"} s[{tmp}:{tmp + 1}]')
    st['last'] = (k, tmp)
def stamp_flush(A, kid, n, wsreg=20, wave_sgpr=22, tmpv=250):
    if not STAMPS: return
    st = _stamp_state
    n = len(st['names'])
    A(f's_waitcnt lgkmcnt(0)\n s_mov_b32 s{80 + st["last"][0]}, s{st["last"][1]}')
    A(f'''
    s_mov_b64 exec, 1
    s_lshl_b32 s78, s2, 9
    s_lshl_b32 s79, s{wave_sgpr}, 7
    s_add_u32 s78, s78, s79
    s_add_u32 s78, s78, {WS_STAMP + kid * 0x40000}
    v_mov_b32 v{tmpv}, s78
    ''')
    for i in range(n):
        A(f'v_mov_b32 v{tmpv + 1}, s{80 + i}')
        A(f'global_store_dword v{tmpv}, v{tmpv + 1}, s[{wsreg}:{wsreg + 1}] offset:{4 * i}')

class VM:
    def __init__(self): self.n = 0; self.marks = {}
    def issue(self, k=1): self.n += k
    def mark(self, name): self.marks[name] = self.n
    def wait(self, A, name):
        N = self.n - self.marks[name]
        assert N <= 63, N
        A(f's_waitcnt vmcnt({N})')
import struct
f2u = lambda x: struct.unpack('<I', struct.pack('<f', float(x)))[0]
GC1 = -2.0 * 0.7978845608028654 * 1.4426950408889634
GC2 = GC1 * 0.044715

WS_TAG = 0x0000000
WS_GR  = 0x0008000
WS_F2  = 0x0010000
WS_F3  = 0x0014000
SPIN_MAX = 200000

def interleave(A, main, fillers, first=0, step=None, last_frac=1.0):
    items = main.items
    n = sum(1 for k, _ in items if k == 'i')
    if not fillers:
        A.items.extend(items); return
    if step is None: step = max(1, int((n * last_frac - first) // len(fillers)))
    fi = 0; cnt = 0; cond = False
    for it in items:
        A.items.append(it)
        if it[0] == 'l': cond = False
        if it[0] == 'i':
            cnt += 1
            if it[1].op.startswith(('s_cbranch', 's_cmp')): cond = True
            if not cond and fi < len(fillers) and cnt >= first + fi * step + 1 and cnt > first:
                A(fillers[fi]); fi += 1
    while fi < len(fillers):
        A(fillers[fi]); fi += 1
WS_FW  = 0x0018000
WS_PS  = 0x0020000
```

```python
from common import *
def gen_k1(name='k1_kernel'):
    A = Asm()
    L_XS = 0; L_XY = 8192; WSZ = 17408; PITCH = 272; L_T = L_XY + 4 * WSZ; TSZ = 2816
    L_W = L_T + 2 * TSZ; L_CS = L_W + 16384
    LDS = L_CS + 256
    stamp(A, 0)
    A(f'''
    s_cmp_ge_u32 s2, 256
    s_cbranch_scc1 {name}_end
    s_load_dwordx16 s[4:19], s[0:1], 0
    s_load_dwordx2 s[20:21], s[0:1], 128
    s_load_dwordx2 s[36:37], s[0:1], 80
    s_load_dwordx2 s[38:39], s[0:1], 96
    v_lshrrev_b32 v1, 6, v0
    v_and_b32 v2, 63, v0
    v_readfirstlane_b32 s22, v1
    s_and_b32 s23, s2, 7
    s_lshl_b32 s23, s23, 8
    s_lshr_b32 s24, s2, 3
    s_lshl_b32 s24, s24, 3
    s_add_u32 s23, s23, s24
    s_lshl_b32 s25, s22, 1
    s_add_u32 s25, s25, s23
    s_lshl_b32 s26, s25, 10
    v_lshlrev_b32 v3, 4, v2
    v_add_u32 v3, s26, v3
    s_lshr_b32 s27, s22, 1
    s_lshl_b32 s28, s2, 1
    s_add_u32 s27, s27, s28
    s_and_b32 s28, s22, 1
    s_lshl_b32 s28, s28, 6
    s_lshl_b32 s29, s27, 7
    s_add_u32 s29, s29, s28
    v_add_u32 v4, s29, v2
    v_lshlrev_b32 v4, 1, v4
    s_lshl_b32 s30, s27, 1
    v_mov_b32 v5, s30
    s_waitcnt lgkmcnt(0)
    global_load_dwordx4 v[8:11], v3, s[4:5]
    global_load_dwordx4 v[12:15], v3, s[4:5] offset:1024
    global_load_ushort v16, v4, s[6:7]
    global_load_ushort v17, v4, s[8:9]
    global_load_ushort v18, v4, s[10:11]
    global_load_ushort v19, v4, s[12:13]
    global_load_ushort v20, v4, s[14:15]
    global_load_ushort v21, v4, s[16:17]
    global_load_ushort v22, v5, s[18:19]
    ''')
    A(f'''
    s_mov_b32 s44, 0
    s_cmp_lt_u32 s2, 128
    s_cbranch_scc0 {name}_wj2
    s_and_b32 s45, s2, 7
    s_lshr_b32 s46, s2, 5
    s_lshl_b32 s46, s46, 3
    s_add_u32 s45, s45, s46
    s_cmp_lt_u32 s45, 28
    s_cbranch_scc0 {name}_wjdone
    s_mov_b32 s44, 1
    s_bfe_u32 s46, s2, 0x20003
    s_lshl_b32 s45, s45, 2
    s_add_u32 s45, s45, s46
    v_lshrrev_b32 v50, 1, v2
    s_lshl_b32 s46, s22, 7
    v_add_u32 v50, s46, v50
    v_mul_u32_u24 v50, 3584, v50
    v_and_b32 v51, 1, v2
    v_lshlrev_b32 v51, 4, v51
    s_lshl_b32 s46, s45, 5
    v_add3_u32 v50, v50, v51, s46
    s_lshl_b32 s47, s22, 12
    s_add_u32 s47, s47, {L_W}
    ''')
    for i in range(4):
        A(f'''
        s_add_u32 m0, s47, {1024 * i}
        v_add_u32 v51, {32 * 3584 * i}, v50
        global_load_lds_dwordx4 v51, s[36:37]
        ''')
    A(f'''
    s_branch {name}_wjdone
    {name}_wj2:
    s_cmp_lt_u32 s2, 240
    s_cbranch_scc0 {name}_wjdone
    s_mov_b32 s44, 2
    s_sub_u32 s45, s2, 128
    s_and_b32 s46, s45, 7
    s_lshr_b32 s45, s45, 3
    s_lshl_b32 s45, s45, 2
    s_add_u32 s45, s45, s22
    v_lshrrev_b32 v50, 3, v2
    s_lshl_b32 s48, s45, 5
    v_add_u32 v50, s48, v50
    v_lshlrev_b32 v50, 10, v50
    v_and_b32 v51, 7, v2
    v_lshlrev_b32 v51, 4, v51
    s_lshl_b32 s48, s46, 7
    v_add3_u32 v50, v50, v51, s48
    s_lshl_b32 s47, s22, 12
    s_add_u32 s47, s47, {L_W}
    ''')
    for i in range(4):
        A(f'''
        s_add_u32 m0, s47, {1024 * i}
        v_add_u32 v51, {8 * 1024 * i}, v50
        global_load_lds_dwordx4 v51, s[38:39]
        ''')
    A(f'{name}_wjdone:')
    stamp(A, 1)
    A(f'''
    v_mov_b32 v6, 0
    v_lshlrev_b32 v7, 2, v0
    v_add_u32 v7, {L_T}, v7
    ''')
    for i in range(5): A(f'ds_write_b32 v7, v6 offset:{1024 * i}')
    A(f'''
    v_cmp_gt_u32 vcc, 128, v0
    s_and_saveexec_b64 s[32:33], vcc
    ds_write_b32 v7, v6 offset:5120
    s_mov_b64 exec, s[32:33]
    ''')
    A(f'''
    v_lshlrev_b32 v23, 3, v0
    v_sub_u32 v23, 2047, v23
    s_movk_i32 s30, 0x4280
    ''')
    for e in range(8):
        A(f'''
        v_subrev_u32 v32, {e}, v23
        v_cvt_f32_u32 v33, v32
        v_cvt_pk_bf16_f32 v33, v33, v33
        v_and_b32 v33, 0xffff, v33
        v_subrev_u32 v33, s30, v33
        v_cmp_gt_u32 vcc, 128, v32
        v_cndmask_b32 v33, v33, v32, vcc
        v_lshlrev_b32 v33, 2, v33
        v_add_u32 v{24 + e}, {L_T}, v33
        ''')
    A(f'''
    v_and_b32 v32, 31, v2
    v_lshrrev_b32 v33, 5, v2
    s_lshr_b32 s30, s22, 1
    s_mul_i32 s30, s30, {TSZ}
    s_add_u32 s30, s30, {L_T}
    v_cmp_eq_u32 vcc, 1, v33
    v_lshlrev_b32 v34, 5, v32
    v_lshlrev_b32 v35, 4, v33
    v_add3_u32 v40, v34, v35, s30
    ''')
    for r in range(4, 12):
        if r < 8:
            c0, s0 = 256 + (r - 4), 4
            c1, s1 = 384 + 64 * ((r - 4) >> 1) + ((r - 4) & 1), 2
        else:
            c0, s0 = 512 + 32 * (r - 8), 1
            c1, s1 = (640, 1) if r == 8 else (672, 1)
        A(f'''
        v_mul_u32_u24 v34, {4 * s0}, v32
        v_add_u32 v34, {4 * c0}, v34
        v_mul_u32_u24 v35, {4 * s1}, v32
        v_add_u32 v35, {4 * c1}, v35
        v_cndmask_b32 v34, v34, v35, vcc
        v_add_u32 v{37 + r}, s30, v34
        ''')
    A(f's_cmp_eq_u32 s44, 0\n s_cbranch_scc1 {name}_w7\n s_waitcnt vmcnt(11)\n s_branch {name}_w7d\n {name}_w7:\n s_waitcnt vmcnt(7)\n {name}_w7d:')
    stamp(A, 2)
    for row in range(2):
        for k in range(4):
            src = 8 + 4 * row + k
            A(f'v_lshlrev_b32 v{64 + 8 * row + 2 * k}, 16, v{src}')
            A(f'v_and_b32 v{65 + 8 * row + 2 * k}, 0xffff0000, v{src}')
    A(f'''
    s_lshl_b32 s30, s22, 11
    v_lshlrev_b32 v34, 4, v2
    v_add_u32 v34, s30, v34
    ds_write_b128 v34, v[8:11]
    ds_write_b128 v34, v[12:15] offset:1024
    ''')
    for row in range(2):
        b = 64 + 8 * row
        A(f'v_add_f32 v{80 + row}, v{b}, v{b + 1}')
        for k in range(2, 8): A(f'v_add_f32 v{80 + row}, v{80 + row}, v{b + k}')
    allsum64(A, [80, 81], [82, 83])
    for row in range(2): A(f'v_mul_f32 v{80 + row}, 0x3b000000, v{80 + row}')
    for row in range(2):
        b = 64 + 8 * row
        for k in range(8): A(f'v_sub_f32 v{b + k}, v{b + k}, v{80 + row}')
        A(f'v_mul_f32 v{84 + row}, v{b}, v{b}')
        for k in range(1, 8): A(f'v_fmac_f32 v{84 + row}, v{b + k}, v{b + k}')
    allsum64(A, [84, 85], [82, 83])
    for row in range(2):
        A(f'v_mul_f32 v{84 + row}, 0x3b000000, v{84 + row}')
        round_bf16(A, 84 + row, 84 + row)
        A(f'v_add_f32 v{84 + row}, {EPS:#x}, v{84 + row}')
        round_bf16(A, 84 + row, 84 + row)
        A(f'v_sqrt_f32 v{84 + row}, v{84 + row}')
        round_bf16(A, 84 + row, 84 + row)
        A(f'v_rcp_f32 v{84 + row}, v{84 + row}')
        round_bf16(A, 80 + row, 80 + row)
    A(f'''
    s_lshl_b32 s30, s25, 2
    v_mov_b32 v34, s30
    v_add_u32 v35, {WS_RS - WS_MU}, v34
    s_add_u32 s34, s20, {WS_MU}
    s_addc_u32 s35, s21, 0
    v_cmp_eq_u32 vcc, 0, v2
    s_and_saveexec_b64 s[32:33], vcc
    global_store_dwordx2 v34, v[80:81], s[34:35]
    global_store_dwordx2 v35, v[84:85], s[34:35]
    s_mov_b64 exec, s[32:33]
    s_waitcnt lgkmcnt(0)
    s_barrier
    v_lshlrev_b32 v34, 2, v0
    ''')
    for r in range(8): A(f'ds_read_b32 v{64 + r}, v34 offset:{L_XS + 1024 * r}')
    A('s_waitcnt lgkmcnt(0)')
    A('s_mov_b32 s30, 0x05040100\n s_mov_b32 s31, 0x07060302')
    for k in range(4):
        A(f'v_perm_b32 v{72 + k}, v{65 + 2 * k}, v{64 + 2 * k}, s30')
        A(f'v_perm_b32 v{76 + k}, v{65 + 2 * k}, v{64 + 2 * k}, s31')
    A(f'''
    v_lshlrev_b32 v34, 13, v0
    s_lshl_b32 s30, s23, 1
    v_add_u32 v34, s30, v34
    global_store_dwordx4 v34, v[72:75], s[20:21]
    v_add_u32 v35, 4096, v34
    global_store_dwordx4 v35, v[76:79], s[20:21]
    ''')
    A(f'''
    s_waitcnt vmcnt(4)
    s_cmp_eq_u32 s44, 0
    s_cbranch_scc1 {name}_wpdone
    v_bfe_u32 v50, v2, 2, 2
    v_lshrrev_b32 v51, 4, v2
    v_and_b32 v52, 3, v2
    v_lshlrev_b32 v52, 3, v52
    v_lshlrev_b32 v53, 4, v2
    s_cmp_eq_u32 s44, 2
    s_cbranch_scc1 {name}_wp2
    v_lshl_add_u32 v50, v51, 3, v50
    v_lshlrev_b32 v50, 5, v50
    v_add3_u32 v50, v50, v52, s47
    s_lshl_b32 s48, s45, 14
    s_lshl_b32 s49, s22, 12
    s_add_u32 s48, s48, s49
    s_add_u32 s48, s48, {WS_W1P}
    v_add_u32 v53, s48, v53
    ''')
    for i in range(4):
        A(f'ds_read_b64_tr_b16 v[{64 + 4 * i}:{65 + 4 * i}], v50 offset:{1024 * i}')
        A(f'ds_read_b64_tr_b16 v[{66 + 4 * i}:{67 + 4 * i}], v50 offset:{1024 * i + 128}')
    A('v_mov_b32 v54, 0x3f803f80\n v_mov_b32 v55, 0\n s_waitcnt lgkmcnt(0)')
    for i in range(4):
        A(f'global_store_dwordx4 v53, v[{64 + 4 * i}:{67 + 4 * i}], s[20:21] offset:{1024 * i}')
        for k in range(4): A(f'v_dot2_f32_bf16 v55, v{64 + 4 * i + k}, v54, v55')
    for sw in ('v_permlane16_swap_b32', 'v_permlane32_swap_b32'):
        A(f'v_mov_b32 v56, v55\n {sw} v55, v56\n v_add_f32 v55, v55, v56')
    A(f'''
    v_and_b32 v56, 15, v2
    v_lshlrev_b32 v56, 2, v56
    s_lshl_b32 s48, s22, 6
    s_add_u32 s48, s48, {L_CS}
    v_add_u32 v56, s48, v56
    ds_write_b32 v56, v55
    s_branch {name}_wpdone
    {name}_wp2:
    v_lshl_add_u32 v50, v51, 2, v50
    v_lshlrev_b32 v50, 7, v50
    v_add3_u32 v50, v50, v52, s47
    s_mul_i32 s48, s46, {4 * 56}
    s_add_u32 s48, s48, s45
    s_lshl_b32 s48, s48, 10
    s_add_u32 s48, s48, {WS_W2P}
    v_add_u32 v53, s48, v53
    ''')
    for i in range(4):
        A(f'ds_read_b64_tr_b16 v[{64 + 4 * i}:{65 + 4 * i}], v50 offset:{32 * i}')
        A(f'ds_read_b64_tr_b16 v[{66 + 4 * i}:{67 + 4 * i}], v50 offset:{32 * i + 2048}')
    A('s_waitcnt lgkmcnt(0)')
    for i in range(4):
        A(f'v_add_u32 v54, {56 * 1024 * i}, v53')
        A(f'global_store_dwordx4 v54, v[{64 + 4 * i}:{67 + 4 * i}], s[20:21]')
    A(f'{name}_wpdone:')
    stamp(A, 3)
    A('s_waitcnt vmcnt(0)')
    stamp(A, 4)
    for i in range(16, 23): A(f'v_lshlrev_b32 v{i}, 16, v{i}')
    A(f'''
    v_mul_f32 v22, {LOG2E:#x}, v22
    v_exp_f32 v22, v22
    ''')
    round_bf16(A, 22, 22)
    A(f'''
    v_mul_f32 v16, v22, v16
    v_mul_f32 v17, v22, v17
    v_mul_f32 v18, v22, v18
    v_mul_f32 v19, v22, v19
    v_mul_f32 v16, {LOG2E:#x}, v16
    v_mul_f32 v17, {INV2PI:#x}, v17
    ''')
    cmul(A, 50, 20, 18, 52)
    def P(dst, p):
        A(f'''
        v_mul_f32 v54, {float(p)!r}, v16
        v_mul_f32 v55, {float(p)!r}, v17
        ''' if p in (1, 2, 4) else f'''
        v_mul_f32 v54, {hex(f2u(p))}, v16
        v_mul_f32 v55, {hex(f2u(p))}, v17
        ''')
        A(f'''
        v_exp_f32 v54, v54
        v_fract_f32 v55, v55
        v_cos_f32 v{dst}, v55
        v_sin_f32 v{dst + 1}, v55
        v_pk_mul_f32 v[{dst}:{dst + 1}], v[{dst}:{dst + 1}], v[54:55] op_sel_hi:[1,0]
        ''')
    import struct
    f2u = lambda x: struct.unpack('<I', struct.pack('<f', float(x)))[0]
    Z1, Z2, Z4, Z8, Z32, Z256 = 56, 58, 60, 62, 64, 66
    P(Z1, 1); P(Z8, 8); P(Z32, 32); P(Z256, 256)
    cmul(A, Z2, Z1, Z1, 52)
    cmul(A, Z4, Z2, Z2, 52)
    A(f'''
    s_mul_i32 s30, s22, {WSZ}
    s_add_u32 s30, s30, {L_XY}
    v_lshlrev_b32 v34, 2, v2
    v_add_u32 v34, s30, v34
    ''')
    def putX(row, reg):
        A(f'v_cvt_pk_bf16_f32 v36, v{reg}, v{reg + 1}')
        A(f'ds_write_b32 v34, v36 offset:{row * PITCH}')
    def putY(row, reg):
        A(f'v_cvt_pk_bf16_f32 v37, v{reg}, -v{reg + 1}')
        A(f'ds_write_b32 v34, v37 offset:{8704 + row * PITCH}')
    Y = [68, 70, 72, 74]
    A('v_mov_b32 v68, 1.0\n v_mov_b32 v69, 0\n v_mov_b32 v70, v62\n v_mov_b32 v71, v63')
    cmul(A, 72, Z8, Z8, 52)
    cmul(A, 74, 72, Z8, 52)
    TM = [76, 78, 80, 82]
    for it in range(8):
        for c in range(4): putY(4 * it + c, Y[c])
        if it < 7:
            for c in range(4):
                A(f'v_pk_mul_f32 v[{TM[c]}:{TM[c]+1}], v[{Y[c]}:{Y[c]+1}], v[{Z32}:{Z32+1}] op_sel_hi:[1,0]')
            for c in range(4):
                A(f'v_pk_fma_f32 v[{Y[c]}:{Y[c]+1}], v[{Y[c]}:{Y[c]+1}], v[{Z32}:{Z32+1}], v[{TM[c]}:{TM[c]+1}] op_sel:[1,1,0] op_sel_hi:[0,1,1] neg_lo:[1,0,0]')
    Wc = 84
    A('v_mov_b32 v84, v50\n v_mov_b32 v85, v51')
    putX(0, 50)
    for p in range(1, 8):
        cmul(A, 50, 50, Z1, 52); putX(p, 50)
    cmul(A, Wc, Wc, Z256, 52); putX(8, Wc)
    cmul(A, 50, Wc, Z2, 52); putX(9, 50)
    cmul(A, 50, 50, Z2, 52); putX(10, 50)
    cmul(A, 50, 50, Z2, 52); putX(11, 50)
    cmul(A, Wc, Wc, Z256, 52); putX(12, Wc)
    cmul(A, 50, Wc, Z4, 52); putX(13, 50)
    cmul(A, Wc, Wc, Z256, 52); putX(14, Wc)
    cmul(A, 50, Wc, Z4, 52); putX(15, 50)
    for row in range(16, 21):
        cmul(A, Wc, Wc, Z256, 52); putX(row, Wc)
    stamp(A, 5)
    A(f'''
    v_and_b32 v32, 31, v2
    v_lshrrev_b32 v33, 5, v2
    v_mul_u32_u24 v32, {PITCH}, v32
    v_lshlrev_b32 v33, 4, v33
    v_add3_u32 v35, v32, v33, s30
    s_waitcnt lgkmcnt(0)
    ''')
    for t in range(8):
        A(f'ds_read_b128 v[{88 + 8 * (t % 4)}:{91 + 8 * (t % 4)}], v35 offset:{32 * t}')
        A(f'ds_read_b128 v[{92 + 8 * (t % 4)}:{95 + 8 * (t % 4)}], v35 offset:{8704 + 32 * t}')
        if t % 4 == 3:
            A('s_waitcnt lgkmcnt(0)')
            for tt in range(t - 3, t + 1):
                b = 88 + 8 * (tt % 4)
                cin = '0' if tt == 0 else 'v[120:135]'
                A(f'v_mfma_f32_32x32x16_bf16 v[120:135], v[{b}:{b+3}], v[{b+4}:{b+7}], {cin}')
    A('s_waitcnt lgkmcnt(0)')
    A('s_barrier')
    A(f'''
    s_cmp_eq_u32 s44, 1
    s_cbranch_scc0 {name}_csdone
    s_cmp_eq_u32 s22, 0
    s_cbranch_scc0 {name}_csdone
    v_and_b32 v56, 15, v2
    v_lshlrev_b32 v56, 2, v56
    v_add_u32 v57, {L_CS}, v56
    ds_read_b32 v50, v57
    ds_read_b32 v51, v57 offset:64
    ds_read_b32 v52, v57 offset:128
    ds_read_b32 v53, v57 offset:192
    s_lshl_b32 s48, s45, 6
    s_add_u32 s48, s48, {WS_CS}
    v_add_u32 v56, s48, v56
    s_waitcnt lgkmcnt(0)
    v_add_f32 v50, v50, v51
    v_add_f32 v52, v52, v53
    v_add_f32 v50, v50, v52
    v_cmp_gt_u32 vcc, 16, v2
    s_and_saveexec_b64 s[32:33], vcc
    global_store_dword v56, v50, s[20:21]
    s_mov_b64 exec, s[32:33]
    {name}_csdone:
    ''')
    for r in range(4): A(f'ds_add_f32 v40, v{120 + r} offset:{4 * r}')
    for r in range(4, 12): A(f'ds_add_f32 v{37 + r}, v{120 + r}')
    A('s_waitcnt lgkmcnt(0)\n s_barrier')
    stamp(A, 6)
    for ch in range(2):
        for e in range(8): A(f'ds_read_b32 v{64 + 8 * ch + e}, v{24 + e} offset:{TSZ * ch}')
    A('s_waitcnt lgkmcnt(0)')
    for ch in range(2):
        for k in range(4): A(f'v_cvt_pk_bf16_f32 v{88 + 4 * ch + k}, v{64 + 8 * ch + 2 * k}, v{65 + 8 * ch + 2 * k}')
    A(f'''
    s_lshl_b32 s30, s2, 13
    v_lshlrev_b32 v34, 4, v0
    v_add_u32 v34, s30, v34
    s_add_u32 s34, s20, {WS_KR}
    s_addc_u32 s35, s21, 0
    global_store_dwordx4 v34, v[88:91], s[34:35]
    v_add_u32 v35, 4096, v34
    global_store_dwordx4 v35, v[92:95], s[34:35]
    ''')
    if STAMPS: A('s_waitcnt vmcnt(0)')
    stamp(A, 7)
    stamp_flush(A, 1, 8, tmpv=100)
    A(f'''
    {name}_end:
    s_endpgm
    ''')
    n = A.resolve()
    return A.text(), dict(name=name, grid=256, block=256, lds=LDS, nvgpr=136)
```

```python
from common import *
def gen_k2(name='k2_kernel'):
    A = Asm()
    USZ = 4608; XO = 4608; R0 = XO + 4096; R1 = R0 + 4160; CH = R1 + 4160
    RED = 2 * CH
    LDS = RED + 4 * 4096
    stamp(A, 0)
    A(f'''
    s_cmp_ge_u32 s2, 256
    s_cbranch_scc1 {name}_end
    s_load_dwordx2 s[4:5], s[0:1], 64
    s_load_dwordx2 s[20:21], s[0:1], 128
    v_lshrrev_b32 v1, 6, v0
    v_and_b32 v2, 63, v0
    v_readfirstlane_b32 s22, v1
    s_lshl_b32 s23, s2, 13
    v_lshlrev_b32 v3, 4, v0
    v_add_u32 v4, s23, v3
    v_lshlrev_b32 v5, 5, v0
    s_waitcnt lgkmcnt(0)
    s_add_u32 s24, s20, {WS_MU}
    s_addc_u32 s25, s21, 0
    s_add_u32 s26, s20, {WS_KR}
    s_addc_u32 s27, s21, 0
    s_add_u32 s26, s26, s23
    s_addc_u32 s27, s27, 0
    s_mov_b32 s36, s26
    s_mov_b32 s37, s27
    s_mov_b32 s38, 4096
    s_mov_b32 s39, 0x20000
    s_add_u32 s40, s26, 4096
    s_addc_u32 s41, s27, 0
    s_mov_b32 s42, 4096
    s_mov_b32 s43, 0x20000
    v_add_u32 v6, 4096, v4
    global_load_dwordx4 v[8:11], v4, s[20:21]
    global_load_dwordx4 v[12:15], v6, s[20:21]
    global_load_dwordx4 v[16:19], v5, s[24:25]
    global_load_dwordx4 v[20:23], v5, s[24:25] offset:16
    v_add_u32 v7, {WS_RS - WS_MU}, v5
    global_load_dwordx4 v[24:27], v7, s[24:25]
    global_load_dwordx4 v[28:31], v7, s[24:25] offset:16
    buffer_load_dwordx4 v[32:35], v3, s[36:39], 0 offen
    buffer_load_dwordx4 v[36:39], v3, s[36:39], 0 offen offset:4
    buffer_load_dwordx4 v[40:43], v3, s[40:43], 0 offen
    buffer_load_dwordx4 v[44:47], v3, s[40:43], 0 offen offset:4
    s_lshr_b32 s28, s22, 1
    s_lshl_b32 s29, s2, 1
    s_add_u32 s29, s29, s28
    s_lshl_b32 s29, s29, 1
    v_mov_b32 v48, s29
    global_load_ushort v49, v48, s[4:5]
    ''')
    stamp(A, 1)
    A(f'''
    v_mov_b32 v50, 0
    v_mov_b32 v51, 0
    v_mov_b32 v52, 0
    v_mov_b32 v53, 0
    v_cmp_gt_u32 vcc, 30, v0
    s_and_saveexec_b64 s[32:33], vcc
    ds_write_b128 v3, v[50:53]
    ds_write_b128 v3, v[50:53] offset:{CH}
    s_mov_b64 exec, s[32:33]
    v_cmp_gt_u32 vcc, 2, v0
    s_and_saveexec_b64 s[32:33], vcc
    ds_write_b128 v3, v[50:53] offset:{R0 + 2 * 2064}
    ds_write_b128 v3, v[50:53] offset:{R1 + 2 * 2064}
    ds_write_b128 v3, v[50:53] offset:{CH + R0 + 2 * 2064}
    ds_write_b128 v3, v[50:53] offset:{CH + R1 + 2 * 2064}
    s_mov_b64 exec, s[32:33]
    ''')
    A('s_waitcnt vmcnt(1)')
    stamp(A, 2)
    for ch in range(2):
        a_ = 32 + 8 * ch; b_ = a_ + 4
        A(f'ds_write_b128 v3, v[{a_}:{a_+3}] offset:{ch * CH + R0 + 32}')
        for k in range(4): A(f'v_alignbit_b32 v{b_ + k}, v{b_ + k}, v{a_ + k}, 16')
        A(f'ds_write_b128 v3, v[{b_}:{b_+3}] offset:{ch * CH + R1 + 32}')
    for ch in range(2):
        xs = 8 + 4 * ch
        A(f'ds_write_b128 v3, v[{xs}:{xs+3}] offset:{ch * CH + XO}')
        for k in range(4):
            lo, hi = 56 + 2 * k, 57 + 2 * k
            A(f'v_lshlrev_b32 v{lo}, 16, v{xs + k}')
            A(f'v_and_b32 v{hi}, 0xffff0000, v{xs + k}')
            A(f'v_pk_add_f32 v[{lo}:{hi}], v[{lo}:{hi}], v[{16 + 2 * k}:{17 + 2 * k}] neg_lo:[0,1] neg_hi:[0,1]')
            A(f'v_cvt_pk_bf16_f32 v{lo}, v{lo}, v{hi}')
            A(f'v_and_b32 v{hi}, 0xffff0000, v{lo}')
            A(f'v_lshlrev_b32 v{lo}, 16, v{lo}')
            A(f'v_pk_mul_f32 v[{lo}:{hi}], v[{lo}:{hi}], v[{24 + 2 * k}:{25 + 2 * k}]')
            A(f'v_cvt_pk_bf16_f32 v{64 + k}, v{lo}, v{hi}')
        A(f'ds_write_b128 v3, v[64:67] offset:{ch * CH + 480}')
    A(f'''
    s_mul_i32 s30, s28, {CH}
    s_and_b32 s31, s22, 1
    v_and_b32 v54, 15, v2
    v_lshrrev_b32 v55, 4, v2
    v_lshlrev_b32 v56, 5, v54
    v_lshlrev_b32 v57, 4, v55
    v_add_u32 v56, v56, v57
    s_lshl_b32 s33, s31, 8
    s_sub_u32 s34, s30, s33
    s_add_u32 s34, s34, 448
    v_add_u32 v60, s34, v56
    v_lshrrev_b32 v58, 1, v54
    v_lshlrev_b32 v58, 2, v58
    v_sub_u32 v58, v57, v58
    v_and_b32 v59, 1, v54
    v_sub_u32 v59, 1, v59
    v_mul_u32_u24 v59, 4160, v59
    v_add_u32 v58, v58, v59
    s_sub_u32 s34, s30, s33
    s_add_u32 s34, s34, {R0 + 4092}
    v_add_u32 v58, s34, v58
    ''')
    for k in range(4): A(f'v_subrev_u32 v{61 + k}, {512 * (2 * k + 1)}, v58')
    A('s_waitcnt lgkmcnt(0)\n s_barrier')
    stamp(A, 3)
    G = [72, 136]; F = [104, 168]; ACC = 200
    def loads(set_):
        for t in range(8):
            A(f'ds_read_b128 v[{G[set_] + 4 * t}:{G[set_] + 4 * t + 3}], v60 offset:{512 * t}')
        for j in range(8):
            k = j >> 1; o = 0 if (j & 1) else 128
            A(f'ds_read2_b32 v[{F[set_] + 4 * j}:{F[set_] + 4 * j + 1}], v{61 + k} offset0:{o} offset1:{o + 1}')
            A(f'ds_read2_b32 v[{F[set_] + 4 * j + 2}:{F[set_] + 4 * j + 3}], v{61 + k} offset0:{o + 2} offset1:{o + 3}')
    def advance():
        A('v_subrev_u32 v60, 64, v60')
        for k in range(4): A(f'v_subrev_u32 v{61 + k}, 64, v{61 + k}')
    def mfmas(set_, first):
        for j in range(8):
            for t in range(8 - j):
                acc = ACC + 4 * (t + j)
                cin = '0' if (first and j == 0) else f'v[{acc}:{acc+3}]'
                A(f'v_mfma_f32_16x16x32_bf16 v[{acc}:{acc+3}], v[{F[set_] + 4 * j}:{F[set_] + 4 * j + 3}], v[{G[set_] + 4 * t}:{G[set_] + 4 * t + 3}], {cin}')
    loads(0); advance()
    for it in range(4):
        A('s_waitcnt lgkmcnt(0)')
        if it < 3:
            loads((it + 1) & 1); advance()
        mfmas(it & 1, it == 0)
    stamp(A, 4)
    A(f'''
    s_lshl_b32 s33, s22, 12
    s_add_u32 s33, s33, {RED}
    v_lshlrev_b32 v68, 4, v2
    v_add_u32 v69, s33, v68
    s_xor_b32 s34, s33, 4096
    s_xor_b32 s35, s22, 1
    s_lshl_b32 s35, s35, 12
    s_add_u32 s35, s35, {RED}
    v_add_u32 v70, s35, v68
    s_cmp_eq_u32 s31, 0
    s_cbranch_scc0 {name}_odd
    ''')
    for t in range(4): A(f'ds_write_b128 v69, v[{ACC + 16 + 4 * t}:{ACC + 16 + 4 * t + 3}] offset:{1024 * t}')
    A(f's_branch {name}_join\n {name}_odd:')
    for t in range(4): A(f'ds_write_b128 v69, v[{ACC + 4 * t}:{ACC + 4 * t + 3}] offset:{1024 * t}')
    for t in range(16): A(f'v_mov_b32 v{ACC + t}, v{ACC + 16 + t}')
    A(f'{name}_join:\n s_waitcnt lgkmcnt(0)\n s_barrier')
    for t in range(4): A(f'ds_read_b128 v[{72 + 4 * t}:{72 + 4 * t + 3}], v70 offset:{1024 * t}')
    A(f'''
    v_lshlrev_b32 v56, 5, v54
    v_lshlrev_b32 v57, 3, v55
    v_add_u32 v56, v56, v57
    s_lshl_b32 s33, s31, 11
    s_add_u32 s34, s33, s30
    v_add_u32 v57, s34, v56
    ''')
    for t in range(4):
        A(f'ds_read_b64 v[{88 + 2 * t}:{89 + 2 * t}], v57 offset:{480 + 512 * t}')
        A(f'ds_read_b64 v[{96 + 2 * t}:{97 + 2 * t}], v57 offset:{XO + 512 * t}')
    A(f'''
    s_waitcnt vmcnt(0)
    v_lshlrev_b32 v49, 16, v49
    s_lshl_b32 s34, s2, 13
    s_lshl_b32 s35, s28, 12
    s_add_u32 s34, s34, s35
    s_add_u32 s34, s34, s33
    v_add_u32 v58, s34, v56
    s_add_u32 s24, s20, {WS_HT}
    s_addc_u32 s25, s21, 0
    s_waitcnt lgkmcnt(0)
    ''')
    for t in range(4):
        for pr in range(2):
            y0, y1 = ACC + 4 * t + 2 * pr, ACC + 4 * t + 2 * pr + 1
            p0, p1 = 72 + 4 * t + 2 * pr, 72 + 4 * t + 2 * pr + 1
            u = 88 + 2 * t + pr; x = 96 + 2 * t + pr
            A(f'''
            v_pk_add_f32 v[{y0}:{y1}], v[{y0}:{y1}], v[{p0}:{p1}]
            v_cvt_pk_bf16_f32 v{y0}, v{y0}, v{y1}
            v_and_b32 v{y1}, 0xffff0000, v{y0}
            v_lshlrev_b32 v{y0}, 16, v{y0}
            v_lshlrev_b32 v104, 16, v{u}
            v_and_b32 v105, 0xffff0000, v{u}
            v_pk_mul_f32 v[104:105], v[104:105], v[48:49] op_sel:[0,1] op_sel_hi:[1,1]
            v_cvt_pk_bf16_f32 v104, v104, v105
            v_and_b32 v105, 0xffff0000, v104
            v_lshlrev_b32 v104, 16, v104
            v_pk_add_f32 v[{y0}:{y1}], v[{y0}:{y1}], v[104:105]
            v_cvt_pk_bf16_f32 v{y0}, v{y0}, v{y1}
            v_and_b32 v{y1}, 0xffff0000, v{y0}
            v_lshlrev_b32 v{y0}, 16, v{y0}
            v_lshlrev_b32 v104, 16, v{x}
            v_and_b32 v105, 0xffff0000, v{x}
            v_pk_add_f32 v[{y0}:{y1}], v[{y0}:{y1}], v[104:105]
            v_cvt_pk_bf16_f32 v{108 + 2 * t + pr}, v{y0}, v{y1}
            ''')
        A(f'global_store_dwordx2 v58, v[{108 + 2 * t}:{109 + 2 * t}], s[24:25] offset:{512 * t}')
    stamp(A, 5)
    if STAMPS: A('s_waitcnt vmcnt(0)')
    stamp(A, 6)
    stamp_flush(A, 2, 7, tmpv=100)
    A(f'{name}_end:\n s_endpgm')
    A.resolve()
    return A.text(), dict(name=name, grid=256, block=256, lds=LDS, nvgpr=232)
```

```python
from common import *
def gen_k3(name='k3_kernel', kid=4):
    A = Asm(); vm = VM()
    W1S = 0; HS = 114688; LDS = HS + 49152
    stamp(A, 0)
    A(f'''
    s_cmp_ge_u32 s2, 256
    s_cbranch_scc1 {name}_end
    s_load_dwordx2 s[4:5], s[0:1], 88
    s_load_dwordx2 s[20:21], s[0:1], 128
    v_lshrrev_b32 v1, 6, v0
    v_and_b32 v2, 63, v0
    v_readfirstlane_b32 s22, v1
    v_and_b32 v3, 15, v2
    v_lshrrev_b32 v4, 4, v2
    s_and_b32 s23, s2, 7
    s_lshl_b32 s23, s23, 1
    s_bfe_u32 s24, s2, 0x10003
    s_add_u32 s23, s23, s24
    s_lshr_b32 s24, s2, 4
    s_mul_i32 s25, s24, {7 * 16384}
    s_add_u32 s25, s25, {WS_W1P}
    v_lshlrev_b32 v5, 4, v2
    v_add_u32 v6, s25, v5
    v_lshrrev_b32 v7, 2, v2
    v_lshlrev_b32 v7, 12, v7
    v_and_b32 v8, 3, v2
    v_lshrrev_b32 v9, 5, v2
    v_lshlrev_b32 v9, 1, v9
    v_xor_b32 v8, v8, v9
    v_lshlrev_b32 v8, 4, v8
    s_lshl_b32 s26, s23, 8
    s_lshl_b32 s27, s22, 6
    s_add_u32 s26, s26, s27
    s_add_u32 s26, s26, {WS_HT}
    v_add3_u32 v7, v7, v8, s26
    s_mul_i32 s28, s22, 12288
    s_add_u32 s28, s28, {HS}
    s_waitcnt lgkmcnt(0)
    ''')
    stamp(A, 1)
    def wdma(c):
        for i in range(7):
            A(f'''
            s_add_u32 s30, s22, {28 * c + 4 * i}
            s_mul_hi_u32 s31, s30, {(2**32 + 6) // 7}
            s_mul_i32 s33, s31, 7
            s_sub_u32 s33, s30, s33
            s_lshl_b32 s33, s33, 4
            s_add_u32 s33, s33, s31
            s_lshl_b32 s33, s33, 10
            s_mov_b32 m0, s33
            v_add_u32 v10, s33, v6
            global_load_lds_dwordx4 v10, s[20:21]
            ''')
            vm.issue()
        vm.mark(f'W{c}')
    def hdma(st):
        slot = st % 3
        for i in range(4):
            A(f'''
            s_add_u32 m0, s28, {slot * 4096 + i * 1024}
            v_add_u32 v10, {(64 * st + 16 * i) * 4096}, v7
            global_load_lds_dwordx4 v10, s[20:21]
            ''')
            vm.issue()
        vm.mark(f'H{st}')
    wdma(0); hdma(0); hdma(1); hdma(2); wdma(1); wdma(2); wdma(3)
    A(f'''
    s_mul_i32 s30, s24, 112
    v_lshlrev_b32 v10, 2, v4
    v_add_u32 v10, s30, v10
    v_lshlrev_b32 v11, 2, v10
    v_add_u32 v11, {WS_CS}, v11
    v_lshlrev_b32 v10, 1, v10
    ''')
    for i in range(7):
        A(f'global_load_dwordx4 v[{200 + 4 * i}:{203 + 4 * i}], v11, s[20:21] offset:{64 * i}'); vm.issue()
        A(f'global_load_dwordx2 v[{228 + 2 * i}:{229 + 2 * i}], v10, s[4:5] offset:{32 * i}'); vm.issue()
    vm.mark('E')
    A(f'''
    v_add_u32 v12, {W1S}, v5
    v_add_u32 v13, {W1S + 65536}, v5
    v_bfe_u32 v14, v2, 2, 2
    v_lshlrev_b32 v15, 3, v4
    v_add_u32 v14, v14, v15
    v_lshlrev_b32 v14, 6, v14
    v_and_b32 v15, 3, v2
    v_lshlrev_b32 v15, 3, v15
    v_add3_u32 v14, v14, v15, s28
    v_and_b32 v15, 1, v4
    v_lshlrev_b32 v15, 5, v15
    v_add_u32 v16, v14, v15
    v_xor_b32 v15, 32, v15
    v_add_u32 v17, v14, v15
    v_mov_b32 v18, 0x3f803f80
    v_mov_b32 v19, 0x3f803f80
    v_mov_b32 v20, 0x3f803f80
    v_mov_b32 v21, 0x3f803f80
    ''')
    AF = [24, 60]; BF = [52, 88]; ACC = 96; SUM = 152; GR = 160
    def reads(s_):
        st = s_ & 1; out = []
        for ft in range(7):
            base, off = (12, ft * 16384) if ft < 4 else (13, (ft - 4) * 16384)
            out.append(f'ds_read_b128 v[{AF[st] + 4 * ft}:{AF[st] + 4 * ft + 3}], v{base} offset:{off + s_ * 1024}')
        o = ((s_ // 2) % 3) * 4096 + (s_ & 1) * 2048
        for m in range(2):
            out.append(f'ds_read_b64_tr_b16 v[{BF[st] + 4 * m}:{BF[st] + 4 * m + 1}], v{16 + m} offset:{o}')
            out.append(f'ds_read_b64_tr_b16 v[{BF[st] + 4 * m + 2}:{BF[st] + 4 * m + 3}], v{16 + m} offset:{o + 256}')
        return out[7:] + out[:7]
    vm.wait(A, 'H0'); A('s_barrier')
    stamp(A, 2)
    for r in reads(0): A(r)
    for s_ in range(16):
        st = s_ & 1
        A('s_waitcnt lgkmcnt(0)')
        if s_ % 2 == 1 and (s_ - 1) // 2 + 3 < 8: hdma((s_ - 1) // 2 + 3)
        if s_ < 15:
            n = s_ + 1
            if n % 4 == 0: vm.wait(A, f'W{n // 4}') if False else None
            if n % 2 == 0 or n % 4 == 0:
                names = [f'H{n // 2}'] + ([f'W{n // 4}'] if n % 4 == 0 else [])
                latest = max(names, key=lambda x: vm.marks[x])
                vm.wait(A, latest)
                if n % 4 == 0: A('s_barrier')
            rd = reads(n)
        else: rd = []
        ms = []
        for m in range(2):
            b = BF[st] + 4 * m
            c1 = '0' if s_ == 0 else f'v[{SUM + 4 * m}:{SUM + 4 * m + 3}]'
            c2 = '0' if s_ == 0 else f'v[{GR + 4 * m}:{GR + 4 * m + 3}]'
            for ft in range(7):
                acc = ACC + 4 * (2 * ft + m)
                cin = '0' if s_ == 0 else f'v[{acc}:{acc+3}]'
                ms.append(f'v_mfma_f32_16x16x32_bf16 v[{acc}:{acc+3}], v[{AF[st] + 4 * ft}:{AF[st] + 4 * ft + 3}], v[{b}:{b+3}], {cin}')
            ms.append(f'v_mfma_f32_16x16x32_bf16 v[{SUM + 4 * m}:{SUM + 4 * m + 3}], v[18:21], v[{b}:{b+3}], {c1}')
            ms.append(f'v_mfma_f32_16x16x32_bf16 v[{GR + 4 * m}:{GR + 4 * m + 3}], v[{b}:{b+3}], v[{b}:{b+3}], {c2}')
        for i, mi in enumerate(ms):
            A(mi)
            if i < len(rd): A(rd[i])
    stamp(A, 3)
    for r in range(4):
        A(f'v_lshl_add_u32 v24, v4, 2, {r}\n v_cmp_eq_u32 vcc, v24, v3\n v_cndmask_b32 v{28 + r}, 0, 1.0, vcc')
    for m in range(2):
        g_ = GR + 4 * m
        A(f'v_mul_f32 v{32 + m}, v{g_}, v28')
        for r in range(1, 4): A(f'v_fmac_f32 v{32 + m}, v{g_ + r}, v{28 + r}')
    for sw in ('v_permlane16_swap_b32', 'v_permlane32_swap_b32'):
        for m in range(2): A(f'v_mov_b32 v{34 + m}, v{32 + m}')
        for m in range(2): A(f'{sw} v{32 + m}, v{34 + m}')
        for m in range(2): A(f'v_add_f32 v{32 + m}, v{32 + m}, v{34 + m}')
    for m in range(2):
        mu, var, m1, r1, t, m2, r2 = 44 + 8 * m, 45 + 8 * m, 46 + 8 * m, 47 + 8 * m, 48 + 8 * m, 49 + 8 * m, 50 + 8 * m
        A(f'v_mul_f32 v{mu}, 0x3b000000, v{SUM + 4 * m}')
        A(f'v_mul_f32 v{var}, 0x3b000000, v{32 + m}')
        A(f'v_fma_f32 v{var}, -v{mu}, v{mu}, v{var}')
        A(f'v_max_f32 v{var}, 0, v{var}')
        round_bf16(A, m1, mu)
        round_bf16(A, t, var)
        A(f'v_add_f32 v{t}, {EPS:#x}, v{t}')
        round_bf16(A, t, t)
        A(f'v_sqrt_f32 v{t}, v{t}')
        round_bf16(A, t, t)
        A(f'v_rcp_f32 v{r1}, v{t}')
        A(f'v_sub_f32 v{m2}, v{mu}, v{m1}')
        A(f'v_mul_f32 v{m2}, v{m2}, v{r1}')
        round_bf16(A, m2, m2)
        A(f'v_mul_f32 v{t}, v{var}, v{r1}')
        A(f'v_mul_f32 v{t}, v{t}, v{r1}')
        round_bf16(A, t, t)
        A(f'v_add_f32 v{t}, {EPS:#x}, v{t}')
        round_bf16(A, t, t)
        A(f'v_sqrt_f32 v{t}, v{t}')
        round_bf16(A, t, t)
        A(f'v_rcp_f32 v{r2}, v{t}')
        A(f'v_mul_f32 v{60 + 2 * m}, v{r1}, v{r2}')
        A(f'v_fma_f32 v{t}, v{m1}, v{r1}, v{m2}')
        A(f'v_mul_f32 v{t}, v{t}, v{r2}')
        A(f'v_sub_f32 v{61 + 2 * m}, 0, v{t}')
    A(f'''
    v_mov_b32 v64, {hex(f2u(GC1))}
    v_mov_b32 v65, {hex(f2u(GC1))}
    v_mov_b32 v66, {hex(f2u(GC2))}
    v_mov_b32 v67, {hex(f2u(GC2))}
    ''')
    vm.wait(A, 'E')
    OUT = 24
    for ft in range(7):
        A(f'''
        v_lshlrev_b32 v68, 16, v{228 + 2 * ft}
        v_and_b32 v69, 0xffff0000, v{228 + 2 * ft}
        v_lshlrev_b32 v70, 16, v{229 + 2 * ft}
        v_and_b32 v71, 0xffff0000, v{229 + 2 * ft}
        ''')
        cs = 200 + 4 * ft
        for m in range(2):
            acc = ACC + 4 * (2 * ft + m); ab = 60 + 2 * m; T = 72 + 4 * m
            for p in range(2):
                A(f'v_pk_fma_f32 v[{T + 2 * p}:{T + 2 * p + 1}], v[{cs + 2 * p}:{cs + 2 * p + 1}], v[{ab}:{ab + 1}], v[{68 + 2 * p}:{69 + 2 * p}] op_sel:[0,1,0] op_sel_hi:[1,1,1]')
            for p in range(2):
                A(f'v_pk_fma_f32 v[{acc + 2 * p}:{acc + 2 * p + 1}], v[{acc + 2 * p}:{acc + 2 * p + 1}], v[{ab}:{ab + 1}], v[{T + 2 * p}:{T + 2 * p + 1}] op_sel:[0,0,0] op_sel_hi:[1,0,1]')
        for m in range(2):
            acc = ACC + 4 * (2 * ft + m); T = 72 + 4 * m
            for p in range(2): A(f'v_pk_mul_f32 v[{T + 2 * p}:{T + 2 * p + 1}], v[{acc + 2 * p}:{acc + 2 * p + 1}], v[{acc + 2 * p}:{acc + 2 * p + 1}]')
        for m in range(2):
            T = 72 + 4 * m
            for p in range(2): A(f'v_pk_fma_f32 v[{T + 2 * p}:{T + 2 * p + 1}], v[{T + 2 * p}:{T + 2 * p + 1}], v[66:67], v[64:65]')
        for m in range(2):
            acc = ACC + 4 * (2 * ft + m); T = 72 + 4 * m
            for p in range(2): A(f'v_pk_mul_f32 v[{T + 2 * p}:{T + 2 * p + 1}], v[{T + 2 * p}:{T + 2 * p + 1}], v[{acc + 2 * p}:{acc + 2 * p + 1}]')
        for k in range(8): A(f'v_exp_f32 v{72 + k}, v{72 + k}')
        for k in range(4): A(f'v_pk_add_f32 v[{72 + 2 * k}:{73 + 2 * k}], v[{72 + 2 * k}:{73 + 2 * k}], 1.0 op_sel_hi:[1,0]')
        for k in range(8): A(f'v_rcp_f32 v{72 + k}, v{72 + k}')
        for m in range(2):
            acc = ACC + 4 * (2 * ft + m); T = 72 + 4 * m
            for p in range(2): A(f'v_pk_mul_f32 v[{acc + 2 * p}:{acc + 2 * p + 1}], v[{acc + 2 * p}:{acc + 2 * p + 1}], v[{T + 2 * p}:{T + 2 * p + 1}]')
        for m in range(2):
            acc = ACC + 4 * (2 * ft + m)
            A(f'v_cvt_pk_bf16_f32 v{RES(ft, m)}, v{acc}, v{acc + 1}')
            A(f'v_cvt_pk_bf16_f32 v{RES(ft, m) + 1}, v{acc + 2}, v{acc + 3}')
    A(f'''
    s_lshl_b32 s30, s23, 3
    s_lshl_b32 s31, s22, 1
    s_add_u32 s30, s30, s31
    s_mul_i32 s30, s30, {56 * 1024}
    s_mul_i32 s31, s24, 7
    s_lshr_b32 s33, s31, 1
    s_lshl_b32 s33, s33, 10
    s_add_u32 s30, s30, s33
    s_add_u32 s30, s30, {WS_H1}
    v_add_u32 v10, s30, v5
    v_add_u32 v11, {56 * 1024}, v10
    s_and_b32 s31, s24, 1
    s_cmp_eq_u32 s31, 0
    s_cbranch_scc0 {name}_oddst
    ''')
    for m in range(2):
        for p in range(3):
            a_ = RES(2 * p, m)
            A(f'global_store_dwordx4 v{10 + m}, v[{a_}:{a_ + 3}], s[20:21] offset:{1024 * p}')
        A(f'global_store_dwordx2 v{10 + m}, v[{RES(6, m)}:{RES(6, m) + 1}], s[20:21] offset:{3072}')
    A(f's_branch {name}_stdone\n {name}_oddst:')
    for m in range(2):
        A(f'global_store_dwordx2 v{10 + m}, v[{RES(0, m)}:{RES(0, m) + 1}], s[20:21] offset:8')
        for p in range(3):
            a_ = RES(2 * p + 1, m)
            A(f'global_store_dwordx4 v{10 + m}, v[{a_}:{a_ + 3}], s[20:21] offset:{1024 * (p + 1)}')
    A(f'{name}_stdone:')
    stamp(A, 4)
    if STAMPS: A('s_waitcnt vmcnt(0)')
    stamp(A, 5)
    stamp_flush(A, kid, 6, tmpv=8)
    A(f'{name}_end:\n s_endpgm')
    A.resolve()
    return A.text(), dict(name=name, grid=256, block=256, lds=LDS, nvgpr=248)
def RES(ft, m): return 168 + 16 * m + 2 * ft
```

```python
from common import *
def gen_k4(name='k4_kernel'):
    A = Asm()
    HTL = 49152
    LDS = HTL + 8192
    stamp(A, 0)
    A(f'''
    s_cmp_ge_u32 s2, 256
    s_cbranch_scc1 {name}_end
    s_load_dwordx2 s[4:5], s[0:1], 104
    s_load_dwordx2 s[6:7], s[0:1], 112
    s_load_dwordx2 s[20:21], s[0:1], 128
    v_lshrrev_b32 v1, 6, v0
    v_and_b32 v2, 63, v0
    v_readfirstlane_b32 s22, v1
    v_and_b32 v3, 15, v2
    v_lshrrev_b32 v4, 4, v2
    s_and_b32 s23, s2, 7
    s_lshl_b32 s23, s23, 2
    s_lshr_b32 s24, s2, 6
    s_add_u32 s23, s23, s24
    s_lshr_b32 s24, s2, 3
    s_and_b32 s24, s24, 7
    s_mul_i32 s25, s24, {4 * 56}
    s_mul_i32 s26, s22, 14
    s_add_u32 s25, s25, s26
    s_lshl_b32 s25, s25, 10
    s_mul_i32 s27, s23, {4 * 56}
    s_add_u32 s27, s27, s26
    s_lshl_b32 s27, s27, 10
    v_lshlrev_b32 v5, 4, v2
    s_waitcnt lgkmcnt(0)
    s_add_u32 s28, s20, {WS_W2P}
    s_addc_u32 s29, s21, 0
    s_add_u32 s28, s28, s25
    s_addc_u32 s29, s29, 0
    s_add_u32 s30, s20, {WS_H1}
    s_addc_u32 s31, s21, 0
    s_add_u32 s30, s30, s27
    s_addc_u32 s31, s31, 0
    ''')
    A(f'''
    v_lshrrev_b32 v6, 3, v2
    s_lshl_b32 s33, s24, 6
    s_lshl_b32 s34, s22, 4
    s_add_u32 s33, s33, s34
    v_add_u32 v6, s33, v6
    v_lshlrev_b32 v6, 12, v6
    v_and_b32 v7, 7, v2
    v_lshlrev_b32 v7, 4, v7
    s_lshl_b32 s34, s23, 7
    s_add_u32 s34, s34, {WS_HT}
    v_add3_u32 v6, v6, v7, s34
    s_lshl_b32 s39, s22, 11
    s_add_u32 s39, s39, {HTL}
    s_mov_b32 m0, s39
    v_add_u32 v7, {8 * 4096}, v6
    global_load_lds_dwordx4 v6, s[20:21]
    s_add_u32 m0, s39, 1024
    s_nop 0
    global_load_lds_dwordx4 v7, s[20:21]
    ''')
    for i in range(4): A(f'v_add_u32 v{8 + i}, {i * 56 * 1024}, v5')
    NS = 3
    SET = [16 + 32 * k for k in range(NS)]; ACC = 16 + 32 * NS
    def loads(s_):
        st = SET[s_ % NS]
        o = (s_ % 4) * 1024
        if s_ % 4 == 0 and s_ > 0:
            for i in range(4): A(f'v_add_u32 v{8 + i}, 4096, v{8 + i}')
        for i in range(4):
            A(f'global_load_dwordx4 v[{st + 4 * i}:{st + 4 * i + 3}], v{8 + i}, s[28:29] offset:{o}')
            A(f'global_load_dwordx4 v[{st + 16 + 4 * i}:{st + 16 + 4 * i + 3}], v{8 + i}, s[30:31] offset:{o}')
    stamp(A, 1)
    for s_ in range(NS - 1): loads(s_)
    for s_ in range(14):
        if s_ + NS - 1 < 14:
            loads(s_ + NS - 1); A(f's_waitcnt vmcnt({8 * (NS - 1)})')
        else:
            A(f's_waitcnt vmcnt({8 * (13 - s_)})')
        if s_ == 0: stamp(A, 2)
        st = SET[s_ % NS]
        for i in range(4):
            for m in range(4):
                acc = ACC + 4 * (4 * i + m)
                cin = '0' if s_ == 0 else f'v[{acc}:{acc+3}]'
                A(f'v_mfma_f32_16x16x32_bf16 v[{acc}:{acc+3}], v[{st + 4 * i}:{st + 4 * i + 3}], v[{st + 16 + 4 * m}:{st + 16 + 4 * m + 3}], {cin}')
    stamp(A, 3)
    A(f'''
    s_lshl_b32 s33, s23, 6
    v_add_u32 v6, s33, v3
    v_lshlrev_b32 v6, 10, v6
    s_lshl_b32 s34, s24, 7
    s_lshl_b32 s35, s22, 5
    s_add_u32 s34, s34, s35
    v_lshlrev_b32 v7, 3, v4
    v_add_u32 v7, s34, v7
    v_add_u32 v6, v6, v7
    global_load_dwordx2 v[12:13], v7, s[4:5]
    ''')
    for m in range(4):
        A(f'v_add_u32 v{8 + m}, {m * 16384}, v6')
    A(f's_mul_i32 s38, s22, {3 * 4096}\n v_add_u32 v14, s38, v5')
    for w in range(4):
        A(f's_cmp_eq_u32 s22, {w}\n s_cbranch_scc0 {name}_r{w}')
        for idx in range(3):
            i = (w + 1 + idx) & 3
            for m in range(4):
                acc = ACC + 4 * (4 * i + m)
                A(f'ds_write_b128 v14, v[{acc}:{acc+3}] offset:{idx * 4096 + m * 1024}')
        if w != 0:
            for k in range(16): A(f'v_mov_b32 v{ACC + k}, v{ACC + 16 * w + k}')
        A('s_waitcnt lgkmcnt(0)\n s_barrier')
        for q in range(3):
            wp = (w + 1 + q) & 3
            idx = (w - wp - 1) & 3
            for m in range(4):
                A(f'ds_read_b128 v[{32 + 16 * q + 4 * m}:{32 + 16 * q + 4 * m + 3}], v5 offset:{(wp * 3 + idx) * 4096 + m * 1024}')
        A(f's_branch {name}_fin\n {name}_r{w}:')
    A(f'{name}_fin:')
    A(f'''
    v_bfe_u32 v14, v2, 2, 2
    v_lshl_add_u32 v14, v4, 2, v14
    v_lshlrev_b32 v14, 7, v14
    v_and_b32 v15, 3, v2
    v_lshlrev_b32 v15, 3, v15
    v_add3_u32 v14, v14, v15, s39
    ''')
    for m in range(4): A(f'ds_read_b64_tr_b16 v[{16 + 2 * m}:{17 + 2 * m}], v14 offset:{32 * m}')
    A('s_waitcnt vmcnt(0) lgkmcnt(0)')
    stamp(A, 4)
    A(f'''
    v_lshlrev_b32 v24, 16, v12
    v_and_b32 v25, 0xffff0000, v12
    v_lshlrev_b32 v26, 16, v13
    v_and_b32 v27, 0xffff0000, v13
    ''')
    for m in range(4):
        acc = ACC + 4 * m
        for q in range(3):
            for pr in range(2):
                A(f'v_pk_add_f32 v[{acc + 2 * pr}:{acc + 2 * pr + 1}], v[{acc + 2 * pr}:{acc + 2 * pr + 1}], v[{32 + 16 * q + 4 * m + 2 * pr}:{32 + 16 * q + 4 * m + 2 * pr + 1}]')
        for pr in range(2):
            y0, y1 = acc + 2 * pr, acc + 2 * pr + 1
            A(f'''
            v_cvt_pk_bf16_f32 v{y0}, v{y0}, v{y1}
            v_and_b32 v{y1}, 0xffff0000, v{y0}
            v_lshlrev_b32 v{y0}, 16, v{y0}
            v_pk_add_f32 v[{y0}:{y1}], v[{y0}:{y1}], v[{24 + 2 * pr}:{25 + 2 * pr}]
            v_cvt_pk_bf16_f32 v{y0}, v{y0}, v{y1}
            v_and_b32 v{y1}, 0xffff0000, v{y0}
            v_lshlrev_b32 v{y0}, 16, v{y0}
            v_lshlrev_b32 v28, 16, v{16 + 2 * m + pr}
            v_and_b32 v29, 0xffff0000, v{16 + 2 * m + pr}
            v_pk_add_f32 v[{y0}:{y1}], v[{y0}:{y1}], v[28:29]
            v_cvt_pk_bf16_f32 v{30 + pr}, v{y0}, v{y1}
            ''')
        A(f'global_store_dwordx2 v{8 + m}, v[30:31], s[6:7]')
        A('s_nop 1')
    if STAMPS: A('s_waitcnt vmcnt(0)')
    stamp(A, 5)
    stamp_flush(A, 5, 6, tmpv=8)
    A(f'{name}_end:\n s_endpgm')
    A.resolve()
    return A.text(), dict(name=name, grid=256, block=256, lds=LDS, nvgpr=ACC + 64)
```

```python
from common import *

ABL = lambda x: x in os.environ.get('ABL', '').split(',')
L_XY = 0; WSZ = 17408; PITCH = 272
L_T = 69632; TSZ = 2816
L_W2 = L_T + 4 * TSZ
UP = 114688
L_XI = UP
L_U = UP + 8192; USZ = 4608
L_R = L_U + 2 * USZ; RSZ = 4160
L_RED = L_R
L_CSX = UP
W1S = 0
HS = UP
LDS_TOTAL = 163840

def poll_loop(A, name, loads, check, pre=''):
    A(f's_mov_b32 s79, {SPIN_MAX}')
    A(f'{name}:')
    A(loads)
    A('s_waitcnt vmcnt(0)')
    A(check)
    A(f's_cbranch_scc1 {name}_ok')
    A(f's_sub_u32 s79, s79, 1\n s_cmp_eq_u32 s79, 0\n s_cbranch_scc0 {name}\n {name}_ok:')

def phase_a(A, name):
    A(f'''
    s_lshl_b32 s40, s2, 3
    s_lshl_b32 s41, s22, 1
    s_add_u32 s40, s40, s41
    s_lshl_b32 s41, s40, 10
    v_lshlrev_b32 v5, 4, v2
    v_add_u32 v6, s41, v5
    global_load_dwordx4 v[8:11], v6, s[4:5]
    global_load_dwordx4 v[12:15], v6, s[4:5] offset:1024
    s_lshl_b32 s42, s26, 6
    s_lshl_b32 s43, s22, 4
    s_add_u32 s42, s42, s43
    v_lshrrev_b32 v6, 3, v2
    v_add_u32 v6, s42, v6
    v_lshlrev_b32 v6, 10, v6
    v_and_b32 v7, 7, v2
    v_lshlrev_b32 v7, 4, v7
    s_lshl_b32 s42, s23, 7
    v_add3_u32 v6, v6, v7, s42
    s_lshl_b32 s43, s22, 11
    s_add_u32 s43, s43, {L_XI}
    s_mov_b32 m0, s43
    v_add_u32 v7, 8192, v6
    global_load_lds_dwordx4 v6, s[4:5]
    s_add_u32 m0, s43, 1024
    s_nop 0
    global_load_lds_dwordx4 v7, s[4:5]
    s_lshr_b32 s42, s22, 1
    s_lshl_b32 s43, s27, 1
    s_add_u32 s43, s43, s42
    s_and_b32 s44, s22, 1
    s_lshl_b32 s44, s44, 6
    s_lshl_b32 s45, s43, 7
    s_add_u32 s45, s45, s44
    v_add_u32 v6, s45, v2
    v_lshlrev_b32 v6, 1, v6
    s_lshl_b32 s45, s43, 1
    v_mov_b32 v7, s45
    global_load_ushort v16, v6, s[6:7]
    global_load_ushort v17, v6, s[8:9]
    global_load_ushort v18, v6, s[10:11]
    global_load_ushort v19, v6, s[12:13]
    global_load_ushort v20, v6, s[14:15]
    global_load_ushort v21, v6, s[16:17]
    global_load_ushort v22, v7, s[18:19]
    global_load_ushort v23, v7, s[24:25]
    s_cmp_lt_u32 s2, 112
    s_cbranch_scc0 {name}_nw2
    s_lshl_b32 s47, s26, 2
    s_add_u32 s47, s47, s22
    v_lshrrev_b32 v6, 3, v2
    s_lshl_b32 s48, s47, 5
    v_add_u32 v6, s48, v6
    v_lshlrev_b32 v6, 10, v6
    v_and_b32 v7, 7, v2
    v_lshlrev_b32 v7, 4, v7
    s_lshl_b32 s48, s23, 7
    v_add3_u32 v6, v6, v7, s48
    s_lshl_b32 s49, s22, 12
    s_add_u32 s49, s49, {L_W2}
    ''')
    for i in range(4):
        A(f'''
        s_add_u32 m0, s49, {1024 * i}
        v_add_u32 v7, {8192 * i}, v6
        global_load_lds_dwordx4 v7, s[32:33]
        ''')
    A(f'''
    {name}_nw2:
    s_cmp_lt_u32 s26, 4
    s_cbranch_scc0 {name}_ncw
    s_getpc_b64 s[62:63]
    s_and_b32 s62, s62, 0xffffff00
    v_lshlrev_b32 v6, 7, v0
    v_min_u32 v6, ({name}_end - {name} - 1024), v6
    global_load_dword v250, v6, s[62:63]
    {name}_ncw:
    ''')
    stamp(A, 1)
    A(f'''
    v_lshlrev_b32 v33, 3, v0
    v_sub_u32 v33, 2047, v33
    s_movk_i32 s50, 0x4280
    ''')
    for e in range(9):
        A(f'''
        v_subrev_u32 v34, {e}, v33
        v_cvt_f32_u32 v35, v34
        v_cvt_pk_bf16_f32 v35, v35, v35
        v_and_b32 v35, 0xffff, v35
        v_subrev_u32 v35, s50, v35
        v_cmp_gt_u32 vcc, 128, v34
        v_cndmask_b32 v35, v35, v34, vcc
        v_and_b32 v35, 0x3ff, v35
        v_lshlrev_b32 v35, 2, v35
        v_add_u32 v{24 + e}, {L_T}, v35
        ''')
    A(f'''
    v_and_b32 v34, 31, v2
    v_lshrrev_b32 v35, 5, v2
    s_mul_i32 s50, s22, {TSZ}
    s_add_u32 s50, s50, {L_T}
    v_cmp_eq_u32 vcc, 1, v35
    v_lshlrev_b32 v36, 5, v34
    v_lshlrev_b32 v37, 4, v35
    v_add3_u32 v40, v36, v37, s50
    ''')
    for r in range(4, 12):
        if r < 8:
            c0, s0 = 256 + (r - 4), 4
            c1, s1 = 384 + 64 * ((r - 4) >> 1) + ((r - 4) & 1), 2
        else:
            c0, s0 = 512 + 32 * (r - 8), 1
            c1, s1 = (640, 1) if r == 8 else (672, 1)
        A(f'''
        v_mul_u32_u24 v36, {4 * s0}, v34
        v_add_u32 v36, {4 * c0}, v36
        v_mul_u32_u24 v37, {4 * s1}, v34
        v_add_u32 v37, {4 * c1}, v37
        v_cndmask_b32 v36, v36, v37, vcc
        v_add_u32 v{37 + r}, s50, v36
        ''')
    A(f'''
    v_mov_b32 v50, 0
    v_mov_b32 v51, 0
    v_mov_b32 v52, 0
    v_mov_b32 v53, 0
    v_lshlrev_b32 v55, 4, v0
    v_add_u32 v55, {UP}, v55
    v_cmp_gt_u32 vcc, 30, v0
    s_and_saveexec_b64 s[52:53], vcc
    ds_write_b128 v55, v[50:53] offset:{L_U - UP}
    ds_write_b128 v55, v[50:53] offset:{L_U - UP + USZ}
    s_mov_b64 exec, s[52:53]
    v_cmp_gt_u32 vcc, 2, v0
    s_and_saveexec_b64 s[52:53], vcc
    ''')
    for k in range(4): A(f'ds_write_b128 v55, v[50:53] offset:{L_R - UP + k * RSZ + 2 * 2064}')
    A('s_mov_b64 exec, s[52:53]')
    A(f'''
    s_waitcnt vmcnt(8)
    s_barrier
    ''')
    stamp(A, 2)
    A(f'''
    v_bfe_u32 v50, v2, 2, 2
    v_lshl_add_u32 v51, v4, 3, v50
    v_lshlrev_b32 v51, 7, v51
    v_and_b32 v52, 3, v2
    v_lshlrev_b32 v52, 3, v52
    s_lshl_b32 s42, s22, 5
    s_add_u32 s42, s42, {L_XI}
    v_add3_u32 v51, v51, v52, s42
    ds_read_b64_tr_b16 v[96:97], v51
    ds_read_b64_tr_b16 v[98:99], v51 offset:512
    ds_read_b64_tr_b16 v[100:101], v51 offset:4096
    ds_read_b64_tr_b16 v[102:103], v51 offset:4608
    s_lshl_b32 s42, s23, 6
    s_lshl_b32 s43, s22, 4
    s_add_u32 s42, s42, s43
    v_add_u32 v53, s42, v3
    v_lshlrev_b32 v53, 12, v53
    v_lshlrev_b32 v54, 4, v4
    s_lshl_b32 s42, s26, 7
    s_add_u32 s42, s42, {WS_KR}
    v_add3_u32 v53, v53, v54, s42
    s_waitcnt lgkmcnt(0)
    global_store_dwordx4 v53, v[96:99], s[20:21] sc1
    global_store_dwordx4 v53, v[100:103], s[20:21] offset:64 sc1
    ''')
    for row in range(2):
        for k in range(4):
            src = 8 + 4 * row + k
            A(f'v_lshlrev_b32 v{64 + 8 * row + 2 * k}, 16, v{src}')
            A(f'v_and_b32 v{65 + 8 * row + 2 * k}, 0xffff0000, v{src}')
    for row in range(2):
        b = 64 + 8 * row
        A(f'v_add_f32 v{80 + row}, v{b}, v{b + 1}')
        for k in range(2, 8): A(f'v_add_f32 v{80 + row}, v{80 + row}, v{b + k}')
    allsum64(A, [80, 81], [82, 83])
    for row in range(2): A(f'v_mul_f32 v{80 + row}, 0x3b000000, v{80 + row}')
    for row in range(2):
        b = 64 + 8 * row
        for k in range(8): A(f'v_sub_f32 v{b + k}, v{b + k}, v{80 + row}')
        A(f'v_mul_f32 v{84 + row}, v{b}, v{b}')
        for k in range(1, 8): A(f'v_fmac_f32 v{84 + row}, v{b + k}, v{b + k}')
    allsum64(A, [84, 85], [82, 83])
    for row in range(2):
        A(f'v_mul_f32 v{84 + row}, 0x3b000000, v{84 + row}')
        round_bf16(A, 84 + row, 84 + row)
        A(f'v_add_f32 v{84 + row}, {EPS:#x}, v{84 + row}')
        round_bf16(A, 84 + row, 84 + row)
        A(f'v_sqrt_f32 v{84 + row}, v{84 + row}')
    A(f'''
    v_cvt_pk_bf16_f32 v88, v80, v84
    v_cvt_pk_bf16_f32 v90, v81, v85
    s_waitcnt lgkmcnt(0)
    s_mul_i32 s38, s38, 0x9e3779b1
    s_add_u32 s38, s38, 0x7f4a7c15
    v_mov_b32 v89, s38
    v_mov_b32 v91, s38
    s_lshl_b32 s50, s40, 3
    s_add_u32 s50, s50, {WS_GR}
    v_mov_b32 v92, s50
    ''')
    stamp(A, '2c')
    A(f'''
    s_waitcnt vmcnt(0)
    ''')
    stamp(A, '2d')
    A(f'''
    s_barrier
    s_mov_b64 s[52:53], exec
    s_mov_b64 exec, 1
    global_store_dwordx4 v92, v[88:91], s[20:21] sc1
    s_mov_b64 exec, s[52:53]
    ''')
    stamp(A, 3)
    A(f'''
    s_cmp_lt_u32 s2, 112
    s_cbranch_scc0 {name}_nw2b
    v_lshl_add_u32 v50, v4, 2, v50
    v_lshlrev_b32 v50, 7, v50
    v_add3_u32 v50, v50, v52, s49
    s_mul_i32 s48, s23, {4 * 56}
    s_add_u32 s48, s48, s47
    s_lshl_b32 s48, s48, 10
    s_add_u32 s48, s48, {WS_W2P}
    v_add_u32 v53, s48, v5
    ''')
    for i in range(4):
        A(f'ds_read_b64_tr_b16 v[{104 + 4 * i}:{105 + 4 * i}], v50 offset:{32 * i}')
        A(f'ds_read_b64_tr_b16 v[{106 + 4 * i}:{107 + 4 * i}], v50 offset:{32 * i + 2048}')
    A('s_waitcnt lgkmcnt(0)')
    for i in range(4):
        A(f'v_add_u32 v54, {56 * 1024 * i}, v53')
        A(f'global_store_dwordx4 v54, v[{104 + 4 * i}:{107 + 4 * i}], s[20:21] sc1')
    A(f'{name}_nw2b:')
    A(f'''
    s_mul_i32 s45, s26, {448 * 128}
    s_mul_i32 s46, s22, {112 * 128}
    s_add_u32 s45, s45, s46
    v_lshlrev_b32 v6, 7, v2
    v_add_u32 v6, s45, v6
    global_load_dword v250, v6, s[28:29]
    v_min_u32 v7, 47, v2
    v_lshlrev_b32 v7, 7, v7
    v_add_u32 v7, s45, v7
    v_add_u32 v7, 8192, v7
    global_load_dword v251, v7, s[28:29]
    ''')
    stamp(A, 4)
    for i in range(16, 24): A(f'v_lshlrev_b32 v{i}, 16, v{i}')
    A(f'v_mul_f32 v22, {LOG2E:#x}, v22\n v_exp_f32 v22, v22')
    round_bf16(A, 22, 22)
    A(f'''
    v_mul_f32 v16, v22, v16
    v_mul_f32 v17, v22, v17
    v_mul_f32 v18, v22, v18
    v_mul_f32 v19, v22, v19
    v_mul_f32 v16, {LOG2E:#x}, v16
    v_mul_f32 v17, {INV2PI:#x}, v17
    ''')
    cmul(A, 50, 20, 18, 52)
    def P(dst, p):
        lit = f'{float(p)!r}' if p in (1, 2, 4) else hex(f2u(p))
        A(f'''
        v_mul_f32 v54, {lit}, v16
        v_mul_f32 v55, {lit}, v17
        v_exp_f32 v54, v54
        v_fract_f32 v55, v55
        v_cos_f32 v{dst}, v55
        v_sin_f32 v{dst + 1}, v55
        v_pk_mul_f32 v[{dst}:{dst + 1}], v[{dst}:{dst + 1}], v[54:55] op_sel_hi:[1,0]
        ''')
    Z1, Z2, Z4, Z8, Z32, Z256 = 56, 58, 60, 62, 64, 66
    P(Z1, 1); P(Z8, 8); P(Z32, 32); P(Z256, 256)
    cmul(A, Z2, Z1, Z1, 52)
    cmul(A, Z4, Z2, Z2, 52)
    A(f'''
    s_mul_i32 s50, s22, {WSZ}
    s_add_u32 s50, s50, {L_XY}
    v_lshlrev_b32 v34, 2, v2
    v_add_u32 v34, s50, v34
    ''')
    def putX(row, reg):
        A(f'v_cvt_pk_bf16_f32 v36, v{reg}, v{reg + 1}')
        A(f'ds_write_b32 v34, v36 offset:{row * PITCH}')
    def putY(row, reg):
        A(f'v_cvt_pk_bf16_f32 v37, v{reg}, -v{reg + 1}')
        A(f'ds_write_b32 v34, v37 offset:{8704 + row * PITCH}')
    Y = [68, 70, 72, 74]
    A('v_mov_b32 v68, 1.0\n v_mov_b32 v69, 0\n v_mov_b32 v70, v62\n v_mov_b32 v71, v63')
    cmul(A, 72, Z8, Z8, 52)
    cmul(A, 74, 72, Z8, 52)
    TM = [76, 78, 80, 82]
    A('v_mov_b32 v84, v50\n v_mov_b32 v85, v51')
    def cm(D, X, Yr, T):
        return [f'v_pk_mul_f32 v[{T}:{T+1}], v[{X}:{X+1}], v[{Yr}:{Yr+1}] op_sel_hi:[1,0]',
                f'v_pk_fma_f32 v[{D}:{D+1}], v[{X}:{X+1}], v[{Yr}:{Yr+1}], v[{T}:{T+1}] op_sel:[1,1,0] op_sel_hi:[0,1,1] neg_lo:[1,0,0]']
    def pX(row, reg, t): return [f'v_cvt_pk_bf16_f32 v{t}, v{reg}, v{reg + 1}', f'ds_write_b32 v34, v{t} offset:{row * PITCH}']
    def pY(row, reg, t): return [f'v_cvt_pk_bf16_f32 v{t}, v{reg}, -v{reg + 1}', f'ds_write_b32 v34, v{t} offset:{8704 + row * PITCH}']
    sy = []
    for it in range(8):
        cv = [pY(4 * it + c, Y[c], 86 + c) for c in range(4)]
        sy += [x[0] for x in cv]
        if it < 7: sy += [cm(Y[c], Y[c], Z32, TM[c])[0] for c in range(4)]
        sy += [x[1] for x in cv]
        if it < 7: sy += [cm(Y[c], Y[c], Z32, TM[c])[1] for c in range(4)]
    sa = pX(0, 50, 90)
    for p in range(1, 8): sa += cm(50, 50, Z1, 52) + pX(p, 50, 90)
    Wc = 84
    sb = []
    def wstep(row): return cm(Wc, Wc, Z256, 92) + pX(row, Wc, 91)
    def bstep(src, z, row): return cm(94, src, z, 96) + pX(row, 94, 98)
    sb += wstep(8) + bstep(Wc, Z2, 9) + bstep(94, Z2, 10) + bstep(94, Z2, 11) + wstep(12) + bstep(Wc, Z4, 13) + wstep(14) + bstep(Wc, Z4, 15)
    for row in range(16, 21): sb += wstep(row)
    iy = ia = ib = 0
    while iy < len(sy) or ia < len(sa) or ib < len(sb):
        for _ in range(2):
            if iy < len(sy): A(sy[iy]); iy += 1
        if ib < len(sb): A(sb[ib]); ib += 1
        if iy < len(sy): A(sy[iy]); iy += 1
        if ia < len(sa): A(sa[ia]); ia += 1
        elif ib < len(sb): A(sb[ib]); ib += 1
    stamp(A, 5)
    A(f'''
    v_and_b32 v38, 31, v2
    v_lshrrev_b32 v39, 5, v2
    v_mul_u32_u24 v38, {PITCH}, v38
    v_lshlrev_b32 v39, 4, v39
    v_add3_u32 v35, v38, v39, s50
    s_waitcnt lgkmcnt(0)
    ''')
    for t in range(8):
        A(f'ds_read_b128 v[{88 + 8 * t}:{91 + 8 * t}], v35 offset:{32 * t}')
        A(f'ds_read_b128 v[{92 + 8 * t}:{95 + 8 * t}], v35 offset:{8704 + 32 * t}')
    for t in range(8):
        A(f's_waitcnt lgkmcnt({14 - 2 * t})')
        b = 88 + 8 * t
        cin = '0' if t == 0 else 'v[160:175]'
        A(f'v_mfma_f32_32x32x16_bf16 v[160:175], v[{b}:{b+3}], v[{b+4}:{b+7}], {cin}')
    for r in range(4): A(f'ds_write_b32 v40, v{160 + r} offset:{4 * r}')
    for r in range(4, 12): A(f'ds_write_b32 v{37 + r}, v{160 + r}')
    A('s_waitcnt lgkmcnt(0)\n s_barrier')
    stamp(A, 6)
    for ch in range(2):
        for e in range(9):
            A(f'ds_read_b32 v{64 + 18 * ch + e}, v{24 + e} offset:{TSZ * 2 * ch}')
            A(f'ds_read_b32 v{73 + 18 * ch + e}, v{24 + e} offset:{TSZ * (2 * ch + 1)}')
    A(f'''
    v_lshlrev_b32 v54, 4, v0
    v_add_u32 v54, {L_R + 32}, v54
    v_cmp_eq_u32 vcc, 255, v0
    ''')
    for ch in range(2):
        if ch == 0: A('s_waitcnt lgkmcnt(0)')
        b = 64 + 18 * ch
        for e in range(9): A(f'v_add_f32 v{b + e}, v{b + e}, v{b + 9 + e}')
        A(f'v_cndmask_b32_e64 v{b + 8}, v{b + 8}, 0, vcc')
        for k in range(4):
            A(f'v_cvt_pk_bf16_f32 v{104 + k}, v{b + 2 * k}, v{b + 2 * k + 1}')
            A(f'v_cvt_pk_bf16_f32 v{108 + k}, v{b + 2 * k + 1}, v{b + 2 * k + 2}')
        A(f'ds_write_b128 v54, v[104:107] offset:{2 * RSZ * ch}')
        A(f'ds_write_b128 v54, v[108:111] offset:{2 * RSZ * ch + RSZ}')
    stamp(A, 7)

def w1_dma(A, name):
    for j in range(7):
        A(f'''
        v_add_u32 v47, {64 * j}, v2
        v_mul_u32_u24 v48, 4682, v47
        v_lshrrev_b32 v48, 16, v48
        v_mul_u32_u24 v49, 14, v48
        v_sub_u32 v49, v47, v49
        v_mul_u32_u24 v48, 3584, v48
        v_lshlrev_b32 v49, 4, v49
        v_add_u32 v{40 + j}, v48, v49
        ''')
    A(f'''
    s_mul_i32 s56, s55, 224
    s_mul_i32 s57, s22, {128 * 3584}
    s_add_u32 s56, s56, s57
    s_mul_i32 s57, s22, {128 * 224}
    ''')
    for j in range(7): A(f'v_add_u32 v{40 + j}, s56, v{40 + j}')
    out = []
    for b in range(4):
        for j in range(7):
            out.append(f's_add_u32 m0, s57, {W1S + b * 32 * 224 + j * 1024}\n v_add_u32 v47, {b * 32 * 3584}, v{40 + j}\n global_load_lds_dwordx4 v47, s[28:29]')
    return out

def phase_b(A, name):
    A(f'''
    v_lshlrev_b32 v5, 6, v0
    v_add_u32 v5, {WS_GR}, v5
    ''')
    loads = '\n'.join(f'global_load_dwordx4 v[{64 + 4 * k}:{67 + 4 * k}], v5, s[20:21] offset:{16 * k} sc1' for k in range(4))
    chk = 'v_cmp_eq_u32 vcc, s38, v65\n'
    for r in (67, 69, 71, 73, 75, 77, 79):
        chk += f'v_cmp_eq_u32 s[52:53], s38, v{r}\n s_and_b64 vcc, vcc, s[52:53]\n'
    chk += 's_cmp_eq_u64 vcc, -1'
    poll_loop(A, f'{name}_p1', loads, chk)
    stamp(A, 8)
    A(f'''
    s_lshl_b32 s45, s27, 13
    s_add_u32 s45, s45, {WS_KR}
    v_lshlrev_b32 v5, 4, v0
    v_add_u32 v6, s45, v5
    v_add_u32 v7, 4096, v6
    global_load_dwordx4 v[80:83], v6, s[20:21] sc1
    global_load_dwordx4 v[84:87], v7, s[20:21] sc1
    s_lshr_b32 s55, s26, 1
    ''')
    w1f = w1_dma(A, name)
    for e in range(8):
        p = 64 + 2 * e
        A(f'v_and_b32 v{p + 1}, 0xffff0000, v{p}')
        A(f'v_lshlrev_b32 v{p}, 16, v{p}')
        A(f'v_rcp_f32 v{p + 1}, v{p + 1}')
    A('s_waitcnt vmcnt(0)')
    stamp(A, '8b')
    A(f'''
    v_add_u32 v6, {L_XI}, v5
    ds_write_b128 v6, v[80:83]
    ds_write_b128 v6, v[84:87] offset:4096
    ''')
    for ch in range(2):
        b = 88 + 8 * ch; src = 80 + 4 * ch
        for k in range(4):
            A(f'v_lshlrev_b32 v{b + 2 * k}, 16, v{src + k}')
            A(f'v_and_b32 v{b + 2 * k + 1}, 0xffff0000, v{src + k}')
        for e in range(8): A(f'v_sub_f32 v{b + e}, v{b + e}, v{64 + 2 * e}')
        for k in range(4): A(f'v_cvt_pk_bf16_f32 v{104 + k}, v{b + 2 * k}, v{b + 2 * k + 1}')
        for k in range(4):
            A(f'v_lshlrev_b32 v{b + 2 * k}, 16, v{104 + k}')
            A(f'v_and_b32 v{b + 2 * k + 1}, 0xffff0000, v{104 + k}')
        for e in range(8): A(f'v_mul_f32 v{b + e}, v{b + e}, v{65 + 2 * e}')
        for k in range(4): A(f'v_cvt_pk_bf16_f32 v{108 + 4 * ch + k}, v{b + 2 * k}, v{b + 2 * k + 1}')
    A(f'''
    v_add_u32 v5, {L_U + 480}, v5
    ds_write_b128 v5, v[108:111]
    ds_write_b128 v5, v[112:115] offset:{USZ}
    ''')
    A(f'''
    s_lshr_b32 s42, s22, 1
    s_and_b32 s44, s22, 1
    v_lshlrev_b32 v56, 5, v3
    v_lshlrev_b32 v57, 4, v4
    v_add_u32 v56, v56, v57
    s_lshl_b32 s45, s44, 8
    s_mul_i32 s46, s42, {USZ}
    s_sub_u32 s46, s46, s45
    s_add_u32 s46, s46, {L_U + 448}
    v_add_u32 v60, s46, v56
    v_lshrrev_b32 v58, 1, v3
    v_lshlrev_b32 v58, 2, v58
    v_sub_u32 v58, v57, v58
    v_and_b32 v59, 1, v3
    v_sub_u32 v59, 1, v59
    v_mul_u32_u24 v59, {RSZ}, v59
    v_add_u32 v58, v58, v59
    s_mul_i32 s46, s42, {2 * RSZ}
    s_sub_u32 s46, s46, s45
    s_add_u32 s46, s46, {L_R + 4092}
    v_add_u32 v58, s46, v58
    ''')
    for k in range(4): A(f'v_subrev_u32 v{61 + k}, {512 * (2 * k + 1)}, v58')
    A('s_waitcnt lgkmcnt(0)\n s_barrier')
    A(f'''
    s_cmp_lt_u32 s2, 112
    s_cbranch_scc0 {name}_nfw
    s_cmp_eq_u32 s22, 0
    s_cbranch_scc0 {name}_nfw
    s_lshl_b32 s45, s2, 6
    s_add_u32 s45, s45, {WS_FW}
    v_mov_b32 v5, s45
    v_mov_b32 v6, s38
    s_mov_b64 s[52:53], exec
    s_mov_b64 exec, 1
    global_store_dword v5, v6, s[20:21] sc1
    s_mov_b64 exec, s[52:53]
    {name}_nfw:
    ''')
    stamp(A, 9)
    G = [72, 136]; F = [104, 168]; ACC = 200
    def loads_(set_):
        out = []
        Gs = [f'ds_read_b128 v[{G[set_] + 4 * t}:{G[set_] + 4 * t + 3}], v60 offset:{512 * t}' for t in range(8)]
        Fs = []
        for j in range(8):
            k = j >> 1; o = 0 if (j & 1) else 128
            Fs.append([f'ds_read2_b32 v[{F[set_] + 4 * j}:{F[set_] + 4 * j + 1}], v{61 + k} offset0:{o} offset1:{o + 1}',
                       f'ds_read2_b32 v[{F[set_] + 4 * j + 2}:{F[set_] + 4 * j + 3}], v{61 + k} offset0:{o + 2} offset1:{o + 3}'])
        out = Fs[0] + Gs + [x for f in Fs[1:] for x in f]
        return out
    adv = ['v_subrev_u32 v60, 64, v60'] + [f'v_subrev_u32 v{61 + k}, 64, v{61 + k}' for k in range(4)]
    def mfmas(set_, first):
        out = []
        for j in range(8):
            for t in range(8 - j):
                acc = ACC + 4 * (t + j)
                cin = '0' if (first and j == 0) else f'v[{acc}:{acc+3}]'
                out.append(f'v_mfma_f32_16x16x32_bf16 v[{acc}:{acc+3}], v[{F[set_] + 4 * j}:{F[set_] + 4 * j + 3}], v[{G[set_] + 4 * t}:{G[set_] + 4 * t + 3}], {cin}')
        return out
    A.auto(True)
    for x in loads_(0) + adv: A(x)
    wi = 0
    for it in range(4):
        fill = (loads_((it + 1) & 1) + adv) if it < 3 else []
        ms = mfmas(it & 1, it == 0)
        fi = 0
        for i, m in enumerate(ms):
            A(m)
            k = 1 if i % 8 else 2
            for _ in range(k):
                if fi < len(fill): A(fill[fi]); fi += 1
            if i % 5 == 4 and wi < 28: A(w1f[wi]); wi += 1
        assert fi == len(fill)
    assert wi == 28, wi
    A.auto(False)
    A(f'''
    v_lshlrev_b32 v66, 6, v2
    v_add_u32 v66, {WS_FW}, v66
    v_add_u32 v67, 64, v2
    v_min_u32 v67, 111, v67
    v_lshlrev_b32 v67, 6, v67
    v_add_u32 v67, {WS_FW}, v67
    global_load_dword v252, v66, s[20:21] sc1
    global_load_dword v253, v67, s[20:21] sc1
    ''')
    stamp(A, 10)
    A(f'''
    s_barrier
    s_lshl_b32 s45, s22, 12
    s_add_u32 s45, s45, {L_RED}
    v_lshlrev_b32 v68, 4, v2
    v_add_u32 v69, s45, v68
    s_xor_b32 s46, s22, 1
    s_lshl_b32 s46, s46, 12
    s_add_u32 s46, s46, {L_RED}
    v_add_u32 v70, s46, v68
    s_cmp_eq_u32 s44, 0
    s_cbranch_scc0 {name}_odd
    ''')
    for t in range(4): A(f'ds_write_b128 v69, v[{ACC + 16 + 4 * t}:{ACC + 16 + 4 * t + 3}] offset:{1024 * t}')
    A(f's_branch {name}_join\n {name}_odd:')
    for t in range(4): A(f'ds_write_b128 v69, v[{ACC + 4 * t}:{ACC + 4 * t + 3}] offset:{1024 * t}')
    for t in range(16): A(f'v_mov_b32 v{ACC + t}, v{ACC + 16 + t}')
    A(f'{name}_join:')
    A(f'''
    v_lshlrev_b32 v56, 5, v3
    v_lshlrev_b32 v57, 3, v4
    v_add_u32 v56, v56, v57
    s_lshl_b32 s45, s44, 11
    s_mul_i32 s46, s42, {USZ}
    s_add_u32 s46, s46, s45
    s_add_u32 s46, s46, {L_U + 480}
    v_add_u32 v57, s46, v56
    s_lshl_b32 s46, s42, 12
    s_add_u32 s46, s46, s45
    s_add_u32 s46, s46, {L_XI}
    v_add_u32 v59, s46, v56
    ''')
    for t in range(4):
        A(f'ds_read_b64 v[{88 + 2 * t}:{89 + 2 * t}], v57 offset:{512 * t}')
        A(f'ds_read_b64 v[{96 + 2 * t}:{97 + 2 * t}], v59 offset:{512 * t}')
    A(f'''
    s_lshl_b32 s46, s27, 1
    s_add_u32 s46, s46, s42
    s_lshl_b32 s46, s46, 6
    s_lshl_b32 s47, s44, 20
    s_add_u32 s46, s46, s47
    s_add_u32 s46, s46, {WS_HT}
    v_lshrrev_b32 v58, 1, v3
    v_lshlrev_b32 v58, 15, v58
    v_and_b32 v55, 1, v3
    v_lshlrev_b32 v55, 5, v55
    v_lshlrev_b32 v54, 3, v4
    v_add3_u32 v58, v58, v55, v54
    v_add_u32 v58, s46, v58
    s_waitcnt lgkmcnt(0)
    s_barrier
    ''')
    for t in range(4): A(f'ds_read_b128 v[{72 + 4 * t}:{72 + 4 * t + 3}], v70 offset:{1024 * t}')
    A('s_waitcnt lgkmcnt(0)')
    for t in range(4):
        for pr in range(2):
            y0, y1 = ACC + 4 * t + 2 * pr, ACC + 4 * t + 2 * pr + 1
            p0, p1 = 72 + 4 * t + 2 * pr, 72 + 4 * t + 2 * pr + 1
            u = 88 + 2 * t + pr; x = 96 + 2 * t + pr
            A(f'''
            v_pk_add_f32 v[{y0}:{y1}], v[{y0}:{y1}], v[{p0}:{p1}]
            v_lshlrev_b32 v104, 16, v{u}
            v_and_b32 v105, 0xffff0000, v{u}
            v_cvt_pk_bf16_f32 v{y0}, v{y0}, v{y1}
            v_pk_mul_f32 v[104:105], v[104:105], v[22:23] op_sel:[0,1] op_sel_hi:[1,1]
            v_and_b32 v{y1}, 0xffff0000, v{y0}
            v_lshlrev_b32 v{y0}, 16, v{y0}
            v_cvt_pk_bf16_f32 v104, v104, v105
            v_and_b32 v105, 0xffff0000, v104
            v_lshlrev_b32 v104, 16, v104
            v_pk_add_f32 v[{y0}:{y1}], v[{y0}:{y1}], v[104:105]
            v_cvt_pk_bf16_f32 v{y0}, v{y0}, v{y1}
            v_and_b32 v{y1}, 0xffff0000, v{y0}
            v_lshlrev_b32 v{y0}, 16, v{y0}
            v_lshlrev_b32 v104, 16, v{x}
            v_and_b32 v105, 0xffff0000, v{x}
            v_pk_add_f32 v[{y0}:{y1}], v[{y0}:{y1}], v[104:105]
            v_cvt_pk_bf16_f32 v{108 + pr}, v{y0}, v{y1}
            ''')
        A(f'global_store_dwordx2 v58, v[108:109], s[20:21] sc1')
        A(f'v_add_u32 v58, 0x40000, v58')
    A(f'''
    s_waitcnt vmcnt(0)
    s_barrier
    s_cmp_eq_u32 s22, 0
    s_cbranch_scc0 {name}_nf2
    s_lshl_b32 s45, s2, 6
    s_add_u32 s45, s45, {WS_F2}
    v_mov_b32 v5, s45
    v_mov_b32 v6, s38
    s_mov_b64 s[52:53], exec
    s_mov_b64 exec, 1
    global_store_dword v5, v6, s[20:21] sc1
    s_cmp_eq_u32 s2, 0
    s_cbranch_scc0 {name}_nf2b
    v_mov_b32 v5, {WS_TAG}
    global_store_dword v5, v6, s[20:21] sc1
    {name}_nf2b:
    s_mov_b64 exec, s[52:53]
    {name}_nf2:
    ''')
    stamp(A, 11)
    A(f'''
    v_cmp_eq_u32 vcc, s38, v252
    v_cmp_eq_u32 s[52:53], s38, v253
    s_and_b64 vcc, vcc, s[52:53]
    s_cmp_eq_u64 vcc, -1
    s_cbranch_scc0 {name}_nwarm2
    s_cmp_eq_u32 s22, 0
    s_cbranch_scc1 {name}_nwarm2
    s_lshl_b32 s46, s22, 7
    s_sub_u32 s46, s46, 64
    s_cmp_eq_u32 s22, 1
    s_cselect_b32 s46, 0, s46
    s_lshl_b32 s46, s46, 7
    s_mul_i32 s45, s26, {448 * 128}
    s_add_u32 s45, s45, s46
    s_add_u32 s45, s45, {WS_W2P}
    v_lshlrev_b32 v9, 7, v2
    v_add_u32 v9, s45, v9
    global_load_dword v250, v9, s[20:21] sc1
    v_add_u32 v9, 8192, v9
    global_load_dword v251, v9, s[20:21] sc1
    s_cmp_eq_u32 s22, 1
    s_cbranch_scc0 {name}_nwarm2
    v_add_u32 v9, 8192, v9
    global_load_dword v254, v9, s[20:21] sc1
    {name}_nwarm2:
    ''')
    A(f'''
    v_bfe_u32 v14, v2, 2, 2
    v_lshl_add_u32 v14, v4, 2, v14
    v_mul_u32_u24 v14, 224, v14
    v_and_b32 v15, 3, v2
    v_lshlrev_b32 v15, 3, v15
    v_add_u32 v14, v14, v15
    s_mul_i32 s45, s22, {4 * 7168}
    v_add_u32 v12, s45, v14
    v_mov_b32 v18, 0x3f803f80
    v_mov_b32 v19, 0x3f803f80
    v_mov_b32 v20, 0x3f803f80
    v_mov_b32 v21, 0x3f803f80
    ''')
    for s_ in range(4):
        for ft in range(7):
            b = 64 + 4 * ft
            A(f'ds_read_b64_tr_b16 v[{b}:{b + 1}], v12 offset:{7168 * s_ + 32 * ft}')
            A(f'ds_read_b64_tr_b16 v[{b + 2}:{b + 3}], v12 offset:{7168 * s_ + 32 * ft + 3584}')
        A('s_waitcnt lgkmcnt(0)')
        for ft in range(7):
            b = 64 + 4 * ft; acc = 96 + 4 * ft
            cin = '0' if s_ == 0 else f'v[{acc}:{acc+3}]'
            A(f'v_mfma_f32_16x16x32_bf16 v[{acc}:{acc+3}], v[{b}:{b+3}], v[18:21], {cin}')
    A(f'''
    s_mul_i32 s45, s22, 448
    s_add_u32 s45, s45, {L_CSX}
    v_lshlrev_b32 v13, 4, v4
    v_add_u32 v13, s45, v13
    v_cmp_eq_u32 vcc, 0, v3
    s_and_saveexec_b64 s[52:53], vcc
    ''')
    for ft in range(7): A(f'ds_write_b128 v13, v[{96 + 4 * ft}:{99 + 4 * ft}] offset:{64 * ft}')
    A(f'''
    s_mov_b64 exec, s[52:53]
    s_waitcnt lgkmcnt(0)
    s_barrier
    v_lshlrev_b32 v13, 4, v4
    v_add_u32 v13, {L_CSX}, v13
    ''')
    CS = 200
    for w in range(4):
        for ft in range(7):
            d = CS + 4 * ft if w == 0 else 64 + 4 * ft
            A(f'ds_read_b128 v[{d}:{d + 3}], v13 offset:{448 * w + 64 * ft}')
        A('s_waitcnt lgkmcnt(0)')
        if w > 0:
            for k in range(0, 28, 2): A(f'v_pk_add_f32 v[{CS + k}:{CS + k + 1}], v[{CS + k}:{CS + k + 1}], v[{64 + k}:{65 + k}]')
    A('s_barrier')
    A(f'''
    s_mul_i32 s45, s55, 112
    v_lshlrev_b32 v10, 2, v4
    v_add_u32 v10, s45, v10
    v_lshlrev_b32 v10, 1, v10
    ''')
    for i in range(7): A(f'global_load_dwordx2 v[{228 + 2 * i}:{229 + 2 * i}], v10, s[30:31] offset:{32 * i}')
    A(f's_cmp_eq_u32 s22, 0\n s_cbranch_scc0 {name}_np2\n v_lshlrev_b32 v5, 6, v2\n v_add_u32 v5, {WS_F2}, v5\n v_add_u32 v6, 4096, v5\n v_add_u32 v7, 8192, v5\n v_add_u32 v8, 12288, v5')
    ld = '\n'.join(f'global_load_dword v{64 + k}, v{5 + k}, s[20:21] sc1' for k in range(4))
    ck = 'v_cmp_eq_u32 vcc, s38, v64\n' + ''.join(f'v_cmp_eq_u32 s[52:53], s38, v{65 + k}\n s_and_b64 vcc, vcc, s[52:53]\n' for k in range(3)) + 's_cmp_eq_u64 vcc, -1'
    poll_loop(A, f'{name}_p2', ld, ck)
    A(f'{name}_np2:')
    A('s_barrier')
    stamp(A, 12)

H1SC = os.environ.get('H1SC', '')
H1LD = os.environ.get('H1LD', ' sc1')
def RES(ft, m): return 168 + 16 * m + 2 * ft

def phase_c(A, name):
    vm = VM()
    A(f'''
    s_and_b32 s54, s26, 1
    s_lshl_b32 s45, s23, 1
    s_add_u32 s54, s54, s45
    v_lshrrev_b32 v7, 2, v2
    v_lshlrev_b32 v7, 6, v7
    v_and_b32 v8, 3, v2
    v_bfe_u32 v9, v2, 4, 1
    v_lshlrev_b32 v9, 1, v9
    v_xor_b32 v8, v8, v9
    v_lshlrev_b32 v8, 4, v8
    s_lshl_b32 s45, s54, 2
    s_add_u32 s45, s45, s22
    s_lshl_b32 s45, s45, 15
    s_add_u32 s45, s45, {WS_HT}
    v_add3_u32 v7, v7, v8, s45
    s_mul_i32 s58, s22, 12288
    s_add_u32 s58, s58, {HS}
    ''')
    vm.issue(7)
    vm.n = 0
    def hdma(st):
        slot = st % 3
        for i in range(4):
            A(f'''
            s_add_u32 m0, s58, {slot * 4096 + i * 1024}
            v_add_u32 v10, {4096 * st + 1024 * i}, v7
            global_load_lds_dwordx4 v10, s[20:21] sc1
            ''')
            vm.issue()
        vm.mark(f'H{st}')
    A(f'''
    s_cmp_eq_u32 s22, 0
    s_cbranch_scc0 {name}_nwarmh
    s_lshl_b32 s45, s23, 18
    s_lshl_b32 s46, s26, 13
    s_add_u32 s45, s45, s46
    s_add_u32 s45, s45, {WS_HT}
    v_lshlrev_b32 v9, 7, v2
    v_add_u32 v9, s45, v9
    global_load_dword v250, v9, s[20:21] sc1
    {name}_nwarmh:
    ''')
    vm.issue(1)
    hdma(0); hdma(1); hdma(2)
    A(f'''
    s_and_b32 s59, s26, 7
    s_mul_i32 s45, s59, {4 * 56}
    s_mul_i32 s46, s22, 14
    s_add_u32 s45, s45, s46
    s_lshl_b32 s45, s45, 10
    s_add_u32 s45, s45, {WS_W2P}
    v_lshlrev_b32 v5, 4, v2
    v_add_u32 v8, s45, v5
    ''')
    w2q = [(s_, i) for s_ in range(14) for i in range(4)]
    def w2txt(k):
        s_, i = w2q[k]
        return f'v_add_u32 v9, {i * 56 * 1024 + s_ * 1024}, v8\n global_load_dwordx4 a[{16 * s_ + 4 * i}:{16 * s_ + 4 * i + 3}], v9, s[20:21] sc1'
    def w2load(k):
        A(w2txt(k)); vm.issue()
    A(f'''
    v_bfe_u32 v14, v2, 2, 2
    v_lshl_add_u32 v14, v4, 2, v14
    v_and_b32 v15, 3, v2
    v_lshlrev_b32 v15, 3, v15
    v_mul_u32_u24 v12, 224, v14
    v_add_u32 v12, v12, v15
    v_add_u32 v13, {8 * 7168}, v12
    v_lshlrev_b32 v14, 6, v14
    v_add3_u32 v14, v14, v15, s58
    v_and_b32 v15, 1, v4
    v_lshlrev_b32 v15, 5, v15
    v_add_u32 v16, v14, v15
    v_xor_b32 v15, 32, v15
    v_add_u32 v17, v14, v15
    v_mov_b32 v18, 0x3f803f80
    v_mov_b32 v19, 0x3f803f80
    v_mov_b32 v20, 0x3f803f80
    v_mov_b32 v21, 0x3f803f80
    ''')
    AF = [24, 60]; BF = [52, 88]; ACC = 96; SUM = 152; GR = 160
    def reads(s_):
        st = s_ & 1; outA = []; outB = []
        base, so = (12, s_) if s_ < 8 else (13, s_ - 8)
        for ft in range(7):
            off = 7168 * so + 32 * ft
            outA.append(f'ds_read_b64_tr_b16 v[{AF[st] + 4 * ft}:{AF[st] + 4 * ft + 1}], v{base} offset:{off}')
            outA.append(f'ds_read_b64_tr_b16 v[{AF[st] + 4 * ft + 2}:{AF[st] + 4 * ft + 3}], v{base} offset:{off + 3584}')
        o = ((s_ // 2) % 3) * 4096 + (s_ & 1) * 2048
        for m in range(2):
            outB.append(f'ds_read_b64_tr_b16 v[{BF[st] + 4 * m}:{BF[st] + 4 * m + 1}], v{16 + m} offset:{o}')
            outB.append(f'ds_read_b64_tr_b16 v[{BF[st] + 4 * m + 2}:{BF[st] + 4 * m + 3}], v{16 + m} offset:{o + 1024}')
        return outB[:2] + outA + outB[2:]
    vm.wait(A, 'H0')
    stamp(A, 13)
    A.auto(True)
    for r in reads(0): A(r)
    w2i = 0
    for s_ in range(16):
        st = s_ & 1
        if s_ % 2 == 0 and s_ >= 2 and (s_ - 2) // 2 + 3 < 8: hdma((s_ - 2) // 2 + 3)
        if s_ < 15:
            n = s_ + 1
            if n % 2 == 0 and not ABL('nohw'): vm.wait(A, f'H{n // 2}')
            rd = reads(n)
        else: rd = []
        ms = []
        for m in range(2):
            b = BF[st] + 4 * m
            c1 = '0' if s_ == 0 else f'v[{SUM + 4 * m}:{SUM + 4 * m + 3}]'
            c2 = '0' if s_ == 0 else f'v[{GR + 4 * m}:{GR + 4 * m + 3}]'
            for ft in range(7):
                acc = ACC + 4 * (2 * ft + m)
                cin = '0' if s_ == 0 else f'v[{acc}:{acc+3}]'
                ms.append(f'v_mfma_f32_16x16x32_bf16 v[{acc}:{acc+3}], v[{AF[st] + 4 * ft}:{AF[st] + 4 * ft + 3}], v[{b}:{b+3}], {cin}')
            ms.append(f'v_mfma_f32_16x16x32_bf16 v[{SUM + 4 * m}:{SUM + 4 * m + 3}], v[18:21], v[{b}:{b+3}], {c1}')
            ms.append(f'v_mfma_f32_16x16x32_bf16 v[{GR + 4 * m}:{GR + 4 * m + 3}], v[{b}:{b+3}], v[{b}:{b+3}], {c2}')
        ri = 0
        for i, mi in enumerate(ms):
            A(mi)
            for _ in range(2 if i % 3 == 0 else 1):
                if ri < len(rd): A(rd[ri]); ri += 1
        assert ri == len(rd)
        if s_ in (3, 7, 11): stamp(A, f'c{s_}')
        if s_ >= 2 and not ABL('now2'):
            for _ in range(2):
                if w2i < 56: w2load(w2i); w2i += 1
    A.auto(False)
    stamp(A, 14)
    for r in range(4):
        A(f'v_lshl_add_u32 v24, v4, 2, {r}\n v_cmp_eq_u32 vcc, v24, v3\n v_cndmask_b32 v{28 + r}, 0, 1.0, vcc')
    for m in range(2):
        g_ = GR + 4 * m
        A(f'v_mul_f32 v{32 + m}, v{g_}, v28')
        for r in range(1, 4): A(f'v_fmac_f32 v{32 + m}, v{g_ + r}, v{28 + r}')
    for sw in ('v_permlane16_swap_b32', 'v_permlane32_swap_b32'):
        for m in range(2): A(f'v_mov_b32 v{34 + m}, v{32 + m}')
        for m in range(2): A(f'{sw} v{32 + m}, v{34 + m}')
        for m in range(2): A(f'v_add_f32 v{32 + m}, v{32 + m}, v{34 + m}')
    for m in range(2):
        mu, var, m1, r1, t, m2, r2 = 44 + 8 * m, 45 + 8 * m, 46 + 8 * m, 47 + 8 * m, 48 + 8 * m, 49 + 8 * m, 50 + 8 * m
        A(f'v_mul_f32 v{mu}, 0x3b000000, v{SUM + 4 * m}')
        A(f'v_mul_f32 v{var}, 0x3b000000, v{32 + m}')
        A(f'v_fma_f32 v{var}, -v{mu}, v{mu}, v{var}')
        A(f'v_max_f32 v{var}, 0, v{var}')
        round_bf16(A, m1, mu)
        round_bf16(A, t, var)
        A(f'v_add_f32 v{t}, {EPS:#x}, v{t}')
        round_bf16(A, t, t)
        A(f'v_sqrt_f32 v{t}, v{t}')
        round_bf16(A, t, t)
        A(f'v_rcp_f32 v{r1}, v{t}')
        A(f'v_sub_f32 v{m2}, v{mu}, v{m1}')
        A(f'v_mul_f32 v{m2}, v{m2}, v{r1}')
        round_bf16(A, m2, m2)
        A(f'v_mul_f32 v{t}, v{var}, v{r1}')
        A(f'v_mul_f32 v{t}, v{t}, v{r1}')
        round_bf16(A, t, t)
        A(f'v_add_f32 v{t}, {EPS:#x}, v{t}')
        round_bf16(A, t, t)
        A(f'v_sqrt_f32 v{t}, v{t}')
        round_bf16(A, t, t)
        A(f'v_rcp_f32 v{r2}, v{t}')
        A(f'v_mul_f32 v{60 + 2 * m}, v{r1}, v{r2}')
        A(f'v_fma_f32 v{t}, v{m1}, v{r1}, v{m2}')
        A(f'v_mul_f32 v{t}, v{t}, v{r2}')
        A(f'v_sub_f32 v{61 + 2 * m}, 0, v{t}')
    A(f'''
    v_mov_b32 v64, {hex(f2u(GC1))}
    v_mov_b32 v65, {hex(f2u(GC1))}
    v_mov_b32 v66, {hex(f2u(GC2))}
    v_mov_b32 v67, {hex(f2u(GC2))}
    s_lshl_b32 s45, s54, 3
    s_lshl_b32 s46, s22, 1
    s_add_u32 s45, s45, s46
    s_mul_i32 s45, s45, {56 * 1024}
    s_mul_i32 s46, s55, 7
    s_lshr_b32 s47, s46, 1
    s_lshl_b32 s47, s47, 10
    s_add_u32 s45, s45, s47
    s_add_u32 s45, s45, {WS_H1}
    v_add_u32 v10, s45, v5
    v_add_u32 v11, {56 * 1024}, v10
    s_and_b32 s46, s55, 1
    ''')
    outerA = A; A = Asm()
    for ft in range(7):
        A(f'''
        v_lshlrev_b32 v68, 16, v{228 + 2 * ft}
        v_and_b32 v69, 0xffff0000, v{228 + 2 * ft}
        v_lshlrev_b32 v70, 16, v{229 + 2 * ft}
        v_and_b32 v71, 0xffff0000, v{229 + 2 * ft}
        ''')
        cs = 200 + 4 * ft
        for m in range(2):
            acc = ACC + 4 * (2 * ft + m); ab = 60 + 2 * m; T = 72 + 4 * m
            for p in range(2):
                A(f'v_pk_fma_f32 v[{T + 2 * p}:{T + 2 * p + 1}], v[{cs + 2 * p}:{cs + 2 * p + 1}], v[{ab}:{ab + 1}], v[{68 + 2 * p}:{69 + 2 * p}] op_sel:[0,1,0] op_sel_hi:[1,1,1]')
            for p in range(2):
                A(f'v_pk_fma_f32 v[{acc + 2 * p}:{acc + 2 * p + 1}], v[{acc + 2 * p}:{acc + 2 * p + 1}], v[{ab}:{ab + 1}], v[{T + 2 * p}:{T + 2 * p + 1}] op_sel:[0,0,0] op_sel_hi:[1,0,1]')
        for m in range(2):
            acc = ACC + 4 * (2 * ft + m); T = 72 + 4 * m
            for p in range(2): A(f'v_pk_mul_f32 v[{T + 2 * p}:{T + 2 * p + 1}], v[{acc + 2 * p}:{acc + 2 * p + 1}], v[{acc + 2 * p}:{acc + 2 * p + 1}]')
        for m in range(2):
            T = 72 + 4 * m
            for p in range(2): A(f'v_pk_fma_f32 v[{T + 2 * p}:{T + 2 * p + 1}], v[{T + 2 * p}:{T + 2 * p + 1}], v[66:67], v[64:65]')
        for m in range(2):
            acc = ACC + 4 * (2 * ft + m); T = 72 + 4 * m
            for p in range(2): A(f'v_pk_mul_f32 v[{T + 2 * p}:{T + 2 * p + 1}], v[{T + 2 * p}:{T + 2 * p + 1}], v[{acc + 2 * p}:{acc + 2 * p + 1}]')
        for k in range(8): A(f'v_exp_f32 v{72 + k}, v{72 + k}')
        for k in range(4): A(f'v_pk_add_f32 v[{72 + 2 * k}:{73 + 2 * k}], v[{72 + 2 * k}:{73 + 2 * k}], 1.0 op_sel_hi:[1,0]')
        for k in range(8): A(f'v_rcp_f32 v{72 + k}, v{72 + k}')
        for m in range(2):
            acc = ACC + 4 * (2 * ft + m); T = 72 + 4 * m
            for p in range(2): A(f'v_pk_mul_f32 v[{acc + 2 * p}:{acc + 2 * p + 1}], v[{acc + 2 * p}:{acc + 2 * p + 1}], v[{T + 2 * p}:{T + 2 * p + 1}]')
        for m in range(2):
            acc = ACC + 4 * (2 * ft + m)
            A(f'v_cvt_pk_bf16_f32 v{RES(ft, m)}, v{acc}, v{acc + 1}')
            A(f'v_cvt_pk_bf16_f32 v{RES(ft, m) + 1}, v{acc + 2}, v{acc + 3}')
        ev = []; od = []
        for m in range(2):
            if ft % 2 == 1: ev.append(f'global_store_dwordx4 v{10 + m}, v[{RES(ft - 1, m)}:{RES(ft - 1, m) + 3}], s[20:21] offset:{1024 * (ft // 2)}' + H1SC)
            if ft == 6: ev.append(f'global_store_dwordx2 v{10 + m}, v[{RES(6, m)}:{RES(6, m) + 1}], s[20:21] offset:3072' + H1SC)
            if ft == 0: od.append(f'global_store_dwordx2 v{10 + m}, v[{RES(0, m)}:{RES(0, m) + 1}], s[20:21] offset:8' + H1SC)
            if ft % 2 == 0 and ft > 0: od.append(f'global_store_dwordx4 v{10 + m}, v[{RES(ft - 1, m)}:{RES(ft - 1, m) + 3}], s[20:21] offset:{1024 * (ft // 2)}' + H1SC)
        if ev:
            A(f's_cmp_eq_u32 s46, 0\n s_cbranch_scc0 {name}_se{ft}')
            for x in ev: A(x)
            A(f'{name}_se{ft}:')
        if od:
            A(f's_cmp_eq_u32 s46, 0\n s_cbranch_scc1 {name}_so{ft}')
            for x in od: A(x)
            A(f'{name}_so{ft}:')
    seg = A; A = outerA
    interleave(A, seg, ([] if ABL('now2') else [w2txt(k) for k in range(w2i, 56)]), first=4, last_frac=0.8)
    stamp(A, 15)
    A(f'''
    s_waitcnt vmcnt(0)
    s_barrier
    s_cmp_eq_u32 s22, 0
    s_cbranch_scc0 {name}_nf3
    s_lshl_b32 s45, s54, 4
    s_add_u32 s45, s45, s55
    s_lshl_b32 s45, s45, 6
    s_add_u32 s45, s45, {WS_F3}
    v_mov_b32 v6, s45
    v_mov_b32 v7, s38
    s_mov_b64 s[52:53], exec
    s_mov_b64 exec, 1
    global_store_dword v6, v7, s[20:21] sc1
    s_mov_b64 exec, s[52:53]
    {name}_nf3:
    ''')

def phase_d(A, name):
    A(f'''
    s_lshr_b32 s60, s26, 3
    s_lshl_b32 s45, s23, 2
    s_add_u32 s60, s60, s45
    s_lshl_b32 s45, s60, 16
    s_lshl_b32 s46, s59, 12
    s_add_u32 s45, s45, s46
    s_lshl_b32 s46, s22, 10
    s_add_u32 s45, s45, s46
    s_add_u32 s45, s45, {WS_HT}
    v_add_u32 v6, s45, v5
    s_lshl_b32 s61, s22, 11
    s_add_u32 s61, s61, 49152
    s_mov_b32 m0, s61
    v_add_u32 v7, 32768, v6
    global_load_lds_dwordx4 v6, s[20:21] sc1
    s_add_u32 m0, s61, 1024
    s_nop 0
    global_load_lds_dwordx4 v7, s[20:21] sc1
    s_lshl_b32 s46, s59, 7
    s_lshl_b32 s47, s22, 5
    s_add_u32 s46, s46, s47
    v_lshlrev_b32 v7, 3, v4
    v_add_u32 v7, s46, v7
    global_load_dwordx2 v[12:13], v7, s[34:35]
    s_lshl_b32 s45, s60, 6
    v_add_u32 v6, s45, v3
    v_lshlrev_b32 v6, 10, v6
    v_add_u32 v14, v6, v7
    ; flags
    s_lshr_b32 s45, s60, 1
    s_lshl_b32 s45, s45, 10
    s_add_u32 s45, s45, {WS_F3}
    v_lshlrev_b32 v6, 6, v3
    v_add_u32 v6, s45, v6
    ''')
    poll_loop(A, f'{name}_p3', 'global_load_dword v15, v6, s[20:21] sc1', 'v_cmp_eq_u32 vcc, s38, v15\n s_cmp_eq_u64 vcc, -1')
    stamp(A, 16)
    A(f'''
    s_mul_i32 s45, s60, {4 * 56}
    s_mul_i32 s46, s22, 14
    s_add_u32 s45, s45, s46
    s_lshl_b32 s45, s45, 10
    s_add_u32 s45, s45, {WS_H1}
    ''')
    for m in range(4): A(f'v_add_u32 v{8 + m}, {m * 56 * 1024}, v5\n v_add_u32 v{8 + m}, s45, v{8 + m}')
    NS = 10; B0 = 16; ACC = B0 + 16 * NS
    def loads(s_):
        st = B0 + 16 * (s_ % NS)
        o = (s_ % 4) * 1024
        if s_ % 4 == 0 and s_ > 0:
            for m in range(4): A(f'v_add_u32 v{8 + m}, 4096, v{8 + m}')
        for m in range(4):
            A(f'global_load_dwordx4 v[{st + 4 * m}:{st + 4 * m + 3}], v{8 + m}, s[20:21] offset:{o}' + H1LD)
    for s_ in range(NS): loads(s_)
    issued = NS
    for s_ in range(14):
        A(f's_waitcnt vmcnt({4 * (issued - s_ - 1)})')
        st = B0 + 16 * (s_ % NS)
        for i in range(4):
            for m in range(4):
                acc = ACC + 4 * (4 * i + m)
                cin = '0' if s_ == 0 else f'v[{acc}:{acc+3}]'
                A(f'v_mfma_f32_16x16x32_bf16 v[{acc}:{acc+3}], a[{16 * s_ + 4 * i}:{16 * s_ + 4 * i + 3}], v[{st + 4 * m}:{st + 4 * m + 3}], {cin}')
        if issued < 14:
            loads(issued); issued += 1
        if s_ in (0, 3, 7, 11): stamp(A, f'd{s_}')
    stamp(A, 17)
    A(f's_mul_i32 s45, s22, {3 * 4096}\n v_add_u32 v15, s45, v5')
    for w in range(4):
        A(f's_cmp_eq_u32 s22, {w}\n s_cbranch_scc0 {name}_r{w}')
        for idx in range(3):
            i = (w + 1 + idx) & 3
            for m in range(4):
                acc = ACC + 4 * (4 * i + m)
                A(f'ds_write_b128 v15, v[{acc}:{acc+3}] offset:{idx * 4096 + m * 1024}')
        if w != 0:
            for k in range(16): A(f'v_mov_b32 v{ACC + k}, v{ACC + 16 * w + k}')
        A('s_waitcnt lgkmcnt(0)\n s_barrier')
        for q in range(3):
            wp = (w + 1 + q) & 3
            idx = (w - wp - 1) & 3
            for m in range(4):
                A(f'ds_read_b128 v[{32 + 16 * q + 4 * m}:{32 + 16 * q + 4 * m + 3}], v5 offset:{(wp * 3 + idx) * 4096 + m * 1024}')
        A(f's_branch {name}_fin\n {name}_r{w}:')
    A(f'{name}_fin:')
    A(f'''
    v_bfe_u32 v8, v2, 2, 2
    v_lshl_add_u32 v8, v4, 2, v8
    v_lshlrev_b32 v8, 6, v8
    v_and_b32 v9, 3, v2
    v_lshlrev_b32 v9, 3, v9
    v_add3_u32 v8, v8, v9, s61
    ''')
    for m in range(4): A(f'ds_read_b64_tr_b16 v[{16 + 2 * m}:{17 + 2 * m}], v8 offset:{1024 * (m >> 1) + 32 * (m & 1)}')
    A(f'''
    v_lshlrev_b32 v24, 16, v12
    v_and_b32 v25, 0xffff0000, v12
    v_lshlrev_b32 v26, 16, v13
    v_and_b32 v27, 0xffff0000, v13
    s_waitcnt lgkmcnt(0)
    ''')
    for m in range(4):
        acc = ACC + 4 * m
        for q in range(3):
            for pr in range(2):
                A(f'v_pk_add_f32 v[{acc + 2 * pr}:{acc + 2 * pr + 1}], v[{acc + 2 * pr}:{acc + 2 * pr + 1}], v[{32 + 16 * q + 4 * m + 2 * pr}:{32 + 16 * q + 4 * m + 2 * pr + 1}]')
        for pr in range(2):
            y0, y1 = acc + 2 * pr, acc + 2 * pr + 1
            A(f'''
            v_cvt_pk_bf16_f32 v{y0}, v{y0}, v{y1}
            v_and_b32 v{y1}, 0xffff0000, v{y0}
            v_lshlrev_b32 v{y0}, 16, v{y0}
            v_pk_add_f32 v[{y0}:{y1}], v[{y0}:{y1}], v[{24 + 2 * pr}:{25 + 2 * pr}]
            v_cvt_pk_bf16_f32 v{y0}, v{y0}, v{y1}
            v_and_b32 v{y1}, 0xffff0000, v{y0}
            v_lshlrev_b32 v{y0}, 16, v{y0}
            v_lshlrev_b32 v28, 16, v{16 + 2 * m + pr}
            v_and_b32 v29, 0xffff0000, v{16 + 2 * m + pr}
            v_pk_add_f32 v[{y0}:{y1}], v[{y0}:{y1}], v[28:29]
            v_cvt_pk_bf16_f32 v{30 + pr}, v{y0}, v{y1}
            ''')
        A(f'v_add_u32 v9, {m * 16384}, v14')
        A(f'global_store_dwordx2 v9, v[30:31], s[36:37]')
        A('s_nop 1')

def gen_mega(name='mega_kernel'):
    A = Asm()
    stamp(A, 0)
    A(f'''
    s_cmp_ge_u32 s2, 256
    s_cbranch_scc1 {name}_end
    s_load_dwordx16 s[4:19], s[0:1], 0
    s_load_dwordx2 s[20:21], s[0:1], 128
    s_load_dwordx2 s[24:25], s[0:1], 64
    s_load_dwordx4 s[28:31], s[0:1], 80
    s_load_dwordx4 s[32:35], s[0:1], 96
    s_load_dwordx2 s[36:37], s[0:1], 112
    v_lshrrev_b32 v1, 6, v0
    v_and_b32 v2, 63, v0
    v_and_b32 v3, 15, v2
    v_lshrrev_b32 v4, 4, v2
    v_readfirstlane_b32 s22, v1
    s_and_b32 s23, s2, 7
    s_lshr_b32 s26, s2, 3
    s_lshl_b32 s27, s23, 5
    s_add_u32 s27, s27, s26
    s_waitcnt lgkmcnt(0)
    s_load_dword s38, s[20:21], {WS_TAG}
    ''')
    phase_a(A, name)
    phase_b(A, name)
    phase_c(A, name)
    phase_d(A, name)
    if STAMPS:
        A('s_waitcnt vmcnt(0)')
        stamp_flush(A, 0, 18, tmpv=8)
    A(f'{name}_end:\n s_endpgm')
    A.resolve()
    return A.text(), dict(name=name, grid=256, block=256, lds=LDS_TOTAL, nvgpr=256, accum=256, total=512)
if __name__ == '__main__':
    import sys
    from build import build
    N = 'sequential_preLN__ssm_conv_s4__mixer_channel_mlp__prompt'
    k = gen_mega(N + '_kernel')
    path = sys.argv[1] if len(sys.argv) > 1 else f'cdna_kernels/{N}.s'
    build([k], path, single=True)
    import common
    if common.STAMPS: open(path + '.names', 'w').write(','.join(common._stamp_state['names']))
```

```python
from common import *
ABL = lambda x: x in os.environ.get('ABL', '').split(',')
ENV = lambda k, d: type(d)(os.environ.get(k, d))

L_XY = 0; WSZ = 14416; PITCH = 272; YOFF = 21 * PITCH
L_T = 4 * WSZ; TSZ = 2816
L_W2 = L_T + 4 * TSZ
UP = 114688
L_XI = UP
L_RED = UP
L_U = UP + 16384; USZ = 4608
L_R = L_U + 2 * USZ; RSZ = 4160
L_CSX = UP
L_MISC = UP + 4096
W1S = 0
HS = UP
LDS_TOTAL = 163840
WS_XT2 = WS_KR
H1LD = ' sc1'

def poll_loop(A, name, loads, check):
    A(f's_mov_b32 s79, {SPIN_MAX}')
    A(f'{name}:')
    A(loads)
    A('s_waitcnt vmcnt(0)')
    A(check)
    A(f's_cbranch_scc1 {name}_ok')
    A(f's_sub_u32 s79, s79, 1\n s_cmp_eq_u32 s79, 0\n s_cbranch_scc0 {name}\n {name}_ok:')

def lane0_store(A, text):
    A('s_mov_b64 s[52:53], exec\n s_mov_b64 exec, 1\n' + text + '\n s_mov_b64 exec, s[52:53]')

def phase_a(A, N):
    A(f'''
    s_lshl_b32 s40, s2, 3
    s_lshl_b32 s41, s22, 1
    s_add_u32 s40, s40, s41
    s_lshl_b32 s41, s40, 10
    v_lshlrev_b32 v5, 4, v2
    v_add_u32 v6, s41, v5
    s_lshl_b32 s42, s26, 6
    s_lshl_b32 s43, s22, 4
    s_add_u32 s42, s42, s43
    v_lshrrev_b32 v8, 3, v2
    v_add_u32 v8, s42, v8
    v_lshlrev_b32 v8, 10, v8
    v_and_b32 v7, 7, v2
    v_lshlrev_b32 v7, 4, v7
    s_lshl_b32 s42, s23, 7
    v_add3_u32 v24, v8, v7, s42
    v_add_u32 v25, 8192, v24
    s_lshl_b32 s43, s22, 11
    s_add_u32 s43, s43, {L_XI}
    s_lshr_b32 s42, s22, 1
    s_lshl_b32 s44, s27, 1
    s_add_u32 s44, s44, s42
    s_and_b32 s45, s22, 1
    s_lshl_b32 s45, s45, 6
    s_lshl_b32 s46, s44, 7
    s_add_u32 s46, s46, s45
    v_add_u32 v26, s46, v2
    v_lshlrev_b32 v26, 1, v26
    s_lshl_b32 s46, s44, 1
    v_mov_b32 v27, s46
    s_mov_b32 m0, s43
    s_waitcnt lgkmcnt(0)
    global_load_dwordx4 v[8:11], v6, s[4:5]
    global_load_dwordx4 v[12:15], v6, s[4:5] offset:1024
    global_load_lds_dwordx4 v24, s[4:5]
    s_add_u32 m0, s43, 1024
    s_load_dword s38, s[20:21], {WS_TAG}
    global_load_lds_dwordx4 v25, s[4:5]
    global_load_ushort v16, v26, s[6:7]
    global_load_ushort v17, v26, s[8:9]
    global_load_ushort v18, v26, s[10:11]
    global_load_ushort v19, v26, s[12:13]
    global_load_ushort v20, v26, s[14:15]
    global_load_ushort v21, v26, s[16:17]
    global_load_ushort v22, v27, s[18:19]
    global_load_ushort v23, v27, s[24:25]
    s_cmp_lt_u32 s26, 4
    s_cbranch_scc0 {N}_ncw
    s_getpc_b64 s[62:63]
    s_and_b32 s62, s62, 0xffffff00
    v_lshlrev_b32 v6, 7, v0
    v_min_u32 v6, ({N}_end - {N} - 1024), v6
    global_load_dword v250, v6, s[62:63]
    v_add_u32 v6, 32768, v6
    v_min_u32 v6, ({N}_end - {N} - 1024), v6
    global_load_dword v251, v6, s[62:63]
    {N}_ncw:
    ''')
    if not ABL('notlb'):
        A(f'''
        s_cmp_eq_u32 s22, 1
        s_cbranch_scc0 {N}_ntlb
        v_min_u32 v6, 9, v2
        v_lshlrev_b32 v6, 21, v6
        v_add_u32 v6, 0x1000, v6
        global_load_dword v252, v6, s[20:21]
        v_mov_b32 v6, 0
        global_load_dword v253, v6, s[36:37]
        global_load_dword v254, v6, s[28:29]
        global_load_dword v255, v6, s[32:33]
        {N}_ntlb:
        ''')
    A(f'''
    s_getreg_b32 s39, hwreg(HW_REG_XCC_ID)
    s_and_b32 s39, s39, 15
    ''')
    stamp(A, 1)
    A('v_lshlrev_b32 v33, 3, v0\n v_sub_u32 v33, 2047, v33\n s_movk_i32 s50, 0x4280')
    for e in range(9):
        A(f'''
        v_subrev_u32 v34, {e}, v33
        v_cvt_f32_u32 v35, v34
        v_cvt_pk_bf16_f32 v35, v35, v35
        v_and_b32 v35, 0xffff, v35
        v_subrev_u32 v35, s50, v35
        v_cmp_gt_u32 vcc, 128, v34
        v_cndmask_b32 v35, v35, v34, vcc
        v_and_b32 v35, 0x3ff, v35
        v_min_u32 v35, 703, v35
        v_lshlrev_b32 v35, 2, v35
        v_add_u32 v{24 + e}, {L_T}, v35
        ''')
    A(f'''
    v_and_b32 v34, 31, v2
    v_lshrrev_b32 v35, 5, v2
    s_mul_i32 s50, s22, {TSZ}
    s_add_u32 s50, s50, {L_T}
    v_cmp_eq_u32 vcc, 1, v35
    v_lshlrev_b32 v36, 5, v34
    v_lshlrev_b32 v37, 4, v35
    v_add3_u32 v40, v36, v37, s50
    ''')
    for r in range(4, 12):
        if r < 8:
            c0, s0 = 256 + (r - 4), 4
            c1, s1 = 384 + 64 * ((r - 4) >> 1) + ((r - 4) & 1), 2
        else:
            c0, s0 = 512 + 32 * (r - 8), 1
            c1, s1 = (640, 1) if r == 8 else (672, 1)
        A(f'''
        v_mul_u32_u24 v36, {4 * s0}, v34
        v_add_u32 v36, {4 * c0}, v36
        v_mul_u32_u24 v37, {4 * s1}, v34
        v_add_u32 v37, {4 * c1}, v37
        v_cndmask_b32 v36, v36, v37, vcc
        v_add_u32 v{37 + r}, s50, v36
        ''')
    A(f'''
    v_mov_b32 v50, 0
    v_mov_b32 v51, 0
    v_mov_b32 v52, 0
    v_mov_b32 v53, 0
    v_lshlrev_b32 v55, 4, v0
    v_add_u32 v55, {L_U}, v55
    v_cmp_gt_u32 vcc, 30, v0
    s_and_saveexec_b64 s[52:53], vcc
    ds_write_b128 v55, v[50:53]
    ds_write_b128 v55, v[50:53] offset:{USZ}
    s_mov_b64 exec, s[52:53]
    v_cmp_gt_u32 vcc, 2, v0
    s_and_saveexec_b64 s[52:53], vcc
    ''')
    for k in range(4): A(f'ds_write_b128 v55, v[50:53] offset:{L_R - L_U + k * RSZ + 2 * 2064}')
    A('s_mov_b64 exec, s[52:53]')
    A(f'''
    v_bfe_u32 v50, v2, 2, 2
    v_lshl_add_u32 v51, v4, 3, v50
    v_lshlrev_b32 v51, 7, v51
    v_and_b32 v52, 3, v2
    v_lshlrev_b32 v52, 3, v52
    s_lshl_b32 s42, s22, 5
    s_add_u32 s42, s42, {L_XI}
    v_add3_u32 v51, v51, v52, s42
    s_lshl_b32 s42, s23, 6
    s_lshl_b32 s43, s22, 4
    s_add_u32 s42, s42, s43
    v_add_u32 v53, s42, v3
    v_lshlrev_b32 v53, 12, v53
    v_lshlrev_b32 v54, 4, v4
    s_lshl_b32 s42, s26, 7
    s_add_u32 s42, s42, {WS_XT2}
    v_add3_u32 v53, v53, v54, s42
    s_lshl_b32 s47, s26, 2
    s_add_u32 s47, s47, s22
    v_lshrrev_b32 v56, 3, v2
    s_lshl_b32 s48, s47, 5
    v_add_u32 v56, s48, v56
    v_lshlrev_b32 v56, 10, v56
    v_and_b32 v57, 7, v2
    v_lshlrev_b32 v57, 4, v57
    s_lshl_b32 s48, s23, 7
    v_add3_u32 v56, v56, v57, s48
    s_lshl_b32 s49, s22, 12
    s_add_u32 s49, s49, {L_W2}
    s_lshr_b32 s55, s26, 1
    ''')
    for j in range(7):
        A(f'''
        v_add_u32 v60, {64 * j}, v2
        v_mul_u32_u24 v61, 4682, v60
        v_lshrrev_b32 v61, 16, v61
        v_mul_u32_u24 v62, 14, v61
        v_sub_u32 v62, v60, v62
        v_mul_u32_u24 v61, 3584, v61
        v_lshlrev_b32 v62, 4, v62
        v_add_u32 v{232 + j}, v61, v62
        ''')
    A('s_mul_i32 s56, s55, 224')
    for j in range(7): A(f'v_add_u32 v{232 + j}, s56, v{232 + j}')
    A('s_waitcnt vmcnt(8) lgkmcnt(0)\n s_barrier')
    stamp(A, 2)
    A(f'''
    ds_read_b64_tr_b16 v[96:97], v51
    ds_read_b64_tr_b16 v[98:99], v51 offset:512
    ds_read_b64_tr_b16 v[100:101], v51 offset:4096
    ds_read_b64_tr_b16 v[102:103], v51 offset:4608
    s_waitcnt lgkmcnt(0)
    global_store_dwordx4 v53, v[96:99], s[20:21] sc1
    global_store_dwordx4 v53, v[100:103], s[20:21] offset:64 sc1
    ''')
    for row in range(2):
        for k in range(4):
            src = 8 + 4 * row + k
            A(f'v_lshlrev_b32 v{64 + 8 * row + 2 * k}, 16, v{src}')
            A(f'v_and_b32 v{65 + 8 * row + 2 * k}, 0xffff0000, v{src}')
    A(f's_cmp_lt_u32 s2, 112\n s_cbranch_scc0 {N}_nw2')
    for i in range(4):
        A(f's_add_u32 m0, s49, {1024 * i}\n v_add_u32 v57, {8192 * i}, v56\n global_load_lds_dwordx4 v57, s[32:33]')
    A(f'{N}_nw2:')
    for row in range(2):
        b = 64 + 8 * row
        A(f'v_add_f32 v{80 + row}, v{b}, v{b + 1}')
        A(f'v_add_f32 v{82 + row}, v{b + 2}, v{b + 3}')
        A(f'v_add_f32 v{84 + row}, v{b + 4}, v{b + 5}')
        A(f'v_add_f32 v{86 + row}, v{b + 6}, v{b + 7}')
    for row in range(2):
        A(f'v_add_f32 v{80 + row}, v{80 + row}, v{82 + row}')
        A(f'v_add_f32 v{84 + row}, v{84 + row}, v{86 + row}')
    for row in range(2): A(f'v_add_f32 v{80 + row}, v{80 + row}, v{84 + row}')
    allsum64(A, [80, 81], [82, 83])
    for row in range(2): A(f'v_mul_f32 v{80 + row}, 0x3b000000, v{80 + row}')
    for row in range(2):
        b = 64 + 8 * row
        for k in range(8): A(f'v_sub_f32 v{b + k}, v{b + k}, v{80 + row}')
    for row in range(2):
        b = 64 + 8 * row
        A(f'v_mul_f32 v{84 + row}, v{b}, v{b}')
        A(f'v_mul_f32 v{86 + row}, v{b + 1}, v{b + 1}')
    for k in range(2, 8, 2):
        for row in range(2):
            b = 64 + 8 * row
            A(f'v_fmac_f32 v{84 + row}, v{b + k}, v{b + k}')
            A(f'v_fmac_f32 v{86 + row}, v{b + k + 1}, v{b + k + 1}')
    for row in range(2): A(f'v_add_f32 v{84 + row}, v{84 + row}, v{86 + row}')
    allsum64(A, [84, 85], [82, 83])
    for row in range(2):
        A(f'v_mul_f32 v{84 + row}, 0x3b000000, v{84 + row}')
    for row in range(2): A(f'v_cvt_pk_bf16_f32 v{84 + row}, v{84 + row}, v{84 + row}')
    for row in range(2): A(f'v_lshlrev_b32 v{84 + row}, 16, v{84 + row}')
    for row in range(2): A(f'v_add_f32 v{84 + row}, {EPS:#x}, v{84 + row}')
    for row in range(2): A(f'v_cvt_pk_bf16_f32 v{84 + row}, v{84 + row}, v{84 + row}')
    for row in range(2): A(f'v_lshlrev_b32 v{84 + row}, 16, v{84 + row}')
    for row in range(2): A(f'v_sqrt_f32 v{84 + row}, v{84 + row}')
    A(f'''
    s_mul_i32 s38, s38, 0x9e3779b1
    s_add_u32 s38, s38, 0x7f4a7c15
    v_cvt_pk_bf16_f32 v88, v80, v84
    v_cvt_pk_bf16_f32 v90, v81, v85
    v_mov_b32 v89, s38
    v_mov_b32 v91, s38
    s_lshl_b32 s50, s40, 3
    s_add_u32 s50, s50, {WS_GR}
    v_mov_b32 v92, s50
    s_cmp_lt_u32 s2, 112
    s_cbranch_scc1 {N}_wd1
    s_waitcnt vmcnt(0)
    s_branch {N}_wd2
    {N}_wd1:
    s_waitcnt vmcnt(4)
    {N}_wd2:
    s_barrier
    ''')
    lane0_store(A, 'global_store_dwordx4 v92, v[88:91], s[20:21] sc1')
    stamp(A, 3)
    A(f'''
    s_cmp_eq_u32 s22, 0
    s_cbranch_scc0 {N}_nmw
    s_mul_i32 s45, s2, {56 * 128}
    v_min_u32 v6, 55, v2
    v_lshlrev_b32 v6, 7, v6
    v_add_u32 v6, s45, v6
    global_load_dword v250, v6, s[28:29]
    v_min_u32 v6, 27, v2
    v_lshlrev_b32 v6, 7, v6
    global_load_dword v251, v6, s[30:31]
    v_min_u32 v6, 7, v2
    v_lshlrev_b32 v6, 7, v6
    global_load_dword v252, v6, s[34:35]
    {N}_nmw:
    ''')
    if ABL('w1wait'):
        A('s_waitcnt vmcnt(0)')
        stamp(A, '3w')
    A(f's_add_u32 s57, s22, 12\n s_mul_i32 s56, s57, {32 * 3584}\n s_mul_i32 s57, s57, {32 * 224}')
    early = [f's_add_u32 m0, s57, {W1S + j * 1024}\n v_add_u32 v239, s56, v{232 + j}\n global_load_lds_dwordx4 v239, s[28:29]' for j in range(7)]
    outerA = A; A = Asm()
    for i in range(16, 24): A(f'v_lshlrev_b32 v{i}, 16, v{i}')
    A(f'v_mul_f32 v22, {LOG2E:#x}, v22\n v_exp_f32 v22, v22')
    round_bf16(A, 22, 22)
    A(f'''
    v_mul_f32 v16, v22, v16
    v_mul_f32 v17, v22, v17
    v_mul_f32 v18, v22, v18
    v_mul_f32 v19, v22, v19
    v_mul_f32 v16, {LOG2E:#x}, v16
    v_mul_f32 v17, {INV2PI:#x}, v17
    ''')
    Z1, Z2, Z4, Z8, Z32, Z256 = 56, 58, 60, 62, 64, 66
    def cm(D, X, Yr, T):
        return [f'v_pk_mul_f32 v[{T}:{T+1}], v[{X}:{X+1}], v[{Yr}:{Yr+1}] op_sel_hi:[1,0]',
                f'v_pk_fma_f32 v[{D}:{D+1}], v[{X}:{X+1}], v[{Yr}:{Yr+1}], v[{T}:{T+1}] op_sel:[1,1,0] op_sel_hi:[0,1,1] neg_lo:[1,0,0]']
    pw = [(Z1, 1), (Z8, 8), (Z32, 32), (Z256, 256)]
    for k, (d, p) in enumerate(pw):
        lit = '1.0' if p == 1 else hex(f2u(p))
        A(f'v_mul_f32 v{100 + 2 * k}, {lit}, v16\n v_mul_f32 v{101 + 2 * k}, {lit}, v17')
    for x in cm(50, 20, 18, 52): A(x)
    for k in range(4): A(f'v_exp_f32 v{100 + 2 * k}, v{100 + 2 * k}\n v_fract_f32 v{101 + 2 * k}, v{101 + 2 * k}')
    for k, (d, p) in enumerate(pw): A(f'v_cos_f32 v{d}, v{101 + 2 * k}\n v_sin_f32 v{d + 1}, v{101 + 2 * k}')
    for k, (d, p) in enumerate(pw): A(f'v_pk_mul_f32 v[{d}:{d + 1}], v[{d}:{d + 1}], v[{100 + 2 * k}:{101 + 2 * k}] op_sel_hi:[1,0]')
    A(f'''
    s_mul_i32 s50, s22, {WSZ}
    s_add_u32 s50, s50, {L_XY}
    v_lshlrev_b32 v34, 2, v2
    v_add_u32 v34, s50, v34
    v_mov_b32 v68, 1.0
    v_mov_b32 v69, 0
    v_mov_b32 v70, v62
    v_mov_b32 v71, v63
    v_mov_b32 v84, v50
    v_mov_b32 v85, v51
    ''')
    a_, b_, c_ = cm(Z2, Z1, Z1, 52), cm(72, Z8, Z8, 76), None
    A(a_[0]); A(b_[0]); A(a_[1]); A(b_[1])
    a_, b_ = cm(Z4, Z2, Z2, 52), cm(74, 72, Z8, 76)
    A(a_[0]); A(b_[0]); A(a_[1]); A(b_[1])
    Y = [68, 70, 72, 74]; TM = [76, 78, 80, 82]
    def pX(row, reg, t): return [f'v_cvt_pk_bf16_f32 v{t}, v{reg}, v{reg + 1}', f'ds_write_b32 v34, v{t} offset:{row * PITCH}']
    def pY(row, reg, t): return [f'v_cvt_pk_bf16_f32 v{t}, v{reg}, -v{reg + 1}', f'ds_write_b32 v34, v{t} offset:{YOFF + row * PITCH}']
    sy = []
    for it in range(8):
        cv = [pY(4 * it + c, Y[c], 86 + c) for c in range(4)]
        sy += [x[0] for x in cv]
        if it < 7: sy += [cm(Y[c], Y[c], Z32, TM[c])[0] for c in range(4)]
        sy += [x[1] for x in cv]
        if it < 7: sy += [cm(Y[c], Y[c], Z32, TM[c])[1] for c in range(4)]
    sa = pX(0, 50, 90)
    for p in range(1, 8): sa += cm(50, 50, Z1, 52) + pX(p, 50, 90)
    Wc = 84; sb = []
    def wstep(row): return cm(Wc, Wc, Z256, 92) + pX(row, Wc, 91)
    def bstep(src, z, row): return cm(94, src, z, 96) + pX(row, 94, 98)
    sb += wstep(8) + bstep(Wc, Z2, 9) + bstep(94, Z2, 10) + bstep(94, Z2, 11) + wstep(12) + bstep(Wc, Z4, 13) + wstep(14) + bstep(Wc, Z4, 15)
    for row in range(16, 21): sb += wstep(row)
    iy = ia = ib = 0
    while iy < len(sy) or ia < len(sa) or ib < len(sb):
        for _ in range(2):
            if iy < len(sy): A(sy[iy]); iy += 1
        if ib < len(sb): A(sb[ib]); ib += 1
        if iy < len(sy): A(sy[iy]); iy += 1
        if ia < len(sa): A(sa[ia]); ia += 1
        elif ib < len(sb): A(sb[ib]); ib += 1
    seg = A; A = outerA
    interleave(A, seg, early, first=2, last_frac=0.9)
    stamp(A, 5)
    A(f'''
    v_and_b32 v38, 31, v2
    v_lshrrev_b32 v39, 5, v2
    v_mul_u32_u24 v38, {PITCH}, v38
    v_lshlrev_b32 v39, 4, v39
    v_add3_u32 v35, v38, v39, s50
    ''')
    A.auto(True)
    for t in range(8):
        A(f'ds_read_b128 v[{88 + 8 * t}:{91 + 8 * t}], v35 offset:{32 * t}')
        A(f'ds_read_b128 v[{92 + 8 * t}:{95 + 8 * t}], v35 offset:{YOFF + 32 * t}')
    for t in range(8):
        b = 88 + 8 * t; acc = 160 if t % 2 == 0 else 176
        cin = '0' if t < 2 else f'v[{acc}:{acc + 15}]'
        A(f'v_mfma_f32_32x32x16_bf16 v[{acc}:{acc + 15}], v[{b}:{b+3}], v[{b+4}:{b+7}], {cin}')
    A.auto(False)
    for r in range(12): A(f'v_add_f32 v{160 + r}, v{160 + r}, v{176 + r}')
    for r in range(4): A(f'ds_write_b32 v40, v{160 + r} offset:{4 * r}')
    for r in range(4, 12): A(f'ds_write_b32 v{37 + r}, v{160 + r}')
    A('s_waitcnt lgkmcnt(0)\n s_barrier')
    stamp(A, 6)
    for ch in range(2):
        for e in range(9):
            A(f'ds_read_b32 v{64 + 18 * ch + e}, v{24 + e} offset:{TSZ * 2 * ch}')
            A(f'ds_read_b32 v{73 + 18 * ch + e}, v{24 + e} offset:{TSZ * (2 * ch + 1)}')
    A(f'''
    v_lshlrev_b32 v54, 4, v0
    v_add_u32 v54, {L_R + 32}, v54
    v_cmp_eq_u32 vcc, 255, v0
    s_waitcnt lgkmcnt(0)
    ''')
    for ch in range(2):
        b = 64 + 18 * ch
        for e in range(9): A(f'v_add_f32 v{b + e}, v{b + e}, v{b + 9 + e}')
        A(f'v_cndmask_b32_e64 v{b + 8}, v{b + 8}, 0, vcc')
        for k in range(4):
            A(f'v_cvt_pk_bf16_f32 v{104 + 8 * ch + k}, v{b + 2 * k}, v{b + 2 * k + 1}')
            A(f'v_cvt_pk_bf16_f32 v{108 + 8 * ch + k}, v{b + 2 * k + 1}, v{b + 2 * k + 2}')
        A(f'ds_write_b128 v54, v[{104 + 8 * ch}:{107 + 8 * ch}] offset:{2 * RSZ * ch}')
        A(f'ds_write_b128 v54, v[{108 + 8 * ch}:{111 + 8 * ch}] offset:{2 * RSZ * ch + RSZ}')
    stamp(A, 7)

def phase_b(A, N):
    A(f'v_lshlrev_b32 v5, 6, v0\n v_add_u32 v5, {WS_GR}, v5')
    loads = '\n'.join(f'global_load_dwordx4 v[{64 + 4 * k}:{67 + 4 * k}], v5, s[20:21] offset:{16 * k} sc1' for k in range(4))
    chk = 'v_cmp_eq_u32 vcc, s38, v65\n'
    for r in (67, 69, 71, 73, 75, 77, 79):
        chk += f'v_cmp_eq_u32 s[52:53], s38, v{r}\n s_and_b64 vcc, vcc, s[52:53]\n'
    chk += 's_cmp_eq_u64 vcc, -1'
    poll_loop(A, f'{N}_p1', loads, chk)
    stamp(A, 8)
    A(f'''
    s_lshl_b32 s45, s27, 13
    s_add_u32 s45, s45, {WS_XT2}
    v_lshlrev_b32 v5, 4, v0
    v_add_u32 v6, s45, v5
    v_add_u32 v7, 4096, v6
    global_load_dwordx4 v[80:83], v6, s[20:21] sc1
    global_load_dwordx4 v[84:87], v7, s[20:21] sc1
    s_lshr_b32 s55, s26, 1
    s_lshr_b32 s42, s22, 1
    s_and_b32 s44, s22, 1
    ''')
    A(f'''
    s_cmp_lt_u32 s2, 112
    s_cbranch_scc0 {N}_nw2b
    v_bfe_u32 v50, v2, 2, 2
    v_and_b32 v52, 3, v2
    v_lshlrev_b32 v52, 3, v52
    v_lshl_add_u32 v50, v4, 2, v50
    v_lshlrev_b32 v50, 7, v50
    v_add3_u32 v50, v50, v52, s49
    s_mul_i32 s48, s23, {4 * 56}
    s_add_u32 s48, s48, s47
    s_lshl_b32 s48, s48, 10
    s_add_u32 s48, s48, {WS_W2P}
    v_lshlrev_b32 v53, 4, v2
    v_add_u32 v53, s48, v53
    ''')
    for i in range(4):
        A(f'ds_read_b64_tr_b16 v[{100 + 4 * i}:{101 + 4 * i}], v50 offset:{32 * i}')
        A(f'ds_read_b64_tr_b16 v[{102 + 4 * i}:{103 + 4 * i}], v50 offset:{32 * i + 2048}')
    A('s_waitcnt lgkmcnt(0)')
    for i in range(4):
        A(f'v_add_u32 v54, {56 * 1024 * i}, v53')
        A(f'global_store_dwordx4 v54, v[{100 + 4 * i}:{103 + 4 * i}], s[20:21] sc1')
    A(f'{N}_nw2b:')
    A(f's_mul_i32 s56, s22, {3 * 32 * 3584}\n s_mul_i32 s57, s22, {3 * 32 * 224}')
    w1f = [f's_add_u32 m0, s57, {W1S + b * 32 * 224 + j * 1024}\n v_add_u32 v239, {b * 32 * 3584}, v{232 + j}\n v_add_u32 v239, s56, v239\n global_load_lds_dwordx4 v239, s[28:29]' for b in range(3) for j in range(7)]
    for e in range(8):
        p = 64 + 2 * e
        A(f'v_and_b32 v{p + 1}, 0xffff0000, v{p}\n v_lshlrev_b32 v{p}, 16, v{p}\n v_rcp_f32 v{p + 1}, v{p + 1}')
    A(f'''
    v_lshlrev_b32 v56, 5, v3
    v_lshlrev_b32 v57, 4, v4
    v_add_u32 v56, v56, v57
    s_lshl_b32 s45, s44, 8
    s_mul_i32 s46, s42, {USZ}
    s_sub_u32 s46, s46, s45
    s_add_u32 s46, s46, {L_U + 448}
    v_add_u32 v60, s46, v56
    v_lshrrev_b32 v58, 1, v3
    v_lshlrev_b32 v58, 2, v58
    v_sub_u32 v58, v57, v58
    v_and_b32 v59, 1, v3
    v_sub_u32 v59, 1, v59
    v_mul_u32_u24 v59, {RSZ}, v59
    v_add_u32 v58, v58, v59
    s_mul_i32 s46, s42, {2 * RSZ}
    s_sub_u32 s46, s46, s45
    s_add_u32 s46, s46, {L_R + 4092}
    v_add_u32 v58, s46, v58
    ''')
    for k in range(4): A(f'v_subrev_u32 v{12 + k}, {512 * (2 * k + 1)}, v58')
    A(f's_cmp_lt_u32 s2, 112\n s_cbranch_scc1 {N}_wx1\n s_waitcnt vmcnt(0)\n s_branch {N}_wx2\n {N}_wx1:\n s_waitcnt vmcnt(4)\n {N}_wx2:')
    stamp(A, '8b')
    for ch in range(2):
        b = 88 + 8 * ch; src = 80 + 4 * ch
        for k in range(4):
            A(f'v_lshlrev_b32 v{b + 2 * k}, 16, v{src + k}')
            A(f'v_and_b32 v{b + 2 * k + 1}, 0xffff0000, v{src + k}')
    for e in range(8):
        for ch in range(2): A(f'v_sub_f32 v{88 + 8 * ch + e}, v{88 + 8 * ch + e}, v{64 + 2 * e}')
    for ch in range(2):
        for k in range(4): A(f'v_cvt_pk_bf16_f32 v{104 + 4 * ch + k}, v{88 + 8 * ch + 2 * k}, v{89 + 8 * ch + 2 * k}')
    for ch in range(2):
        for k in range(4):
            A(f'v_lshlrev_b32 v{88 + 8 * ch + 2 * k}, 16, v{104 + 4 * ch + k}')
            A(f'v_and_b32 v{89 + 8 * ch + 2 * k}, 0xffff0000, v{104 + 4 * ch + k}')
    for e in range(8):
        for ch in range(2): A(f'v_mul_f32 v{88 + 8 * ch + e}, v{88 + 8 * ch + e}, v{65 + 2 * e}')
    for ch in range(2):
        for k in range(4): A(f'v_cvt_pk_bf16_f32 v{104 + 4 * ch + k}, v{88 + 8 * ch + 2 * k}, v{89 + 8 * ch + 2 * k}')
    A(f'''
    v_add_u32 v5, {L_U + 480}, v5
    ds_write_b128 v5, v[104:107]
    ds_write_b128 v5, v[108:111] offset:{USZ}
    s_waitcnt lgkmcnt(0)
    s_barrier
    ''')
    stamp(A, 9)
    A(f'''
    v_lshlrev_b32 v56, 5, v3
    v_lshlrev_b32 v57, 3, v4
    v_add_u32 v56, v56, v57
    s_lshl_b32 s45, s44, 11
    s_lshl_b32 s46, s27, 1
    s_add_u32 s46, s46, s42
    s_lshl_b32 s46, s46, 12
    s_add_u32 s46, s46, s45
    s_add_u32 s46, s46, {WS_XT2}
    v_add_u32 v59, s46, v56
    ''')
    for t in range(4): A(f'global_load_dwordx2 v[{240 + 2 * t}:{241 + 2 * t}], v59, s[20:21] offset:{512 * t} sc1')
    A(f'''
    s_and_b32 s59, s26, 7
    s_mul_i32 s45, s59, {4 * 56}
    s_mul_i32 s46, s22, 14
    s_add_u32 s45, s45, s46
    s_lshl_b32 s45, s45, 10
    s_add_u32 s45, s45, {WS_W2P}
    v_lshlrev_b32 v6, 4, v2
    v_add_u32 v8, s45, v6
    ''')
    G = [72, 136]; F = [104, 168]; ACC = 200
    def loads_(set_):
        Gs = [f'ds_read_b128 v[{G[set_] + 4 * t}:{G[set_] + 4 * t + 3}], v60 offset:{512 * t}' for t in range(8)]
        Fs = []
        for j in range(8):
            k = j >> 1; o = 0 if (j & 1) else 128
            Fs.append([f'ds_read2_b32 v[{F[set_] + 4 * j}:{F[set_] + 4 * j + 1}], v{12 + k} offset0:{o} offset1:{o + 1}',
                       f'ds_read2_b32 v[{F[set_] + 4 * j + 2}:{F[set_] + 4 * j + 3}], v{12 + k} offset0:{o + 2} offset1:{o + 3}'])
        return Fs[0] + Gs + [x for f in Fs[1:] for x in f]
    adv = ['v_subrev_u32 v60, 64, v60'] + [f'v_subrev_u32 v{12 + k}, 64, v{12 + k}' for k in range(4)]
    def mfmas(set_, first):
        out = []
        for j in range(8):
            for t in range(8 - j):
                acc = ACC + 4 * (t + j)
                cin = '0' if (first and j == 0) else f'v[{acc}:{acc+3}]'
                out.append(f'v_mfma_f32_16x16x32_bf16 v[{acc}:{acc+3}], v[{F[set_] + 4 * j}:{F[set_] + 4 * j + 3}], v[{G[set_] + 4 * t}:{G[set_] + 4 * t + 3}], {cin}')
        return out
    A.auto(True)
    for x in loads_(0) + adv: A(x)
    wi = 0
    NW1 = ENV('NW1', 14); W2B = ENV('W2B', 0); W2BSTEP = ENV('W2BSTEP', 7); w2b = 0
    for it in range(4):
        fill = (loads_((it + 1) & 1) + adv) if it < 3 else []
        ms = mfmas(it & 1, it == 0)
        fi = 0
        for i, m in enumerate(ms):
            A(m)
            if fi < len(fill): A(fill[fi]); fi += 1
            if i % ENV('W1STEP', 10) == ENV('W1STEP', 10) - 1 and wi < NW1: A(w1f[wi]); wi += 1
            if i % W2BSTEP == 2 and w2b < W2B: A(w2txt(w2b)); w2b += 1
        assert fi == len(fill)
    A.auto(False)
    assert w2b == W2B, w2b
    global W2DONE_B
    W2DONE_B = w2b
    stamp(A, 10)
    for x in w1f[wi:]: A(x)
    A(f'''
    s_lshl_b32 s45, s22, 12
    s_add_u32 s45, s45, {L_RED}
    v_lshlrev_b32 v68, 4, v2
    v_add_u32 v69, s45, v68
    s_xor_b32 s46, s22, 1
    s_lshl_b32 s46, s46, 12
    s_add_u32 s46, s46, {L_RED}
    v_add_u32 v70, s46, v68
    s_cmp_eq_u32 s44, 0
    s_cbranch_scc0 {N}_odd
    ''')
    for t in range(4): A(f'ds_write_b128 v69, v[{ACC + 16 + 4 * t}:{ACC + 16 + 4 * t + 3}] offset:{1024 * t}')
    A(f's_branch {N}_join\n {N}_odd:')
    for t in range(4): A(f'ds_write_b128 v69, v[{ACC + 4 * t}:{ACC + 4 * t + 3}] offset:{1024 * t}')
    for t in range(0, 16, 2): A(f'v_pk_mul_f32 v[{ACC + t}:{ACC + t + 1}], v[{ACC + 16 + t}:{ACC + 17 + t}], 1.0 op_sel_hi:[1,0]')
    A(f'{N}_join:')
    A(f'''
    s_lshl_b32 s45, s44, 11
    s_mul_i32 s46, s42, {USZ}
    s_add_u32 s46, s46, s45
    s_add_u32 s46, s46, {L_U + 480}
    v_add_u32 v57, s46, v56
    ''')
    for t in range(4): A(f'ds_read_b64 v[{88 + 2 * t}:{89 + 2 * t}], v57 offset:{512 * t}')
    A(f'''
    s_lshl_b32 s46, s27, 1
    s_add_u32 s46, s46, s42
    s_lshl_b32 s46, s46, 6
    s_lshl_b32 s47, s44, 20
    s_add_u32 s46, s46, s47
    s_add_u32 s46, s46, {WS_HT}
    v_lshrrev_b32 v58, 1, v3
    v_lshlrev_b32 v58, 15, v58
    v_and_b32 v55, 1, v3
    v_lshlrev_b32 v55, 5, v55
    v_lshlrev_b32 v54, 3, v4
    v_add3_u32 v58, v58, v55, v54
    v_add_u32 v58, s46, v58
    s_waitcnt lgkmcnt(0)
    s_barrier
    ''')
    for t in range(4): A(f'ds_read_b128 v[{72 + 4 * t}:{72 + 4 * t + 3}], v70 offset:{1024 * t}')
    for t in range(4):
        for pr in range(2):
            u = 88 + 2 * t + pr; d = 112 + 4 * t + 2 * pr
            A(f'v_lshlrev_b32 v{d}, 16, v{u}\n v_and_b32 v{d + 1}, 0xffff0000, v{u}')
    for k in range(8): A(f'v_pk_mul_f32 v[{112 + 2 * k}:{113 + 2 * k}], v[{112 + 2 * k}:{113 + 2 * k}], v[22:23] op_sel:[0,1] op_sel_hi:[1,1]')
    for k in range(8): A(f'v_cvt_pk_bf16_f32 v{128 + k}, v{112 + 2 * k}, v{113 + 2 * k}')
    for k in range(8): A(f'v_lshlrev_b32 v{112 + 2 * k}, 16, v{128 + k}\n v_and_b32 v{113 + 2 * k}, 0xffff0000, v{128 + k}')
    A('s_waitcnt lgkmcnt(0)')
    for k in range(8): A(f'v_pk_add_f32 v[{ACC + 2 * k}:{ACC + 2 * k + 1}], v[{ACC + 2 * k}:{ACC + 2 * k + 1}], v[{72 + 2 * k}:{73 + 2 * k}]')
    for k in range(8): A(f'v_cvt_pk_bf16_f32 v{128 + k}, v{ACC + 2 * k}, v{ACC + 2 * k + 1}')
    for k in range(8): A(f'v_lshlrev_b32 v{ACC + 2 * k}, 16, v{128 + k}\n v_and_b32 v{ACC + 2 * k + 1}, 0xffff0000, v{128 + k}')
    for k in range(8): A(f'v_pk_add_f32 v[{ACC + 2 * k}:{ACC + 2 * k + 1}], v[{ACC + 2 * k}:{ACC + 2 * k + 1}], v[{112 + 2 * k}:{113 + 2 * k}]')
    for k in range(8): A(f'v_cvt_pk_bf16_f32 v{128 + k}, v{ACC + 2 * k}, v{ACC + 2 * k + 1}')
    for k in range(8): A(f'v_lshlrev_b32 v{ACC + 2 * k}, 16, v{128 + k}\n v_and_b32 v{ACC + 2 * k + 1}, 0xffff0000, v{128 + k}')
    A(f's_waitcnt vmcnt({21 + w2b})')
    for k in range(8): A(f'v_lshlrev_b32 v{112 + 2 * k}, 16, v{240 + k}\n v_and_b32 v{113 + 2 * k}, 0xffff0000, v{240 + k}')
    for k in range(8): A(f'v_pk_add_f32 v[{ACC + 2 * k}:{ACC + 2 * k + 1}], v[{ACC + 2 * k}:{ACC + 2 * k + 1}], v[{112 + 2 * k}:{113 + 2 * k}]')
    for t in range(4):
        for pr in range(2): A(f'v_cvt_pk_bf16_f32 v{128 + 2 * t + pr}, v{ACC + 4 * t + 2 * pr}, v{ACC + 4 * t + 2 * pr + 1}')
        A(f'global_store_dwordx2 v58, v[{128 + 2 * t}:{129 + 2 * t}], s[20:21] sc1')
        if t < 3: A('v_add_u32 v58, 0x40000, v58')
    A(f'''
    s_waitcnt vmcnt(0)
    s_barrier
    s_cmp_eq_u32 s22, 0
    s_cbranch_scc0 {N}_nf2
    s_lshl_b32 s45, s2, 6
    s_add_u32 s45, s45, {WS_F2}
    v_mov_b32 v5, s45
    v_mov_b32 v6, s38
    v_mov_b32 v7, s39
    ''')
    lane0_store(A, f'global_store_dwordx2 v5, v[6:7], s[20:21] sc1\n s_cmp_eq_u32 s2, 0\n s_cbranch_scc0 {N}_nf2b\n v_mov_b32 v5, {WS_TAG}\n global_store_dword v5, v6, s[20:21] sc1\n {N}_nf2b:')
    A(f'{N}_nf2:')
    stamp(A, 11)
    A('v_lshlrev_b32 v5, 4, v2')
    A(f's_cmp_eq_u32 s22, 0\n s_cbranch_scc0 {N}_np2a\n v_lshlrev_b32 v9, 6, v2\n v_add_u32 v9, {WS_F2}, v9\n v_add_u32 v10, 4096, v9\n v_add_u32 v11, 8192, v9\n v_add_u32 v6, 12288, v9')
    for k, r in enumerate((9, 10, 11, 6)): A(f'global_load_dwordx2 v[{176 + 2 * k}:{177 + 2 * k}], v{r}, s[20:21] sc1')
    A(f'{N}_np2a:')
    A(f'''
    v_bfe_u32 v14, v2, 2, 2
    v_lshl_add_u32 v14, v4, 2, v14
    v_mul_u32_u24 v14, 224, v14
    v_and_b32 v15, 3, v2
    v_lshlrev_b32 v15, 3, v15
    v_add_u32 v14, v14, v15
    s_mul_i32 s45, s22, {4 * 7168}
    v_add_u32 v12, s45, v14
    v_add_u32 v13, s45, v5
    v_mov_b32 v18, 0x3f803f80
    v_mov_b32 v19, 0x3f803f80
    v_mov_b32 v20, 0x3f803f80
    v_mov_b32 v21, 0x3f803f80
    ''')
    A.auto(True)
    FB0 = 24
    for s_ in range(4):
        for ft in range(7):
            b = FB0 + 28 * s_ + 4 * ft
            A(f'ds_read_b64_tr_b16 v[{b}:{b + 1}], v12 offset:{7168 * s_ + 32 * ft}')
            A(f'ds_read_b64_tr_b16 v[{b + 2}:{b + 3}], v12 offset:{7168 * s_ + 32 * ft + 3584}')
    for s_ in range(4):
        for ft in range(7):
            b = FB0 + 28 * s_ + 4 * ft; acc = 140 + 4 * ft
            cin = '0' if s_ == 0 else f'v[{acc}:{acc+3}]'
            A(f'v_mfma_f32_16x16x32_bf16 v[{acc}:{acc+3}], v[{b}:{b+3}], v[18:21], {cin}')
    A('s_waitcnt lgkmcnt(0)')
    for s_ in range(4):
        for ft in range(7):
            b = FB0 + 28 * s_ + 4 * ft
            A(f'ds_write_b128 v13, v[{b}:{b + 3}] offset:{(7 * s_ + ft) * 1024}')
    A.auto(False)
    A(f'''
    s_mul_i32 s45, s22, 448
    s_add_u32 s45, s45, {L_CSX}
    v_lshlrev_b32 v13, 4, v4
    v_add_u32 v13, s45, v13
    v_cmp_eq_u32 vcc, 0, v3
    s_and_saveexec_b64 s[52:53], vcc
    ''')
    for ft in range(7): A(f'ds_write_b128 v13, v[{140 + 4 * ft}:{143 + 4 * ft}] offset:{64 * ft}')
    A(f'''
    s_mov_b64 exec, s[52:53]
    s_mul_i32 s45, s55, 112
    v_lshlrev_b32 v10, 2, v4
    v_add_u32 v10, s45, v10
    v_lshlrev_b32 v10, 1, v10
    ''')
    for i in range(7): A(f'global_load_dwordx2 v[{228 + 2 * i}:{229 + 2 * i}], v10, s[30:31] offset:{32 * i}')
    A(f's_cmp_eq_u32 s22, 0\n s_cbranch_scc0 {N}_np2')
    ck = 'v_cmp_eq_u32 vcc, s38, v176\n' + ''.join(f'v_cmp_eq_u32 s[52:53], s38, v{178 + 2 * k}\n s_and_b64 vcc, vcc, s[52:53]\n' for k in range(3)) + 's_cmp_eq_u64 vcc, -1'
    A('s_waitcnt vmcnt(7)')
    A(ck)
    A(f's_cbranch_scc1 {N}_p2_ok2')
    A(f'v_lshlrev_b32 v9, 6, v2\n v_add_u32 v9, {WS_F2}, v9\n v_add_u32 v10, 4096, v9\n v_add_u32 v11, 8192, v9\n v_add_u32 v12, 12288, v9')
    ld = '\n'.join(f'global_load_dwordx2 v[{176 + 2 * k}:{177 + 2 * k}], v{9 + k}, s[20:21] sc1' for k in range(4))
    poll_loop(A, f'{N}_p2', ld, ck)
    A(f'{N}_p2_ok2:')
    A(f'''
    v_and_b32 v13, 7, v2
    v_cmp_ne_u32 s[66:67], s23, v13
    v_cmp_eq_u32 vcc, s39, v177
    s_or_b64 vcc, vcc, s[66:67]
    ''')
    for k in range(1, 4): A(f'v_cmp_eq_u32 s[52:53], s39, v{177 + 2 * k}\n s_or_b64 s[52:53], s[52:53], s[66:67]\n s_and_b64 vcc, vcc, s[52:53]')
    A(f'''
    s_cmp_eq_u64 vcc, -1
    s_cselect_b32 s64, 1, 0
    v_mov_b32 v13, s64
    v_mov_b32 v14, {L_MISC}
    ds_write_b32 v14, v13
    {N}_np2:
    s_waitcnt lgkmcnt(0)
    s_barrier
    v_mov_b32 v14, {L_MISC}
    ds_read_b32 v15, v14
    v_lshlrev_b32 v13, 4, v4
    v_add_u32 v13, {L_CSX}, v13
    ''')
    CS = 200
    for w in range(4):
        for ft in range(7):
            d = CS + 4 * ft if w == 0 else 64 + 28 * (w - 1) + 4 * ft
            A(f'ds_read_b128 v[{d}:{d + 3}], v13 offset:{448 * w + 64 * ft}')
    A('s_waitcnt lgkmcnt(0)\n v_readfirstlane_b32 s64, v15')
    if ABL('slow'): A('s_mov_b32 s64, 0')
    for w in range(1, 4):
        for k in range(0, 28, 2): A(f'v_pk_add_f32 v[{CS + k}:{CS + k + 1}], v[{CS + k}:{CS + k + 1}], v[{64 + 28 * (w - 1) + k}:{65 + 28 * (w - 1) + k}]')
    A('s_barrier')
    stamp(A, 12)

def w2txt(k):
    s_, i = k // 4, k % 4
    return f'v_add_u32 v9, {i * 56 * 1024 + s_ * 1024}, v8\n global_load_dwordx4 a[{16 * s_ + 4 * i}:{16 * s_ + 4 * i + 3}], v9, s[20:21] sc1'

def RES(ft, m): return 168 + 16 * m + 2 * ft

def gelu_block(A, N, tag, sc, fillers):
    ACC = 96
    seg = Asm()
    for ft in range(7):
        seg(f'''
        v_lshlrev_b32 v68, 16, v{228 + 2 * ft}
        v_and_b32 v69, 0xffff0000, v{228 + 2 * ft}
        v_lshlrev_b32 v70, 16, v{229 + 2 * ft}
        v_and_b32 v71, 0xffff0000, v{229 + 2 * ft}
        ''')
        cs = 200 + 4 * ft
        P2 = [(m, p) for m in range(2) for p in range(2)]
        for m, p in P2:
            ab = 60 + 2 * m; T = 72 + 4 * m + 2 * p
            seg(f'v_pk_fma_f32 v[{T}:{T + 1}], v[{cs + 2 * p}:{cs + 2 * p + 1}], v[{ab}:{ab + 1}], v[{68 + 2 * p}:{69 + 2 * p}] op_sel:[0,1,0] op_sel_hi:[1,1,1]')
        for m, p in P2:
            x = ACC + 4 * (2 * ft + m) + 2 * p; ab = 60 + 2 * m; T = 72 + 4 * m + 2 * p
            seg(f'v_pk_fma_f32 v[{x}:{x + 1}], v[{x}:{x + 1}], v[{ab}:{ab + 1}], v[{T}:{T + 1}] op_sel:[0,0,0] op_sel_hi:[1,0,1]')
        for m, p in P2:
            x = ACC + 4 * (2 * ft + m) + 2 * p; T = 72 + 4 * m + 2 * p
            seg(f'v_pk_mul_f32 v[{T}:{T + 1}], v[{x}:{x + 1}], v[{x}:{x + 1}]')
        for m, p in P2:
            T = 72 + 4 * m + 2 * p
            seg(f'v_pk_fma_f32 v[{T}:{T + 1}], v[{T}:{T + 1}], v[66:67], v[64:65]')
        for m, p in P2:
            x = ACC + 4 * (2 * ft + m) + 2 * p; T = 72 + 4 * m + 2 * p
            seg(f'v_pk_mul_f32 v[{T}:{T + 1}], v[{T}:{T + 1}], v[{x}:{x + 1}]')
        for k in range(8): seg(f'v_exp_f32 v{72 + k}, v{72 + k}')
        for k in range(4): seg(f'v_pk_add_f32 v[{72 + 2 * k}:{73 + 2 * k}], v[{72 + 2 * k}:{73 + 2 * k}], 1.0 op_sel_hi:[1,0]')
        for k in range(8): seg(f'v_rcp_f32 v{72 + k}, v{72 + k}')
        for m, p in P2:
            x = ACC + 4 * (2 * ft + m) + 2 * p; T = 72 + 4 * m + 2 * p
            seg(f'v_pk_mul_f32 v[{x}:{x + 1}], v[{x}:{x + 1}], v[{T}:{T + 1}]')
        for m in range(2):
            acc = ACC + 4 * (2 * ft + m)
            seg(f'v_cvt_pk_bf16_f32 v{RES(ft, m)}, v{acc}, v{acc + 1}')
            seg(f'v_cvt_pk_bf16_f32 v{RES(ft, m) + 1}, v{acc + 2}, v{acc + 3}')
        ev = []; od = []
        for m in range(2):
            if ft % 2 == 1: ev.append(f'global_store_dwordx4 v{10 + m}, v[{RES(ft - 1, m)}:{RES(ft - 1, m) + 3}], s[20:21] offset:{1024 * (ft // 2)}' + sc)
            if ft == 6: ev.append(f'global_store_dwordx2 v{10 + m}, v[{RES(6, m)}:{RES(6, m) + 1}], s[20:21] offset:3072' + sc)
            if ft == 0: od.append(f'global_store_dwordx2 v{10 + m}, v[{RES(0, m)}:{RES(0, m) + 1}], s[20:21] offset:8' + sc)
            if ft % 2 == 0 and ft > 0: od.append(f'global_store_dwordx4 v{10 + m}, v[{RES(ft - 1, m)}:{RES(ft - 1, m) + 3}], s[20:21] offset:{1024 * (ft // 2)}' + sc)
        if ev:
            seg(f's_cmp_eq_u32 s46, 0\n s_cbranch_scc0 {N}_se{tag}{ft}')
            for x in ev: seg(x)
            seg(f'{N}_se{tag}{ft}:')
        if od:
            seg(f's_cmp_eq_u32 s46, 0\n s_cbranch_scc1 {N}_so{tag}{ft}')
            for x in od: seg(x)
            seg(f'{N}_so{tag}{ft}:')
    interleave(A, seg, fillers, first=4, last_frac=0.8)

def phase_c(A, N):
    vm = VM()
    A(f'''
    s_and_b32 s54, s26, 1
    s_lshl_b32 s45, s23, 1
    s_add_u32 s54, s54, s45
    v_lshrrev_b32 v7, 2, v2
    v_lshlrev_b32 v7, 6, v7
    v_and_b32 v10, 3, v2
    v_bfe_u32 v9, v2, 4, 1
    v_lshlrev_b32 v9, 1, v9
    v_xor_b32 v10, v10, v9
    v_lshlrev_b32 v10, 4, v10
    s_lshl_b32 s45, s54, 2
    s_add_u32 s45, s45, s22
    s_lshl_b32 s45, s45, 15
    s_add_u32 s45, s45, {WS_HT}
    v_add3_u32 v7, v7, v10, s45
    s_mul_i32 s58, s22, 12288
    s_add_u32 s58, s58, {HS}
    s_cmp_eq_u32 s22, 0
    s_cbranch_scc0 {N}_nwarmh
    s_lshl_b32 s45, s23, 18
    s_lshl_b32 s46, s26, 13
    s_add_u32 s45, s45, s46
    s_add_u32 s45, s45, {WS_HT}
    v_lshlrev_b32 v9, 7, v2
    v_add_u32 v9, s45, v9
    global_load_dword v250, v9, s[20:21] sc1
    {N}_nwarmh:
    ''')
    def hdma(st):
        slot = st % 3
        for i in range(4):
            A(f's_add_u32 m0, s58, {slot * 4096 + i * 1024}\n v_add_u32 v10, {4096 * st + 1024 * i}, v7\n global_load_lds_dwordx4 v10, s[20:21] sc1')
            vm.issue()
        vm.mark(f'H{st}')
    hdma(0); hdma(1); hdma(2)
    A(f'''
    v_bfe_u32 v14, v2, 2, 2
    v_lshl_add_u32 v14, v4, 2, v14
    v_and_b32 v15, 3, v2
    v_lshlrev_b32 v15, 3, v15
    v_add_u32 v13, 57344, v5
    v_lshlrev_b32 v14, 6, v14
    v_add3_u32 v14, v14, v15, s58
    v_and_b32 v15, 1, v4
    v_lshlrev_b32 v15, 5, v15
    v_add_u32 v16, v14, v15
    v_xor_b32 v15, 32, v15
    v_add_u32 v17, v14, v15
    ''')
    AF = [24, 60]; BF = [52, 88]; ACC = 96; SUM = 152; GR = 160
    def reads(s_):
        st = s_ & 1; outA = []; outB = []
        base, so = (5, s_) if s_ < 8 else (13, s_ - 8)
        for ft in range(7):
            outA.append(f'ds_read_b128 v[{AF[st] + 4 * ft}:{AF[st] + 4 * ft + 3}], v{base} offset:{(7 * so + ft) * 1024}')
        o = ((s_ // 2) % 3) * 4096 + (s_ & 1) * 2048
        for m in range(2):
            outB.append(f'ds_read_b64_tr_b16 v[{BF[st] + 4 * m}:{BF[st] + 4 * m + 1}], v{16 + m} offset:{o}')
            outB.append(f'ds_read_b64_tr_b16 v[{BF[st] + 4 * m + 2}:{BF[st] + 4 * m + 3}], v{16 + m} offset:{o + 1024}')
        return outB[:2] + outA + outB[2:]
    A(f'''
    s_mul_i32 s45, s23, {16 * 56 * 1024}
    s_mul_i32 s46, s26, {224 * 128}
    s_add_u32 s45, s45, s46
    s_mul_i32 s46, s22, {56 * 128}
    s_add_u32 s45, s45, s46
    s_add_u32 s45, s45, {WS_H1}
    v_min_u32 v6, 55, v2
    v_lshlrev_b32 v6, 7, v6
    v_add_u32 v6, s45, v6
    ''')
    vm.wait(A, 'H0')
    stamp(A, 13)
    A.auto(True)
    for r in reads(0): A(r)
    w2i = W2DONE_B
    W2LOOP = w2i + ENV('W2LOOP', 30); W2POS = (12, 15)
    for s_ in range(16):
        st = s_ & 1
        if s_ % 2 == 0 and s_ >= 2 and (s_ - 2) // 2 + 3 < 8: hdma((s_ - 2) // 2 + 3)
        if s_ == ENV('TOUCHK', 2) and not ABL('noh1touch'): A('global_load_dword v253, v6, s[20:21]'); vm.issue()
        if s_ < 15:
            n = s_ + 1
            if n % 2 == 0: vm.wait(A, f'H{n // 2}')
            rd = reads(n)
        else: rd = []
        ms = []
        for m in range(2):
            b = BF[st] + 4 * m
            c1 = '0' if s_ == 0 else f'v[{SUM + 4 * m}:{SUM + 4 * m + 3}]'
            c2 = '0' if s_ == 0 else f'v[{GR + 4 * m}:{GR + 4 * m + 3}]'
            for ft in range(7):
                acc = ACC + 4 * (2 * ft + m)
                cin = '0' if s_ == 0 else f'v[{acc}:{acc+3}]'
                ms.append(f'v_mfma_f32_16x16x32_bf16 v[{acc}:{acc+3}], v[{AF[st] + 4 * ft}:{AF[st] + 4 * ft + 3}], v[{b}:{b+3}], {cin}')
            ms.append(f'v_mfma_f32_16x16x32_bf16 v[{SUM + 4 * m}:{SUM + 4 * m + 3}], v[18:21], v[{b}:{b+3}], {c1}')
            ms.append(f'v_mfma_f32_16x16x32_bf16 v[{GR + 4 * m}:{GR + 4 * m + 3}], v[{b}:{b+3}], v[{b}:{b+3}], {c2}')
        ri = 0
        for i, mi in enumerate(ms):
            A(mi)
            if ri < len(rd): A(rd[ri]); ri += 1
            if i in W2POS:
                if w2i < W2LOOP and s_ >= 1: A(w2txt(w2i)); vm.issue(); w2i += 1
        assert ri == len(rd)
        if s_ in (3, 7, 11): stamp(A, f'c{s_}')
    A.auto(False)
    stamp(A, 14)
    for r in range(4):
        A(f'v_lshl_add_u32 v24, v4, 2, {r}\n v_cmp_eq_u32 vcc, v24, v3\n v_cndmask_b32 v{28 + r}, 0, 1.0, vcc')
    for m in range(2):
        g_ = GR + 4 * m
        A(f'v_mul_f32 v{32 + m}, v{g_}, v28')
        for r in range(1, 4): A(f'v_fmac_f32 v{32 + m}, v{g_ + r}, v{28 + r}')
    for sw in ('v_permlane16_swap_b32', 'v_permlane32_swap_b32'):
        for m in range(2): A(f'v_mov_b32 v{34 + m}, v{32 + m}')
        for m in range(2): A(f'{sw} v{32 + m}, v{34 + m}')
        for m in range(2): A(f'v_add_f32 v{32 + m}, v{32 + m}, v{34 + m}')
    R2 = lambda f: [f(m) for m in range(2)]
    mu, var, m1, r1, t, m2, r2 = (lambda o: (lambda m: o + 8 * m))(44), (lambda m: 45 + 8 * m), (lambda m: 46 + 8 * m), (lambda m: 47 + 8 * m), (lambda m: 48 + 8 * m), (lambda m: 49 + 8 * m), (lambda m: 50 + 8 * m)
    steps = [
        lambda m: f'v_mul_f32 v{mu(m)}, 0x3b000000, v{SUM + 4 * m}',
        lambda m: f'v_mul_f32 v{var(m)}, 0x3b000000, v{32 + m}',
        lambda m: f'v_fma_f32 v{var(m)}, -v{mu(m)}, v{mu(m)}, v{var(m)}',
        lambda m: f'v_max_f32 v{var(m)}, 0, v{var(m)}',
        lambda m: f'v_cvt_pk_bf16_f32 v{m1(m)}, v{mu(m)}, v{mu(m)}',
        lambda m: f'v_cvt_pk_bf16_f32 v{t(m)}, v{var(m)}, v{var(m)}',
        lambda m: f'v_lshlrev_b32 v{m1(m)}, 16, v{m1(m)}',
        lambda m: f'v_lshlrev_b32 v{t(m)}, 16, v{t(m)}',
        lambda m: f'v_add_f32 v{t(m)}, {EPS:#x}, v{t(m)}',
        lambda m: f'v_cvt_pk_bf16_f32 v{t(m)}, v{t(m)}, v{t(m)}',
        lambda m: f'v_lshlrev_b32 v{t(m)}, 16, v{t(m)}',
        lambda m: f'v_sqrt_f32 v{t(m)}, v{t(m)}',
        lambda m: f'v_sub_f32 v{m2(m)}, v{mu(m)}, v{m1(m)}',
        lambda m: f'v_cvt_pk_bf16_f32 v{t(m)}, v{t(m)}, v{t(m)}',
        lambda m: f'v_lshlrev_b32 v{t(m)}, 16, v{t(m)}',
        lambda m: f'v_rcp_f32 v{r1(m)}, v{t(m)}',
        lambda m: f'v_mul_f32 v{m2(m)}, v{m2(m)}, v{r1(m)}',
        lambda m: f'v_mul_f32 v{t(m)}, v{var(m)}, v{r1(m)}',
        lambda m: f'v_cvt_pk_bf16_f32 v{m2(m)}, v{m2(m)}, v{m2(m)}',
        lambda m: f'v_mul_f32 v{t(m)}, v{t(m)}, v{r1(m)}',
        lambda m: f'v_lshlrev_b32 v{m2(m)}, 16, v{m2(m)}',
        lambda m: f'v_cvt_pk_bf16_f32 v{t(m)}, v{t(m)}, v{t(m)}',
        lambda m: f'v_lshlrev_b32 v{t(m)}, 16, v{t(m)}',
        lambda m: f'v_add_f32 v{t(m)}, {EPS:#x}, v{t(m)}',
        lambda m: f'v_cvt_pk_bf16_f32 v{t(m)}, v{t(m)}, v{t(m)}',
        lambda m: f'v_lshlrev_b32 v{t(m)}, 16, v{t(m)}',
        lambda m: f'v_sqrt_f32 v{t(m)}, v{t(m)}',
        lambda m: f'v_cvt_pk_bf16_f32 v{t(m)}, v{t(m)}, v{t(m)}',
        lambda m: f'v_lshlrev_b32 v{t(m)}, 16, v{t(m)}',
        lambda m: f'v_rcp_f32 v{r2(m)}, v{t(m)}',
        lambda m: f'v_fma_f32 v{t(m)}, v{m1(m)}, v{r1(m)}, v{m2(m)}',
        lambda m: f'v_mul_f32 v{60 + 2 * m}, v{r1(m)}, v{r2(m)}',
        lambda m: f'v_mul_f32 v{t(m)}, v{t(m)}, v{r2(m)}',
        lambda m: f'v_sub_f32 v{61 + 2 * m}, 0, v{t(m)}',
    ]
    for st_ in steps:
        for m in range(2): A(st_(m))
    A(f'''
    v_mov_b32 v64, {hex(f2u(GC1))}
    v_mov_b32 v65, {hex(f2u(GC1))}
    v_mov_b32 v66, {hex(f2u(GC2))}
    v_mov_b32 v67, {hex(f2u(GC2))}
    s_lshl_b32 s45, s54, 3
    s_lshl_b32 s46, s22, 1
    s_add_u32 s45, s45, s46
    s_mul_i32 s45, s45, {56 * 1024}
    s_mul_i32 s46, s55, 7
    s_lshr_b32 s47, s46, 1
    s_lshl_b32 s47, s47, 10
    s_add_u32 s45, s45, s47
    s_add_u32 s45, s45, {WS_H1}
    v_add_u32 v10, s45, v5
    v_add_u32 v11, {56 * 1024}, v10
    s_and_b32 s46, s55, 1
    s_cmp_eq_u32 s64, 1
    s_cbranch_scc0 {N}_gslow
    ''')
    fill = [w2txt(k) for k in range(w2i, 56)]
    gelu_block(A, N, 'f', '', fill)
    A(f's_branch {N}_gdone\n {N}_gslow:')
    gelu_block(A, N, 's', ' sc1', fill)
    A(f'{N}_gdone:')
    stamp(A, 15)
    A(f'''
    s_waitcnt vmcnt(0)
    s_barrier
    s_cmp_eq_u32 s22, 0
    s_cbranch_scc0 {N}_nf3
    s_lshl_b32 s45, s54, 4
    s_add_u32 s45, s45, s55
    s_lshl_b32 s45, s45, 6
    s_add_u32 s45, s45, {WS_F3}
    v_mov_b32 v6, s45
    v_mov_b32 v7, s38
    ''')
    lane0_store(A, 'global_store_dword v6, v7, s[20:21] sc1')
    A(f'{N}_nf3:')

def phase_d(A, N):
    A(f'''
    s_lshr_b32 s60, s26, 3
    s_lshl_b32 s45, s23, 2
    s_add_u32 s60, s60, s45
    s_lshl_b32 s45, s60, 16
    s_lshl_b32 s46, s59, 12
    s_add_u32 s45, s45, s46
    s_lshl_b32 s46, s22, 10
    s_add_u32 s45, s45, s46
    s_add_u32 s45, s45, {WS_HT}
    v_add_u32 v6, s45, v5
    s_lshl_b32 s61, s22, 11
    s_add_u32 s61, s61, 49152
    s_mov_b32 m0, s61
    v_add_u32 v7, 32768, v6
    global_load_lds_dwordx4 v6, s[20:21] sc1
    s_add_u32 m0, s61, 1024
    s_nop 0
    global_load_lds_dwordx4 v7, s[20:21] sc1
    s_lshl_b32 s46, s59, 7
    s_lshl_b32 s47, s22, 5
    s_add_u32 s46, s46, s47
    v_lshlrev_b32 v7, 3, v4
    v_add_u32 v7, s46, v7
    global_load_dwordx2 v[12:13], v7, s[34:35]
    s_lshl_b32 s45, s60, 6
    v_add_u32 v6, s45, v3
    v_lshlrev_b32 v6, 10, v6
    v_add_u32 v14, v6, v7
    s_mul_i32 s45, s60, {4 * 56}
    s_mul_i32 s46, s22, 14
    s_add_u32 s45, s45, s46
    s_lshl_b32 s45, s45, 10
    s_add_u32 s45, s45, {WS_H1}
    ''')
    for m in range(4): A(f'v_add_u32 v{8 + m}, {m * 56 * 1024}, v5\n v_add_u32 v{8 + m}, s45, v{8 + m}')
    A(f'''
    s_cmp_eq_u32 s22, 3
    s_cbranch_scc0 {N}_np3
    s_lshr_b32 s45, s60, 1
    s_lshl_b32 s45, s45, 10
    s_add_u32 s45, s45, {WS_F3}
    v_lshlrev_b32 v6, 6, v3
    v_add_u32 v6, s45, v6
    ''')
    poll_loop(A, f'{N}_p3', 'global_load_dword v15, v6, s[20:21] sc1', 'v_cmp_eq_u32 vcc, s38, v15\n s_cmp_eq_u64 vcc, -1')
    A(f'{N}_np3:\n s_barrier')
    stamp(A, 16)
    NS = 7; B0 = 16; ACC = 176
    PD0 = ENV('PD0', 3); PD = ENV('PD', 5)
    def ltxt(s_):
        st = B0 + 16 * (s_ % NS); o = (s_ % 4) * 1024; out = []
        for m in range(4):
            t = ''
            if s_ % 4 == 0 and s_ > 0: t += f'v_add_u32 v{8 + m}, 4096, v{8 + m}\n'
            out.append(t + f'global_load_dwordx4 v[{st + 4 * m}:{st + 4 * m + 3}], v{8 + m}, s[20:21] offset:{o}' + H1LD)
        return out
    A.auto(True)
    for s_ in range(PD0):
        for t in ltxt(s_): A(t)
    A(f's_waitcnt vmcnt({4 * PD0})')
    issued = PD0
    for s_ in range(14):
        st = B0 + 16 * (s_ % NS)
        q = []
        tgt = min(14, s_ + PD + 1)
        nq = 2 if issued < tgt - 1 else 1
        for _ in range(nq):
            if issued < tgt: q += ltxt(issued); issued += 1
        k = 0; every = 2 if len(q) > 4 else 4
        for m in range(4):
            for i in range(4):
                acc = ACC + 4 * (4 * i + m)
                cin = '0' if s_ == 0 else f'v[{acc}:{acc+3}]'
                A(f'v_mfma_f32_16x16x32_bf16 v[{acc}:{acc+3}], a[{16 * s_ + 4 * i}:{16 * s_ + 4 * i + 3}], v[{st + 4 * m}:{st + 4 * m + 3}], {cin}')
                k += 1
                if q and k % every == 0: A(q.pop(0))
        while q: A(q.pop(0))
        if s_ in (0, 3, 7, 11): stamp(A, f'd{s_}')
    A.auto(False)
    stamp(A, 17)
    A(f's_mul_i32 s45, s22, {3 * 4096}\n v_add_u32 v15, s45, v5')
    A(f'''
    v_bfe_u32 v8, v2, 2, 2
    v_lshl_add_u32 v8, v4, 2, v8
    v_lshlrev_b32 v8, 6, v8
    v_and_b32 v9, 3, v2
    v_lshlrev_b32 v9, 3, v9
    v_add3_u32 v8, v8, v9, s61
    ''')
    for m in range(4): A(f'ds_read_b64_tr_b16 v[{16 + 2 * m}:{17 + 2 * m}], v8 offset:{1024 * (m >> 1) + 32 * (m & 1)}')
    for w in range(4):
        A(f's_cmp_eq_u32 s22, {w}\n s_cbranch_scc0 {N}_r{w}')
        for idx in range(3):
            i = (w + 1 + idx) & 3
            for m in range(4):
                acc = ACC + 4 * (4 * i + m)
                A(f'ds_write_b128 v15, v[{acc}:{acc+3}] offset:{idx * 4096 + m * 1024}')
        if w != 0:
            for k in range(0, 16, 2): A(f'v_pk_mul_f32 v[{ACC + k}:{ACC + k + 1}], v[{ACC + 16 * w + k}:{ACC + 16 * w + k + 1}], 1.0 op_sel_hi:[1,0]')
        A('s_waitcnt lgkmcnt(0)\n s_barrier')
        for q in range(3):
            wp = (w + 1 + q) & 3
            idx = (w - wp - 1) & 3
            for m in range(4):
                A(f'ds_read_b128 v[{32 + 16 * q + 4 * m}:{32 + 16 * q + 4 * m + 3}], v5 offset:{(wp * 3 + idx) * 4096 + m * 1024}')
        A(f's_branch {N}_fin\n {N}_r{w}:')
    A(f'{N}_fin:')
    A(f'''
    v_lshlrev_b32 v24, 16, v12
    v_and_b32 v25, 0xffff0000, v12
    v_lshlrev_b32 v26, 16, v13
    v_and_b32 v27, 0xffff0000, v13
    ''')
    for k in range(8): A(f'v_lshlrev_b32 v{96 + 2 * k}, 16, v{16 + k}\n v_and_b32 v{97 + 2 * k}, 0xffff0000, v{16 + k}')
    A('s_waitcnt lgkmcnt(0)')
    for q in range(3):
        for k in range(8): A(f'v_pk_add_f32 v[{ACC + 2 * k}:{ACC + 2 * k + 1}], v[{ACC + 2 * k}:{ACC + 2 * k + 1}], v[{32 + 16 * q + 2 * k}:{33 + 16 * q + 2 * k}]')
    for k in range(8): A(f'v_cvt_pk_bf16_f32 v{112 + k}, v{ACC + 2 * k}, v{ACC + 2 * k + 1}')
    for k in range(8): A(f'v_lshlrev_b32 v{ACC + 2 * k}, 16, v{112 + k}\n v_and_b32 v{ACC + 2 * k + 1}, 0xffff0000, v{112 + k}')
    for k in range(8): A(f'v_pk_add_f32 v[{ACC + 2 * k}:{ACC + 2 * k + 1}], v[{ACC + 2 * k}:{ACC + 2 * k + 1}], v[{24 + 2 * (k & 1)}:{25 + 2 * (k & 1)}]')
    for k in range(8): A(f'v_cvt_pk_bf16_f32 v{112 + k}, v{ACC + 2 * k}, v{ACC + 2 * k + 1}')
    for k in range(8): A(f'v_lshlrev_b32 v{ACC + 2 * k}, 16, v{112 + k}\n v_and_b32 v{ACC + 2 * k + 1}, 0xffff0000, v{112 + k}')
    for k in range(8): A(f'v_pk_add_f32 v[{ACC + 2 * k}:{ACC + 2 * k + 1}], v[{ACC + 2 * k}:{ACC + 2 * k + 1}], v[{96 + 2 * k}:{97 + 2 * k}]')
    for m in range(4):
        for pr in range(2): A(f'v_cvt_pk_bf16_f32 v{112 + 2 * m + pr}, v{ACC + 4 * m + 2 * pr}, v{ACC + 4 * m + 2 * pr + 1}')
        A(f'v_add_u32 v9, {m * 16384}, v14')
        A(f'global_store_dwordx2 v9, v[{112 + 2 * m}:{113 + 2 * m}], s[36:37]' + os.environ.get('OUTSC', ''))

def gen_mega(N):
    A = Asm()
    stamp(A, 0)
    A(f'''
    s_cmp_ge_u32 s2, 256
    s_cbranch_scc1 {N}_end
    s_load_dwordx16 s[4:19], s[0:1], 0
    s_load_dwordx2 s[20:21], s[0:1], 128
    s_load_dwordx2 s[24:25], s[0:1], 64
    s_load_dwordx4 s[28:31], s[0:1], 80
    s_load_dwordx4 s[32:35], s[0:1], 96
    s_load_dwordx2 s[36:37], s[0:1], 112
    v_lshrrev_b32 v1, 6, v0
    v_and_b32 v2, 63, v0
    v_and_b32 v3, 15, v2
    v_lshrrev_b32 v4, 4, v2
    v_readfirstlane_b32 s22, v1
    s_and_b32 s23, s2, 7
    s_lshr_b32 s26, s2, 3
    s_lshl_b32 s27, s23, 5
    s_add_u32 s27, s27, s26
    ''')
    phase_a(A, N); phase_b(A, N); phase_c(A, N); phase_d(A, N)
    if STAMPS:
        A('s_waitcnt vmcnt(0)')
        stamp(A, 'end')
        stamp_flush(A, 0, 18, tmpv=8)
    A(f'{N}_end:\n s_endpgm')
    A.resolve()
    return A.text(), dict(name=N, grid=256, block=256, lds=LDS_TOTAL, nvgpr=256, accum=256, total=512)
if __name__ == '__main__':
    import sys
    from build import build
    NM = 'sequential_preLN__ssm_conv_s4__mixer_channel_mlp__prompt'
    k = gen_mega(NM + '_kernel')
    path = sys.argv[1] if len(sys.argv) > 1 else f'cdna_kernels/{NM}.s'
    build([k], path, single=True)
    import common
    if common.STAMPS: open(path + '.names', 'w').write(','.join(common._stamp_state['names']))
```

```python
from common import *
ABL = lambda x: x in os.environ.get('ABL', '').split(',')
ENV = lambda k, d: type(d)(os.environ.get(k, d))

L_XY = 0; WSZ = 14416; PITCH = 272; YOFF = 21 * PITCH
L_T = 4 * WSZ; TSZ = 2816
L_W2 = L_T + 4 * TSZ
UP = 114688
L_XI = UP
L_RED = UP
L_U = UP + 16384; USZ = 4608
L_R = L_U + 2 * USZ; RSZ = 4160
L_CSX = UP
L_MISC = UP + 4096
W1S = 0
HS = UP
LDS_TOTAL = 163840
WS_XT2 = WS_KR
H1LD = ' sc1'

def poll_loop(A, name, loads, check):
    A(f's_mov_b32 s79, {SPIN_MAX}')
    A(f'{name}:')
    A(loads)
    A('s_waitcnt vmcnt(0)')
    A(check)
    A(f's_cbranch_scc1 {name}_ok')
    A(f's_sub_u32 s79, s79, 1\n s_cmp_eq_u32 s79, 0\n s_cbranch_scc0 {name}\n {name}_ok:')

def lane0_store(A, text):
    A('s_mov_b64 s[52:53], exec\n s_mov_b64 exec, 1\n' + text + '\n s_mov_b64 exec, s[52:53]')

def phase_a(A, N):
    A(f'''
    s_lshl_b32 s40, s2, 3
    s_lshl_b32 s41, s22, 1
    s_add_u32 s40, s40, s41
    s_lshl_b32 s41, s40, 10
    v_lshlrev_b32 v5, 4, v2
    v_add_u32 v6, s41, v5
    s_lshl_b32 s42, s26, 6
    s_lshl_b32 s43, s22, 4
    s_add_u32 s42, s42, s43
    v_lshrrev_b32 v8, 3, v2
    v_add_u32 v8, s42, v8
    v_lshlrev_b32 v8, 10, v8
    v_and_b32 v7, 7, v2
    v_lshlrev_b32 v7, 4, v7
    s_lshl_b32 s42, s23, 7
    v_add3_u32 v24, v8, v7, s42
    v_add_u32 v25, 8192, v24
    s_lshl_b32 s43, s22, 11
    s_add_u32 s43, s43, {L_XI}
    s_lshr_b32 s42, s22, 1
    s_lshl_b32 s44, s27, 1
    s_add_u32 s44, s44, s42
    s_and_b32 s45, s22, 1
    s_lshl_b32 s45, s45, 6
    s_lshl_b32 s46, s44, 7
    s_add_u32 s46, s46, s45
    v_add_u32 v26, s46, v2
    v_lshlrev_b32 v26, 1, v26
    s_lshl_b32 s46, s44, 1
    v_mov_b32 v27, s46
    s_mov_b32 m0, s43
    s_waitcnt lgkmcnt(0)
    global_load_dwordx4 v[8:11], v6, s[4:5]
    global_load_dwordx4 v[12:15], v6, s[4:5] offset:1024
    global_load_lds_dwordx4 v24, s[4:5]
    s_add_u32 m0, s43, 1024
    s_load_dword s38, s[20:21], {WS_TAG}
    global_load_lds_dwordx4 v25, s[4:5]
    global_load_ushort v16, v26, s[6:7]
    global_load_ushort v17, v26, s[8:9]
    global_load_ushort v18, v26, s[10:11]
    global_load_ushort v19, v26, s[12:13]
    global_load_ushort v20, v26, s[14:15]
    global_load_ushort v21, v26, s[16:17]
    global_load_ushort v22, v27, s[18:19]
    global_load_ushort v23, v27, s[24:25]
    s_cmp_lt_u32 s26, 4
    s_cbranch_scc0 {N}_ncw
    s_getpc_b64 s[62:63]
    s_and_b32 s62, s62, 0xffffff00
    v_lshlrev_b32 v6, 7, v0
    v_min_u32 v6, ({N}_end - {N} - 1024), v6
    global_load_dword v250, v6, s[62:63]
    v_add_u32 v6, 32768, v6
    v_min_u32 v6, ({N}_end - {N} - 1024), v6
    global_load_dword v251, v6, s[62:63]
    {N}_ncw:
    ''')
    if not ABL('notlb'):
        A(f'''
        s_cmp_eq_u32 s22, 1
        s_cbranch_scc0 {N}_ntlb
        v_min_u32 v6, 9, v2
        v_lshlrev_b32 v6, 21, v6
        v_add_u32 v6, 0x1000, v6
        global_load_dword v252, v6, s[20:21]
        v_mov_b32 v6, 0
        global_load_dword v253, v6, s[36:37]
        global_load_dword v254, v6, s[28:29]
        global_load_dword v255, v6, s[32:33]
        {N}_ntlb:
        ''')
    A(f'''
    ''')
    stamp(A, 1)
    A('v_lshlrev_b32 v33, 3, v0\n v_sub_u32 v33, 2047, v33\n s_movk_i32 s50, 0x4280')
    for e in range(9):
        A(f'''
        v_subrev_u32 v34, {e}, v33
        v_cvt_f32_u32 v35, v34
        v_cvt_pk_bf16_f32 v35, v35, v35
        v_and_b32 v35, 0xffff, v35
        v_subrev_u32 v35, s50, v35
        v_cmp_gt_u32 vcc, 128, v34
        v_cndmask_b32 v35, v35, v34, vcc
        v_and_b32 v35, 0x3ff, v35
        v_min_u32 v35, 703, v35
        v_lshlrev_b32 v35, 2, v35
        v_add_u32 v{24 + e}, {L_T}, v35
        ''')
    A(f'''
    v_and_b32 v34, 31, v2
    v_lshrrev_b32 v35, 5, v2
    s_mul_i32 s50, s22, {TSZ}
    s_add_u32 s50, s50, {L_T}
    v_cmp_eq_u32 vcc, 1, v35
    v_lshlrev_b32 v36, 5, v34
    v_lshlrev_b32 v37, 4, v35
    v_add3_u32 v40, v36, v37, s50
    ''')
    for r in range(4, 12):
        if r < 8:
            c0, s0 = 256 + (r - 4), 4
            c1, s1 = 384 + 64 * ((r - 4) >> 1) + ((r - 4) & 1), 2
        else:
            c0, s0 = 512 + 32 * (r - 8), 1
            c1, s1 = (640, 1) if r == 8 else (672, 1)
        A(f'''
        v_mul_u32_u24 v36, {4 * s0}, v34
        v_add_u32 v36, {4 * c0}, v36
        v_mul_u32_u24 v37, {4 * s1}, v34
        v_add_u32 v37, {4 * c1}, v37
        v_cndmask_b32 v36, v36, v37, vcc
        v_add_u32 v{37 + r}, s50, v36
        ''')
    A(f'''
    v_mov_b32 v50, 0
    v_mov_b32 v51, 0
    v_mov_b32 v52, 0
    v_mov_b32 v53, 0
    v_lshlrev_b32 v55, 4, v0
    v_add_u32 v55, {L_U}, v55
    v_cmp_gt_u32 vcc, 30, v0
    s_and_saveexec_b64 s[52:53], vcc
    ds_write_b128 v55, v[50:53]
    ds_write_b128 v55, v[50:53] offset:{USZ}
    s_mov_b64 exec, s[52:53]
    v_cmp_gt_u32 vcc, 2, v0
    s_and_saveexec_b64 s[52:53], vcc
    ''')
    for k in range(4): A(f'ds_write_b128 v55, v[50:53] offset:{L_R - L_U + k * RSZ + 2 * 2064}')
    A('s_mov_b64 exec, s[52:53]')
    A(f'''
    v_bfe_u32 v50, v2, 2, 2
    v_lshl_add_u32 v51, v4, 3, v50
    v_lshlrev_b32 v51, 7, v51
    v_and_b32 v52, 3, v2
    v_lshlrev_b32 v52, 3, v52
    s_lshl_b32 s42, s22, 5
    s_add_u32 s42, s42, {L_XI}
    v_add3_u32 v51, v51, v52, s42
    s_lshl_b32 s42, s23, 6
    s_lshl_b32 s43, s22, 4
    s_add_u32 s42, s42, s43
    v_add_u32 v53, s42, v3
    v_lshlrev_b32 v53, 12, v53
    v_lshlrev_b32 v54, 4, v4
    s_lshl_b32 s42, s26, 7
    s_add_u32 s42, s42, {WS_XT2}
    v_add3_u32 v53, v53, v54, s42
    s_lshl_b32 s47, s26, 2
    s_add_u32 s47, s47, s22
    v_lshrrev_b32 v56, 3, v2
    s_lshl_b32 s48, s47, 5
    v_add_u32 v56, s48, v56
    v_lshlrev_b32 v56, 10, v56
    v_and_b32 v57, 7, v2
    v_lshlrev_b32 v57, 4, v57
    s_lshl_b32 s48, s23, 7
    v_add3_u32 v56, v56, v57, s48
    s_lshl_b32 s49, s22, 12
    s_add_u32 s49, s49, {L_W2}
    s_lshr_b32 s55, s26, 1
    ''')
    for j in range(7):
        A(f'''
        v_add_u32 v60, {64 * j}, v2
        v_mul_u32_u24 v61, 4682, v60
        v_lshrrev_b32 v61, 16, v61
        v_mul_u32_u24 v62, 14, v61
        v_sub_u32 v62, v60, v62
        v_mul_u32_u24 v61, 3584, v61
        v_lshlrev_b32 v62, 4, v62
        v_add_u32 v{232 + j}, v61, v62
        ''')
    A('s_mul_i32 s56, s55, 224')
    for j in range(7): A(f'v_add_u32 v{232 + j}, s56, v{232 + j}')
    A('s_waitcnt vmcnt(8) lgkmcnt(0)\n s_barrier')
    stamp(A, 2)
    A(f'''
    ds_read_b64_tr_b16 v[96:97], v51
    ds_read_b64_tr_b16 v[98:99], v51 offset:512
    ds_read_b64_tr_b16 v[100:101], v51 offset:4096
    ds_read_b64_tr_b16 v[102:103], v51 offset:4608
    s_waitcnt lgkmcnt(0)
    global_store_dwordx4 v53, v[96:99], s[20:21] sc1
    global_store_dwordx4 v53, v[100:103], s[20:21] offset:64 sc1
    ''')
    for row in range(2):
        for k in range(4):
            src = 8 + 4 * row + k
            A(f'v_lshlrev_b32 v{64 + 8 * row + 2 * k}, 16, v{src}')
            A(f'v_and_b32 v{65 + 8 * row + 2 * k}, 0xffff0000, v{src}')
    A(f's_cmp_lt_u32 s2, 112\n s_cbranch_scc0 {N}_nw2')
    for i in range(4):
        A(f's_add_u32 m0, s49, {1024 * i}\n v_add_u32 v57, {8192 * i}, v56\n global_load_lds_dwordx4 v57, s[32:33]')
    A(f'{N}_nw2:')
    for row in range(2):
        b = 64 + 8 * row
        A(f'v_add_f32 v{80 + row}, v{b}, v{b + 1}')
        A(f'v_add_f32 v{82 + row}, v{b + 2}, v{b + 3}')
        A(f'v_add_f32 v{84 + row}, v{b + 4}, v{b + 5}')
        A(f'v_add_f32 v{86 + row}, v{b + 6}, v{b + 7}')
    for row in range(2):
        A(f'v_add_f32 v{80 + row}, v{80 + row}, v{82 + row}')
        A(f'v_add_f32 v{84 + row}, v{84 + row}, v{86 + row}')
    for row in range(2): A(f'v_add_f32 v{80 + row}, v{80 + row}, v{84 + row}')
    allsum64(A, [80, 81], [82, 83])
    for row in range(2): A(f'v_mul_f32 v{80 + row}, 0x3b000000, v{80 + row}')
    for row in range(2):
        b = 64 + 8 * row
        for k in range(8): A(f'v_sub_f32 v{b + k}, v{b + k}, v{80 + row}')
    for row in range(2):
        b = 64 + 8 * row
        A(f'v_mul_f32 v{84 + row}, v{b}, v{b}')
        A(f'v_mul_f32 v{86 + row}, v{b + 1}, v{b + 1}')
    for k in range(2, 8, 2):
        for row in range(2):
            b = 64 + 8 * row
            A(f'v_fmac_f32 v{84 + row}, v{b + k}, v{b + k}')
            A(f'v_fmac_f32 v{86 + row}, v{b + k + 1}, v{b + k + 1}')
    for row in range(2): A(f'v_add_f32 v{84 + row}, v{84 + row}, v{86 + row}')
    allsum64(A, [84, 85], [82, 83])
    for row in range(2):
        A(f'v_mul_f32 v{84 + row}, 0x3b000000, v{84 + row}')
    for row in range(2): A(f'v_cvt_pk_bf16_f32 v{84 + row}, v{84 + row}, v{84 + row}')
    for row in range(2): A(f'v_lshlrev_b32 v{84 + row}, 16, v{84 + row}')
    for row in range(2): A(f'v_add_f32 v{84 + row}, {EPS:#x}, v{84 + row}')
    for row in range(2): A(f'v_cvt_pk_bf16_f32 v{84 + row}, v{84 + row}, v{84 + row}')
    for row in range(2): A(f'v_lshlrev_b32 v{84 + row}, 16, v{84 + row}')
    for row in range(2): A(f'v_sqrt_f32 v{84 + row}, v{84 + row}')
    A(f'''
    s_mul_i32 s38, s38, 0x9e3779b1
    s_add_u32 s38, s38, 0x7f4a7c15
    v_cvt_pk_bf16_f32 v88, v80, v84
    v_cvt_pk_bf16_f32 v90, v81, v85
    v_mov_b32 v89, s38
    v_mov_b32 v91, s38
    s_lshl_b32 s50, s40, 3
    s_add_u32 s50, s50, {WS_GR}
    v_mov_b32 v92, s50
    s_cmp_lt_u32 s2, 112
    s_cbranch_scc1 {N}_wd1
    s_waitcnt vmcnt(0)
    s_branch {N}_wd2
    {N}_wd1:
    s_waitcnt vmcnt(4)
    {N}_wd2:
    s_barrier
    ''')
    lane0_store(A, 'global_store_dwordx4 v92, v[88:91], s[20:21] sc1')
    stamp(A, 3)
    A(f'''
    s_cmp_eq_u32 s22, 0
    s_cbranch_scc0 {N}_nmw
    s_mul_i32 s45, s2, {56 * 128}
    v_min_u32 v6, 55, v2
    v_lshlrev_b32 v6, 7, v6
    v_add_u32 v6, s45, v6
    global_load_dword v250, v6, s[28:29]
    v_min_u32 v6, 27, v2
    v_lshlrev_b32 v6, 7, v6
    global_load_dword v251, v6, s[30:31]
    v_min_u32 v6, 7, v2
    v_lshlrev_b32 v6, 7, v6
    global_load_dword v252, v6, s[34:35]
    {N}_nmw:
    ''')
    if ABL('w1wait'):
        A('s_waitcnt vmcnt(0)')
        stamp(A, '3w')
    A(f's_add_u32 s57, s22, 12\n s_mul_i32 s56, s57, {32 * 3584}\n s_mul_i32 s57, s57, {32 * 224}')
    early = [f's_add_u32 m0, s57, {W1S + j * 1024}\n v_add_u32 v239, s56, v{232 + j}\n global_load_lds_dwordx4 v239, s[28:29]' for j in range(7)]
    outerA = A; A = Asm()
    for i in range(16, 24): A(f'v_lshlrev_b32 v{i}, 16, v{i}')
    A(f'v_mul_f32 v22, {LOG2E:#x}, v22\n v_exp_f32 v22, v22')
    round_bf16(A, 22, 22)
    A(f'''
    v_mul_f32 v16, v22, v16
    v_mul_f32 v17, v22, v17
    v_mul_f32 v18, v22, v18
    v_mul_f32 v19, v22, v19
    v_mul_f32 v16, {LOG2E:#x}, v16
    v_mul_f32 v17, {INV2PI:#x}, v17
    ''')
    Z1, Z2, Z4, Z8, Z32, Z256 = 56, 58, 60, 62, 64, 66
    def cm(D, X, Yr, T):
        return [f'v_pk_mul_f32 v[{T}:{T+1}], v[{X}:{X+1}], v[{Yr}:{Yr+1}] op_sel_hi:[1,0]',
                f'v_pk_fma_f32 v[{D}:{D+1}], v[{X}:{X+1}], v[{Yr}:{Yr+1}], v[{T}:{T+1}] op_sel:[1,1,0] op_sel_hi:[0,1,1] neg_lo:[1,0,0]']
    pw = [(Z1, 1), (Z8, 8), (Z32, 32), (Z256, 256)]
    for k, (d, p) in enumerate(pw):
        lit = '1.0' if p == 1 else hex(f2u(p))
        A(f'v_mul_f32 v{100 + 2 * k}, {lit}, v16\n v_mul_f32 v{101 + 2 * k}, {lit}, v17')
    for x in cm(50, 20, 18, 52): A(x)
    for k in range(4): A(f'v_exp_f32 v{100 + 2 * k}, v{100 + 2 * k}\n v_fract_f32 v{101 + 2 * k}, v{101 + 2 * k}')
    for k, (d, p) in enumerate(pw): A(f'v_cos_f32 v{d}, v{101 + 2 * k}\n v_sin_f32 v{d + 1}, v{101 + 2 * k}')
    for k, (d, p) in enumerate(pw): A(f'v_pk_mul_f32 v[{d}:{d + 1}], v[{d}:{d + 1}], v[{100 + 2 * k}:{101 + 2 * k}] op_sel_hi:[1,0]')
    A(f'''
    s_mul_i32 s50, s22, {WSZ}
    s_add_u32 s50, s50, {L_XY}
    v_lshlrev_b32 v34, 2, v2
    v_add_u32 v34, s50, v34
    v_mov_b32 v68, 1.0
    v_mov_b32 v69, 0
    v_mov_b32 v70, v62
    v_mov_b32 v71, v63
    v_mov_b32 v84, v50
    v_mov_b32 v85, v51
    ''')
    a_, b_, c_ = cm(Z2, Z1, Z1, 52), cm(72, Z8, Z8, 76), None
    A(a_[0]); A(b_[0]); A(a_[1]); A(b_[1])
    a_, b_ = cm(Z4, Z2, Z2, 52), cm(74, 72, Z8, 76)
    A(a_[0]); A(b_[0]); A(a_[1]); A(b_[1])
    Y = [68, 70, 72, 74]; TM = [76, 78, 80, 82]
    def pX(row, reg, t): return [f'v_cvt_pk_bf16_f32 v{t}, v{reg}, v{reg + 1}', f'ds_write_b32 v34, v{t} offset:{row * PITCH}']
    def pY(row, reg, t): return [f'v_cvt_pk_bf16_f32 v{t}, v{reg}, -v{reg + 1}', f'ds_write_b32 v34, v{t} offset:{YOFF + row * PITCH}']
    sy = []
    for it in range(8):
        cv = [pY(4 * it + c, Y[c], 86 + c) for c in range(4)]
        sy += [x[0] for x in cv]
        if it < 7: sy += [cm(Y[c], Y[c], Z32, TM[c])[0] for c in range(4)]
        sy += [x[1] for x in cv]
        if it < 7: sy += [cm(Y[c], Y[c], Z32, TM[c])[1] for c in range(4)]
    sa = pX(0, 50, 90)
    for p in range(1, 8): sa += cm(50, 50, Z1, 52) + pX(p, 50, 90)
    Wc = 84; sb = []
    def wstep(row): return cm(Wc, Wc, Z256, 92) + pX(row, Wc, 91)
    def bstep(src, z, row): return cm(94, src, z, 96) + pX(row, 94, 98)
    sb += wstep(8) + bstep(Wc, Z2, 9) + bstep(94, Z2, 10) + bstep(94, Z2, 11) + wstep(12) + bstep(Wc, Z4, 13) + wstep(14) + bstep(Wc, Z4, 15)
    for row in range(16, 21): sb += wstep(row)
    iy = ia = ib = 0
    while iy < len(sy) or ia < len(sa) or ib < len(sb):
        for _ in range(2):
            if iy < len(sy): A(sy[iy]); iy += 1
        if ib < len(sb): A(sb[ib]); ib += 1
        if iy < len(sy): A(sy[iy]); iy += 1
        if ia < len(sa): A(sa[ia]); ia += 1
        elif ib < len(sb): A(sb[ib]); ib += 1
    seg = A; A = outerA
    interleave(A, seg, early, first=2, last_frac=0.9)
    stamp(A, 5)
    A(f'v_lshlrev_b32 v208, 6, v0\n v_add_u32 v208, {WS_GR}, v208')
    for k in range(4): A(f'global_load_dwordx4 v[{192 + 4 * k}:{195 + 4 * k}], v208, s[20:21] offset:{16 * k} sc1')
    A(f'''
    v_and_b32 v38, 31, v2
    v_lshrrev_b32 v39, 5, v2
    v_mul_u32_u24 v38, {PITCH}, v38
    v_lshlrev_b32 v39, 4, v39
    v_add3_u32 v35, v38, v39, s50
    ''')
    A.auto(True)
    for t in range(8):
        A(f'ds_read_b128 v[{88 + 8 * t}:{91 + 8 * t}], v35 offset:{32 * t}')
        A(f'ds_read_b128 v[{92 + 8 * t}:{95 + 8 * t}], v35 offset:{YOFF + 32 * t}')
    for t in range(8):
        b = 88 + 8 * t; acc = 160 if t % 2 == 0 else 176
        cin = '0' if t < 2 else f'v[{acc}:{acc + 15}]'
        A(f'v_mfma_f32_32x32x16_bf16 v[{acc}:{acc + 15}], v[{b}:{b+3}], v[{b+4}:{b+7}], {cin}')
    A.auto(False)
    for r in range(12): A(f'v_add_f32 v{160 + r}, v{160 + r}, v{176 + r}')
    for r in range(4): A(f'ds_write_b32 v40, v{160 + r} offset:{4 * r}')
    for r in range(4, 12): A(f'ds_write_b32 v{37 + r}, v{160 + r}')
    A('s_waitcnt lgkmcnt(0)\n s_barrier')
    stamp(A, 6)
    for ch in range(2):
        for e in range(9):
            A(f'ds_read_b32 v{64 + 18 * ch + e}, v{24 + e} offset:{TSZ * 2 * ch}')
            A(f'ds_read_b32 v{73 + 18 * ch + e}, v{24 + e} offset:{TSZ * (2 * ch + 1)}')
    A(f'''
    v_lshlrev_b32 v54, 4, v0
    v_add_u32 v54, {L_R + 32}, v54
    v_cmp_eq_u32 vcc, 255, v0
    s_waitcnt lgkmcnt(0)
    ''')
    for ch in range(2):
        b = 64 + 18 * ch
        for e in range(9): A(f'v_add_f32 v{b + e}, v{b + e}, v{b + 9 + e}')
        A(f'v_cndmask_b32_e64 v{b + 8}, v{b + 8}, 0, vcc')
        for k in range(4):
            A(f'v_cvt_pk_bf16_f32 v{104 + 8 * ch + k}, v{b + 2 * k}, v{b + 2 * k + 1}')
            A(f'v_cvt_pk_bf16_f32 v{108 + 8 * ch + k}, v{b + 2 * k + 1}, v{b + 2 * k + 2}')
        A(f'ds_write_b128 v54, v[{104 + 8 * ch}:{107 + 8 * ch}] offset:{2 * RSZ * ch}')
        A(f'ds_write_b128 v54, v[{108 + 8 * ch}:{111 + 8 * ch}] offset:{2 * RSZ * ch + RSZ}')
    stamp(A, 7)

def phase_b(A, N):
    loads = '\n'.join(f'global_load_dwordx4 v[{192 + 4 * k}:{195 + 4 * k}], v208, s[20:21] offset:{16 * k} sc1' for k in range(4))
    chk = 'v_cmp_eq_u32 vcc, s38, v193\n'
    for r in (195, 197, 199, 201, 203, 205, 207):
        chk += f'v_cmp_eq_u32 s[52:53], s38, v{r}\n s_and_b64 vcc, vcc, s[52:53]\n'
    chk += 's_cmp_eq_u64 vcc, -1'
    A('s_waitcnt vmcnt(0)')
    A(chk)
    A(f's_cbranch_scc1 {N}_p1_ok')
    poll_loop(A, f'{N}_p1', loads, chk)
    stamp(A, 8)
    A(f'''
    s_lshl_b32 s45, s27, 13
    s_add_u32 s45, s45, {WS_XT2}
    v_lshlrev_b32 v5, 4, v0
    v_add_u32 v6, s45, v5
    v_add_u32 v7, 4096, v6
    global_load_dwordx4 v[80:83], v6, s[20:21] sc1
    global_load_dwordx4 v[84:87], v7, s[20:21] sc1
    s_lshr_b32 s55, s26, 1
    s_lshr_b32 s42, s22, 1
    s_and_b32 s44, s22, 1
    ''')
    A(f'''
    s_cmp_lt_u32 s2, 112
    s_cbranch_scc0 {N}_nw2b
    v_bfe_u32 v50, v2, 2, 2
    v_and_b32 v52, 3, v2
    v_lshlrev_b32 v52, 3, v52
    v_lshl_add_u32 v50, v4, 2, v50
    v_lshlrev_b32 v50, 7, v50
    v_add3_u32 v50, v50, v52, s49
    s_mul_i32 s48, s23, {4 * 56}
    s_add_u32 s48, s48, s47
    s_lshl_b32 s48, s48, 10
    s_add_u32 s48, s48, {WS_W2P}
    v_lshlrev_b32 v53, 4, v2
    v_add_u32 v53, s48, v53
    ''')
    for i in range(4):
        A(f'ds_read_b64_tr_b16 v[{100 + 4 * i}:{101 + 4 * i}], v50 offset:{32 * i}')
        A(f'ds_read_b64_tr_b16 v[{102 + 4 * i}:{103 + 4 * i}], v50 offset:{32 * i + 2048}')
    A('s_waitcnt lgkmcnt(0)')
    for i in range(4):
        A(f'v_add_u32 v54, {56 * 1024 * i}, v53')
        A(f'global_store_dwordx4 v54, v[{100 + 4 * i}:{103 + 4 * i}], s[20:21] sc1')
    A(f'{N}_nw2b:')
    A(f's_mul_i32 s56, s22, {3 * 32 * 3584}\n s_mul_i32 s57, s22, {3 * 32 * 224}')
    w1f = [f's_add_u32 m0, s57, {W1S + b * 32 * 224 + j * 1024}\n v_add_u32 v239, {b * 32 * 3584}, v{232 + j}\n v_add_u32 v239, s56, v239\n global_load_lds_dwordx4 v239, s[28:29]' for b in range(3) for j in range(7)]
    for e in range(8):
        p = 64 + 2 * e; q = 192 + 2 * e
        A(f'v_and_b32 v{p + 1}, 0xffff0000, v{q}\n v_lshlrev_b32 v{p}, 16, v{q}\n v_rcp_f32 v{p + 1}, v{p + 1}')
    A(f'''
    v_lshlrev_b32 v56, 5, v3
    v_lshlrev_b32 v57, 4, v4
    v_add_u32 v56, v56, v57
    s_lshl_b32 s45, s44, 8
    s_mul_i32 s46, s42, {USZ}
    s_sub_u32 s46, s46, s45
    s_add_u32 s46, s46, {L_U + 448}
    v_add_u32 v60, s46, v56
    v_lshrrev_b32 v58, 1, v3
    v_lshlrev_b32 v58, 2, v58
    v_sub_u32 v58, v57, v58
    v_and_b32 v59, 1, v3
    v_sub_u32 v59, 1, v59
    v_mul_u32_u24 v59, {RSZ}, v59
    v_add_u32 v58, v58, v59
    s_mul_i32 s46, s42, {2 * RSZ}
    s_sub_u32 s46, s46, s45
    s_add_u32 s46, s46, {L_R + 4092}
    v_add_u32 v58, s46, v58
    ''')
    for k in range(4): A(f'v_subrev_u32 v{12 + k}, {512 * (2 * k + 1)}, v58')
    A(f's_cmp_lt_u32 s2, 112\n s_cbranch_scc1 {N}_wx1\n s_waitcnt vmcnt(0)\n s_branch {N}_wx2\n {N}_wx1:\n s_waitcnt vmcnt(4)\n {N}_wx2:')
    stamp(A, '8b')
    for ch in range(2):
        b = 88 + 8 * ch; src = 80 + 4 * ch
        for k in range(4):
            A(f'v_lshlrev_b32 v{b + 2 * k}, 16, v{src + k}')
            A(f'v_and_b32 v{b + 2 * k + 1}, 0xffff0000, v{src + k}')
    for e in range(8):
        for ch in range(2): A(f'v_sub_f32 v{88 + 8 * ch + e}, v{88 + 8 * ch + e}, v{64 + 2 * e}')
    for ch in range(2):
        for k in range(4): A(f'v_cvt_pk_bf16_f32 v{104 + 4 * ch + k}, v{88 + 8 * ch + 2 * k}, v{89 + 8 * ch + 2 * k}')
    for ch in range(2):
        for k in range(4):
            A(f'v_lshlrev_b32 v{88 + 8 * ch + 2 * k}, 16, v{104 + 4 * ch + k}')
            A(f'v_and_b32 v{89 + 8 * ch + 2 * k}, 0xffff0000, v{104 + 4 * ch + k}')
    for e in range(8):
        for ch in range(2): A(f'v_mul_f32 v{88 + 8 * ch + e}, v{88 + 8 * ch + e}, v{65 + 2 * e}')
    for ch in range(2):
        for k in range(4): A(f'v_cvt_pk_bf16_f32 v{104 + 4 * ch + k}, v{88 + 8 * ch + 2 * k}, v{89 + 8 * ch + 2 * k}')
    A(f'''
    v_add_u32 v5, {L_U + 480}, v5
    ds_write_b128 v5, v[104:107]
    ds_write_b128 v5, v[108:111] offset:{USZ}
    s_waitcnt lgkmcnt(0)
    s_barrier
    ''')
    stamp(A, 9)
    A(f'''
    v_lshlrev_b32 v56, 5, v3
    v_lshlrev_b32 v57, 3, v4
    v_add_u32 v56, v56, v57
    s_lshl_b32 s45, s44, 11
    s_lshl_b32 s46, s27, 1
    s_add_u32 s46, s46, s42
    s_lshl_b32 s46, s46, 12
    s_add_u32 s46, s46, s45
    s_add_u32 s46, s46, {WS_XT2}
    v_add_u32 v59, s46, v56
    ''')
    for t in range(4): A(f'global_load_dwordx2 v[{240 + 2 * t}:{241 + 2 * t}], v59, s[20:21] offset:{512 * t} sc1')
    A(f'''
    s_and_b32 s59, s26, 7
    s_mul_i32 s45, s59, {4 * 56}
    s_mul_i32 s46, s22, 14
    s_add_u32 s45, s45, s46
    s_lshl_b32 s45, s45, 10
    s_add_u32 s45, s45, {WS_W2P}
    v_lshlrev_b32 v6, 4, v2
    v_add_u32 v8, s45, v6
    ''')
    G = [72, 136]; F = [104, 168]; ACC = 200
    def loads_(set_):
        Gs = [f'ds_read_b128 v[{G[set_] + 4 * t}:{G[set_] + 4 * t + 3}], v60 offset:{512 * t}' for t in range(8)]
        Fs = []
        for j in range(8):
            k = j >> 1; o = 0 if (j & 1) else 128
            Fs.append([f'ds_read2_b32 v[{F[set_] + 4 * j}:{F[set_] + 4 * j + 1}], v{12 + k} offset0:{o} offset1:{o + 1}',
                       f'ds_read2_b32 v[{F[set_] + 4 * j + 2}:{F[set_] + 4 * j + 3}], v{12 + k} offset0:{o + 2} offset1:{o + 3}'])
        return Fs[0] + Gs + [x for f in Fs[1:] for x in f]
    adv = ['v_subrev_u32 v60, 64, v60'] + [f'v_subrev_u32 v{12 + k}, 64, v{12 + k}' for k in range(4)]
    def mfmas(set_, first):
        out = []
        for j in range(8):
            for t in range(8 - j):
                acc = ACC + 4 * (t + j)
                cin = '0' if (first and j == 0) else f'v[{acc}:{acc+3}]'
                out.append(f'v_mfma_f32_16x16x32_bf16 v[{acc}:{acc+3}], v[{F[set_] + 4 * j}:{F[set_] + 4 * j + 3}], v[{G[set_] + 4 * t}:{G[set_] + 4 * t + 3}], {cin}')
        return out
    A.auto(True)
    for x in loads_(0) + adv: A(x)
    wi = 0
    NW1 = ENV('NW1', 21); W2B = ENV('W2B', 0); W2BSTEP = ENV('W2BSTEP', 7); w2b = 0
    for it in range(4):
        fill = (loads_((it + 1) & 1) + adv) if it < 3 else []
        ms = mfmas(it & 1, it == 0)
        fi = 0
        for i, m in enumerate(ms):
            A(m)
            if fi < len(fill): A(fill[fi]); fi += 1
            if i % ENV('W1STEP', 6) == ENV('W1STEP', 6) - 1 and wi < NW1: A(w1f[wi]); wi += 1
            if i % W2BSTEP == 2 and w2b < W2B: A(w2txt(w2b)); w2b += 1
        assert fi == len(fill)
    A.auto(False)
    assert w2b == W2B, w2b
    global W2DONE_B
    W2DONE_B = w2b
    stamp(A, 10)
    for x in w1f[wi:]: A(x)
    A(f'''
    s_lshl_b32 s45, s22, 12
    s_add_u32 s45, s45, {L_RED}
    v_lshlrev_b32 v68, 4, v2
    v_add_u32 v69, s45, v68
    s_xor_b32 s46, s22, 1
    s_lshl_b32 s46, s46, 12
    s_add_u32 s46, s46, {L_RED}
    v_add_u32 v70, s46, v68
    s_cmp_eq_u32 s44, 0
    s_cbranch_scc0 {N}_odd
    ''')
    for t in range(4): A(f'ds_write_b128 v69, v[{ACC + 16 + 4 * t}:{ACC + 16 + 4 * t + 3}] offset:{1024 * t}')
    A(f's_branch {N}_join\n {N}_odd:')
    for t in range(4): A(f'ds_write_b128 v69, v[{ACC + 4 * t}:{ACC + 4 * t + 3}] offset:{1024 * t}')
    for t in range(0, 16, 2): A(f'v_pk_mul_f32 v[{ACC + t}:{ACC + t + 1}], v[{ACC + 16 + t}:{ACC + 17 + t}], 1.0 op_sel_hi:[1,0]')
    A(f'{N}_join:')
    A(f'''
    s_lshl_b32 s45, s44, 11
    s_mul_i32 s46, s42, {USZ}
    s_add_u32 s46, s46, s45
    s_add_u32 s46, s46, {L_U + 480}
    v_add_u32 v57, s46, v56
    ''')
    for t in range(4): A(f'ds_read_b64 v[{88 + 2 * t}:{89 + 2 * t}], v57 offset:{512 * t}')
    A(f'''
    s_lshl_b32 s46, s27, 1
    s_add_u32 s46, s46, s42
    s_lshl_b32 s46, s46, 6
    s_lshl_b32 s47, s44, 20
    s_add_u32 s46, s46, s47
    s_add_u32 s46, s46, {WS_HT}
    v_lshrrev_b32 v58, 1, v3
    v_lshlrev_b32 v58, 15, v58
    v_and_b32 v55, 1, v3
    v_lshlrev_b32 v55, 5, v55
    v_lshlrev_b32 v54, 3, v4
    v_add3_u32 v58, v58, v55, v54
    v_add_u32 v58, s46, v58
    s_waitcnt lgkmcnt(0)
    s_barrier
    ''')
    for t in range(4): A(f'ds_read_b128 v[{72 + 4 * t}:{72 + 4 * t + 3}], v70 offset:{1024 * t}')
    for t in range(4):
        for pr in range(2):
            u = 88 + 2 * t + pr; d = 112 + 4 * t + 2 * pr
            A(f'v_lshlrev_b32 v{d}, 16, v{u}\n v_and_b32 v{d + 1}, 0xffff0000, v{u}')
    for k in range(8): A(f'v_pk_mul_f32 v[{112 + 2 * k}:{113 + 2 * k}], v[{112 + 2 * k}:{113 + 2 * k}], v[22:23] op_sel:[0,1] op_sel_hi:[1,1]')
    for k in range(8): A(f'v_cvt_pk_bf16_f32 v{128 + k}, v{112 + 2 * k}, v{113 + 2 * k}')
    for k in range(8): A(f'v_lshlrev_b32 v{112 + 2 * k}, 16, v{128 + k}\n v_and_b32 v{113 + 2 * k}, 0xffff0000, v{128 + k}')
    A('s_waitcnt lgkmcnt(0)')
    for k in range(8): A(f'v_pk_add_f32 v[{ACC + 2 * k}:{ACC + 2 * k + 1}], v[{ACC + 2 * k}:{ACC + 2 * k + 1}], v[{72 + 2 * k}:{73 + 2 * k}]')
    for k in range(8): A(f'v_cvt_pk_bf16_f32 v{128 + k}, v{ACC + 2 * k}, v{ACC + 2 * k + 1}')
    for k in range(8): A(f'v_lshlrev_b32 v{ACC + 2 * k}, 16, v{128 + k}\n v_and_b32 v{ACC + 2 * k + 1}, 0xffff0000, v{128 + k}')
    for k in range(8): A(f'v_pk_add_f32 v[{ACC + 2 * k}:{ACC + 2 * k + 1}], v[{ACC + 2 * k}:{ACC + 2 * k + 1}], v[{112 + 2 * k}:{113 + 2 * k}]')
    for k in range(8): A(f'v_cvt_pk_bf16_f32 v{128 + k}, v{ACC + 2 * k}, v{ACC + 2 * k + 1}')
    for k in range(8): A(f'v_lshlrev_b32 v{ACC + 2 * k}, 16, v{128 + k}\n v_and_b32 v{ACC + 2 * k + 1}, 0xffff0000, v{128 + k}')
    A(f's_waitcnt vmcnt({21 + w2b})')
    for k in range(8): A(f'v_lshlrev_b32 v{112 + 2 * k}, 16, v{240 + k}\n v_and_b32 v{113 + 2 * k}, 0xffff0000, v{240 + k}')
    for k in range(8): A(f'v_pk_add_f32 v[{ACC + 2 * k}:{ACC + 2 * k + 1}], v[{ACC + 2 * k}:{ACC + 2 * k + 1}], v[{112 + 2 * k}:{113 + 2 * k}]')
    for t in range(4):
        for pr in range(2): A(f'v_cvt_pk_bf16_f32 v{128 + 2 * t + pr}, v{ACC + 4 * t + 2 * pr}, v{ACC + 4 * t + 2 * pr + 1}')
        A(f'global_store_dwordx2 v58, v[{128 + 2 * t}:{129 + 2 * t}], s[20:21] sc1')
        if t < 3: A('v_add_u32 v58, 0x40000, v58')
    A(f'''
    s_waitcnt vmcnt(0)
    s_barrier
    s_cmp_eq_u32 s22, 0
    s_cbranch_scc0 {N}_nf2
    s_lshl_b32 s45, s2, 6
    s_add_u32 s45, s45, {WS_F2}
    v_mov_b32 v5, s45
    v_mov_b32 v6, s38
    ''')
    lane0_store(A, f'global_store_dword v5, v6, s[20:21] sc1\n s_cmp_eq_u32 s2, 0\n s_cbranch_scc0 {N}_nf2b\n v_mov_b32 v5, {WS_TAG}\n global_store_dword v5, v6, s[20:21] sc1\n {N}_nf2b:')
    A(f'{N}_nf2:')
    stamp(A, 11)
    A('v_lshlrev_b32 v5, 4, v2')
    A(f's_cmp_eq_u32 s22, 0\n s_cbranch_scc0 {N}_np2a\n v_lshlrev_b32 v9, 6, v2\n v_add_u32 v9, {WS_F2}, v9\n v_add_u32 v10, 4096, v9\n v_add_u32 v11, 8192, v9\n v_add_u32 v6, 12288, v9')
    for k, r in enumerate((9, 10, 11, 6)): A(f'global_load_dword v{176 + k}, v{r}, s[20:21] sc1')
    A(f'{N}_np2a:')
    A(f'''
    v_bfe_u32 v14, v2, 2, 2
    v_lshl_add_u32 v14, v4, 2, v14
    v_mul_u32_u24 v14, 224, v14
    v_and_b32 v15, 3, v2
    v_lshlrev_b32 v15, 3, v15
    v_add_u32 v14, v14, v15
    s_lshl_b32 s45, s22, 6
    s_min_u32 s46, s45, 160
    s_min_u32 s45, s45, 192
    s_add_u32 s46, s46, 32
    v_add_u32 v12, s45, v14
    v_add_u32 v13, s46, v14
    v_add_u32 v16, {8 * 7168}, v12
    v_add_u32 v17, {8 * 7168}, v13
    v_mov_b32 v18, 0x3f803f80
    v_mov_b32 v19, 0x3f803f80
    v_mov_b32 v20, 0x3f803f80
    v_mov_b32 v21, 0x3f803f80
    ''')
    A.auto(True)
    NB = 6
    def cs_reads(s_):
        out = []
        for t in range(2):
            b = 24 + 8 * (s_ % NB) + 4 * t
            base = (12 + t) if s_ < 8 else (16 + t)
            out.append(f'ds_read_b64_tr_b16 v[{b}:{b + 1}], v{base} offset:{7168 * (s_ % 8)}')
            out.append(f'ds_read_b64_tr_b16 v[{b + 2}:{b + 3}], v{base} offset:{7168 * (s_ % 8) + 3584}')
        return out
    for s_ in range(NB - 2):
        for x in cs_reads(s_): A(x)
    for s_ in range(16):
        if s_ + NB - 2 < 16:
            for x in cs_reads(s_ + NB - 2): A(x)
        for t in range(2):
            b = 24 + 8 * (s_ % NB) + 4 * t; acc = 140 + 8 * (s_ & 1) + 4 * t
            cin = '0' if s_ < 2 else f'v[{acc}:{acc+3}]'
            A(f'v_mfma_f32_16x16x32_bf16 v[{acc}:{acc+3}], v[{b}:{b+3}], v[18:21], {cin}')
    A.auto(False)
    for k in range(0, 8, 2): A(f'v_pk_add_f32 v[{140 + k}:{141 + k}], v[{140 + k}:{141 + k}], v[{148 + k}:{149 + k}]')
    stamp(A, '11a')
    A(f'''
    s_lshl_b32 s45, s22, 7
    s_add_u32 s45, s45, {L_CSX}
    v_lshlrev_b32 v13, 4, v4
    v_add_u32 v13, s45, v13
    v_cmp_eq_u32 vcc, 0, v3
    s_and_saveexec_b64 s[52:53], vcc
    ds_write_b128 v13, v[140:143]
    ds_write_b128 v13, v[144:147] offset:64
    s_mov_b64 exec, s[52:53]
    s_mul_i32 s45, s55, 112
    v_lshlrev_b32 v10, 2, v4
    v_add_u32 v10, s45, v10
    v_lshlrev_b32 v10, 1, v10
    ''')
    for i in range(7): A(f'global_load_dwordx2 v[{228 + 2 * i}:{229 + 2 * i}], v10, s[30:31] offset:{32 * i}')
    A(f'''
    s_waitcnt lgkmcnt(0)
    s_barrier
    v_lshlrev_b32 v13, 4, v4
    v_add_u32 v13, {L_CSX}, v13
    ''')
    CS = 200
    for ft in range(7): A(f'ds_read_b128 v[{CS + 4 * ft}:{CS + 4 * ft + 3}], v13 offset:{64 * ft}')
    stamp(A, '11b')
    A(f's_cmp_eq_u32 s22, 0\n s_cbranch_scc0 {N}_np2')
    A(f'v_lshlrev_b32 v9, 6, v2\n v_add_u32 v9, {WS_F2}, v9\n v_add_u32 v10, 4096, v9\n v_add_u32 v11, 8192, v9\n v_add_u32 v12, 12288, v9')
    A(f's_mov_b32 s79, {SPIN_MAX}\n s_waitcnt vmcnt(7)\n {N}_p2:')
    for k in range(4): A(f'v_cmp_ne_u32 s[{66 + 2 * k}:{67 + 2 * k}], s38, v{176 + k}')
    A('s_or_b64 s[52:53], s[66:67], s[68:69]\n s_or_b64 vcc, s[70:71], s[72:73]\n s_or_b64 vcc, vcc, s[52:53]\n s_cmp_eq_u64 vcc, 0')
    A(f's_cbranch_scc1 {N}_p2_ok')
    for k in range(4):
        A(f's_mov_b64 exec, s[{66 + 2 * k}:{67 + 2 * k}]\n s_cbranch_execz {N}_p2s{k}\n global_load_dword v{176 + k}, v{9 + k}, s[20:21] sc1\n {N}_p2s{k}:')
    A(f's_mov_b64 exec, -1\n s_waitcnt vmcnt(0)\n s_sub_u32 s79, s79, 1\n s_cmp_eq_u32 s79, 0\n s_cbranch_scc0 {N}_p2\n {N}_p2_ok:\n {N}_np2:')
    A('s_waitcnt lgkmcnt(0)\n s_barrier')
    stamp(A, 12)

def w2txt(k):
    s_, i = k // 4, k % 4
    return f'v_add_u32 v9, {i * 56 * 1024 + s_ * 1024}, v8\n global_load_dwordx4 a[{16 * s_ + 4 * i}:{16 * s_ + 4 * i + 3}], v9, s[20:21] sc1'

def RES(ft, m): return 168 + 16 * m + 2 * ft

def gelu_block(A, N, tag, sc, fillers):
    ACC = 96
    seg = Asm()
    for ft in range(7):
        seg(f'''
        v_lshlrev_b32 v68, 16, v{228 + 2 * ft}
        v_and_b32 v69, 0xffff0000, v{228 + 2 * ft}
        v_lshlrev_b32 v70, 16, v{229 + 2 * ft}
        v_and_b32 v71, 0xffff0000, v{229 + 2 * ft}
        ''')
        cs = 200 + 4 * ft
        P2 = [(m, p) for m in range(2) for p in range(2)]
        for m, p in P2:
            ab = 60 + 2 * m; T = 72 + 4 * m + 2 * p
            seg(f'v_pk_fma_f32 v[{T}:{T + 1}], v[{cs + 2 * p}:{cs + 2 * p + 1}], v[{ab}:{ab + 1}], v[{68 + 2 * p}:{69 + 2 * p}] op_sel:[0,1,0] op_sel_hi:[1,1,1]')
        for m, p in P2:
            x = ACC + 4 * (2 * ft + m) + 2 * p; ab = 60 + 2 * m; T = 72 + 4 * m + 2 * p
            seg(f'v_pk_fma_f32 v[{x}:{x + 1}], v[{x}:{x + 1}], v[{ab}:{ab + 1}], v[{T}:{T + 1}] op_sel:[0,0,0] op_sel_hi:[1,0,1]')
        for m, p in P2:
            x = ACC + 4 * (2 * ft + m) + 2 * p; T = 72 + 4 * m + 2 * p
            seg(f'v_pk_mul_f32 v[{T}:{T + 1}], v[{x}:{x + 1}], v[{x}:{x + 1}]')
        for m, p in P2:
            T = 72 + 4 * m + 2 * p
            seg(f'v_pk_fma_f32 v[{T}:{T + 1}], v[{T}:{T + 1}], v[66:67], v[64:65]')
        for m, p in P2:
            x = ACC + 4 * (2 * ft + m) + 2 * p; T = 72 + 4 * m + 2 * p
            seg(f'v_pk_mul_f32 v[{T}:{T + 1}], v[{T}:{T + 1}], v[{x}:{x + 1}]')
        for k in range(8): seg(f'v_exp_f32 v{72 + k}, v{72 + k}')
        for k in range(4): seg(f'v_pk_add_f32 v[{72 + 2 * k}:{73 + 2 * k}], v[{72 + 2 * k}:{73 + 2 * k}], 1.0 op_sel_hi:[1,0]')
        for k in range(8): seg(f'v_rcp_f32 v{72 + k}, v{72 + k}')
        for m, p in P2:
            x = ACC + 4 * (2 * ft + m) + 2 * p; T = 72 + 4 * m + 2 * p
            seg(f'v_pk_mul_f32 v[{x}:{x + 1}], v[{x}:{x + 1}], v[{T}:{T + 1}]')
        for m in range(2):
            acc = ACC + 4 * (2 * ft + m)
            seg(f'v_cvt_pk_bf16_f32 v{RES(ft, m)}, v{acc}, v{acc + 1}')
            seg(f'v_cvt_pk_bf16_f32 v{RES(ft, m) + 1}, v{acc + 2}, v{acc + 3}')
        ev = []; od = []
        for m in range(2):
            if ft % 2 == 1: ev.append(f'global_store_dwordx4 v{10 + m}, v[{RES(ft - 1, m)}:{RES(ft - 1, m) + 3}], s[20:21] offset:{1024 * (ft // 2)}' + sc)
            if ft == 6: ev.append(f'global_store_dwordx2 v{12 + m}, v[{RES(6, m)}:{RES(6, m) + 1}], s[20:21] offset:3072' + sc)
            if ft == 0: od.append(f'global_store_dwordx2 v{12 + m}, v[{RES(0, m)}:{RES(0, m) + 1}], s[20:21] offset:512' + sc)
            if ft % 2 == 0 and ft > 0: od.append(f'global_store_dwordx4 v{10 + m}, v[{RES(ft - 1, m)}:{RES(ft - 1, m) + 3}], s[20:21] offset:{1024 * (ft // 2)}' + sc)
        if ev:
            seg(f's_cmp_eq_u32 s46, 0\n s_cbranch_scc0 {N}_se{tag}{ft}')
            for x in ev: seg(x)
            seg(f'{N}_se{tag}{ft}:')
        if od:
            seg(f's_cmp_eq_u32 s46, 0\n s_cbranch_scc1 {N}_so{tag}{ft}')
            for x in od: seg(x)
            seg(f'{N}_so{tag}{ft}:')
    interleave(A, seg, fillers, first=4, last_frac=0.8)

def phase_c(A, N):
    vm = VM()
    A(f'''
    s_and_b32 s54, s26, 1
    s_lshl_b32 s45, s23, 1
    s_add_u32 s54, s54, s45
    v_lshrrev_b32 v7, 2, v2
    v_lshlrev_b32 v7, 6, v7
    v_and_b32 v10, 3, v2
    v_bfe_u32 v9, v2, 4, 1
    v_lshlrev_b32 v9, 1, v9
    v_xor_b32 v10, v10, v9
    v_lshlrev_b32 v10, 4, v10
    s_lshl_b32 s45, s54, 2
    s_add_u32 s45, s45, s22
    s_lshl_b32 s45, s45, 15
    s_add_u32 s45, s45, {WS_HT}
    v_add3_u32 v7, v7, v10, s45
    s_mul_i32 s58, s22, 12288
    s_add_u32 s58, s58, {HS}
    s_cmp_eq_u32 s22, 0
    s_cbranch_scc0 {N}_nwarmh
    s_lshl_b32 s45, s23, 18
    s_lshl_b32 s46, s26, 13
    s_add_u32 s45, s45, s46
    s_add_u32 s45, s45, {WS_HT}
    v_lshlrev_b32 v9, 7, v2
    v_add_u32 v9, s45, v9
    global_load_dword v250, v9, s[20:21] sc1
    {N}_nwarmh:
    ''')
    def hdma(st):
        slot = st % 3
        A(f's_add_u32 m0, s58, {slot * 4096}\n v_add_u32 v10, {4096 * st}, v7')
        for i in range(4):
            A(f'global_load_lds_dwordx4 v10, s[20:21] offset:{1024 * i} sc1')
            vm.issue()
        vm.mark(f'H{st}')
    def hdma_parts(st):
        slot = st % 3
        return [f's_add_u32 m0, s58, {slot * 4096}\n v_add_u32 v10, {4096 * st}, v7\n global_load_lds_dwordx4 v10, s[20:21] sc1'] + [f'global_load_lds_dwordx4 v10, s[20:21] offset:{1024 * i} sc1' for i in range(1, 4)]
    hdma(0); hdma(1); hdma(2)
    A(f'''
    v_bfe_u32 v14, v2, 2, 2
    v_lshl_add_u32 v14, v4, 2, v14
    v_and_b32 v15, 3, v2
    v_lshlrev_b32 v15, 3, v15
    v_mul_u32_u24 v12, 224, v14
    v_add_u32 v12, v12, v15
    v_add_u32 v13, {8 * 7168}, v12
    v_lshlrev_b32 v14, 6, v14
    v_add3_u32 v14, v14, v15, s58
    v_and_b32 v15, 1, v4
    v_lshlrev_b32 v15, 5, v15
    v_add_u32 v16, v14, v15
    v_xor_b32 v15, 32, v15
    v_add_u32 v17, v14, v15
    ''')
    AF = [24, 60]; BF = [52, 88]; ACC = 96; SUM = 152; GR = 160
    def reads(s_):
        st = s_ & 1; outA = []; outB = []
        base, so = (12, s_) if s_ < 8 else (13, s_ - 8)
        for ft in range(7):
            off = 7168 * so + 32 * ft
            outA.append(f'ds_read_b64_tr_b16 v[{AF[st] + 4 * ft}:{AF[st] + 4 * ft + 1}], v{base} offset:{off}')
            outA.append(f'ds_read_b64_tr_b16 v[{AF[st] + 4 * ft + 2}:{AF[st] + 4 * ft + 3}], v{base} offset:{off + 3584}')
        o = ((s_ // 2) % 3) * 4096 + (s_ & 1) * 2048
        for m in range(2):
            outB.append(f'ds_read_b64_tr_b16 v[{BF[st] + 4 * m}:{BF[st] + 4 * m + 1}], v{16 + m} offset:{o}')
            outB.append(f'ds_read_b64_tr_b16 v[{BF[st] + 4 * m + 2}:{BF[st] + 4 * m + 3}], v{16 + m} offset:{o + 1024}')
        return outB[:2] + outA + outB[2:]
    A(f'''
    s_mul_i32 s45, s23, {16 * 56 * 1024}
    s_mul_i32 s46, s26, {224 * 128}
    s_add_u32 s45, s45, s46
    s_mul_i32 s46, s22, {56 * 128}
    s_add_u32 s45, s45, s46
    s_add_u32 s45, s45, {WS_H1}
    v_min_u32 v6, 55, v2
    v_lshlrev_b32 v6, 7, v6
    v_add_u32 v6, s45, v6
    ''')
    vm.wait(A, 'H0')
    stamp(A, 13)
    A.auto(True)
    for r in reads(0): A(r)
    w2i = W2DONE_B
    HQPOS = eval(os.environ.get('HQPOS', '(0,)'))
    W2LOOP = w2i + ENV('W2LOOP', 44); W2POS = eval(os.environ.get('W2POS', '(5, 10, 15)'))
    for s_ in range(16):
        st = s_ & 1
        hq = []
        if s_ % 2 == 0 and s_ >= 2 and (s_ - 2) // 2 + 3 < 8:
            hq = hdma_parts((s_ - 2) // 2 + 3); hst = (s_ - 2) // 2 + 3
        if s_ == ENV('TOUCHK', 2) and ABL('h1touch'): A('global_load_dword v253, v6, s[20:21]'); vm.issue()
        if s_ < 15:
            n = s_ + 1
            if n % 2 == 0: vm.wait(A, f'H{n // 2}')
            rd = reads(n)
        else: rd = []
        ms = []
        for m in range(2):
            b = BF[st] + 4 * m
            c1 = '0' if s_ == 0 else f'v[{SUM + 4 * m}:{SUM + 4 * m + 3}]'
            c2 = '0' if s_ == 0 else f'v[{GR + 4 * m}:{GR + 4 * m + 3}]'
            for ft in range(7):
                acc = ACC + 4 * (2 * ft + m)
                cin = '0' if s_ == 0 else f'v[{acc}:{acc+3}]'
                ms.append(f'v_mfma_f32_16x16x32_bf16 v[{acc}:{acc+3}], v[{AF[st] + 4 * ft}:{AF[st] + 4 * ft + 3}], v[{b}:{b+3}], {cin}')
            ms.append(f'v_mfma_f32_16x16x32_bf16 v[{SUM + 4 * m}:{SUM + 4 * m + 3}], v[18:21], v[{b}:{b+3}], {c1}')
            ms.append(f'v_mfma_f32_16x16x32_bf16 v[{GR + 4 * m}:{GR + 4 * m + 3}], v[{b}:{b+3}], v[{b}:{b+3}], {c2}')
        ri = 0
        for i, mi in enumerate(ms):
            A(mi)
            if ri < len(rd): A(rd[ri]); ri += 1
            while hq and i in HQPOS:
                A(hq.pop(0)); vm.issue()
                if not hq: vm.mark(f'H{hst}')
                if len(HQPOS) > 1: break
            if i in W2POS:
                if w2i < W2LOOP and s_ >= 1: A(w2txt(w2i)); vm.issue(); w2i += 1
        assert ri == len(rd)
        if s_ in (3, 7, 11): stamp(A, f'c{s_}')
    A.auto(False)
    stamp(A, 14)
    for r in range(4):
        A(f'v_lshl_add_u32 v24, v4, 2, {r}\n v_cmp_eq_u32 vcc, v24, v3\n v_cndmask_b32 v{28 + r}, 0, 1.0, vcc')
    for m in range(2):
        g_ = GR + 4 * m
        A(f'v_mul_f32 v{32 + m}, v{g_}, v28')
        for r in range(1, 4): A(f'v_fmac_f32 v{32 + m}, v{g_ + r}, v{28 + r}')
    for sw in ('v_permlane16_swap_b32', 'v_permlane32_swap_b32'):
        for m in range(2): A(f'v_mov_b32 v{34 + m}, v{32 + m}')
        for m in range(2): A(f'{sw} v{32 + m}, v{34 + m}')
        for m in range(2): A(f'v_add_f32 v{32 + m}, v{32 + m}, v{34 + m}')
    R2 = lambda f: [f(m) for m in range(2)]
    mu, var, m1, r1, t, m2, r2 = (lambda o: (lambda m: o + 8 * m))(44), (lambda m: 45 + 8 * m), (lambda m: 46 + 8 * m), (lambda m: 47 + 8 * m), (lambda m: 48 + 8 * m), (lambda m: 49 + 8 * m), (lambda m: 50 + 8 * m)
    steps = [
        lambda m: f'v_mul_f32 v{mu(m)}, 0x3b000000, v{SUM + 4 * m}',
        lambda m: f'v_mul_f32 v{var(m)}, 0x3b000000, v{32 + m}',
        lambda m: f'v_fma_f32 v{var(m)}, -v{mu(m)}, v{mu(m)}, v{var(m)}',
        lambda m: f'v_max_f32 v{var(m)}, 0, v{var(m)}',
        lambda m: f'v_cvt_pk_bf16_f32 v{m1(m)}, v{mu(m)}, v{mu(m)}',
        lambda m: f'v_cvt_pk_bf16_f32 v{t(m)}, v{var(m)}, v{var(m)}',
        lambda m: f'v_lshlrev_b32 v{m1(m)}, 16, v{m1(m)}',
        lambda m: f'v_lshlrev_b32 v{t(m)}, 16, v{t(m)}',
        lambda m: f'v_add_f32 v{t(m)}, {EPS:#x}, v{t(m)}',
        lambda m: f'v_cvt_pk_bf16_f32 v{t(m)}, v{t(m)}, v{t(m)}',
        lambda m: f'v_lshlrev_b32 v{t(m)}, 16, v{t(m)}',
        lambda m: f'v_sqrt_f32 v{t(m)}, v{t(m)}',
        lambda m: f'v_sub_f32 v{m2(m)}, v{mu(m)}, v{m1(m)}',
        lambda m: f'v_cvt_pk_bf16_f32 v{t(m)}, v{t(m)}, v{t(m)}',
        lambda m: f'v_lshlrev_b32 v{t(m)}, 16, v{t(m)}',
        lambda m: f'v_rcp_f32 v{r1(m)}, v{t(m)}',
        lambda m: f'v_mul_f32 v{m2(m)}, v{m2(m)}, v{r1(m)}',
        lambda m: f'v_mul_f32 v{t(m)}, v{var(m)}, v{r1(m)}',
        lambda m: f'v_cvt_pk_bf16_f32 v{m2(m)}, v{m2(m)}, v{m2(m)}',
        lambda m: f'v_mul_f32 v{t(m)}, v{t(m)}, v{r1(m)}',
        lambda m: f'v_lshlrev_b32 v{m2(m)}, 16, v{m2(m)}',
        lambda m: f'v_cvt_pk_bf16_f32 v{t(m)}, v{t(m)}, v{t(m)}',
        lambda m: f'v_lshlrev_b32 v{t(m)}, 16, v{t(m)}',
        lambda m: f'v_add_f32 v{t(m)}, {EPS:#x}, v{t(m)}',
        lambda m: f'v_cvt_pk_bf16_f32 v{t(m)}, v{t(m)}, v{t(m)}',
        lambda m: f'v_lshlrev_b32 v{t(m)}, 16, v{t(m)}',
        lambda m: f'v_sqrt_f32 v{t(m)}, v{t(m)}',
        lambda m: f'v_cvt_pk_bf16_f32 v{t(m)}, v{t(m)}, v{t(m)}',
        lambda m: f'v_lshlrev_b32 v{t(m)}, 16, v{t(m)}',
        lambda m: f'v_rcp_f32 v{r2(m)}, v{t(m)}',
        lambda m: f'v_fma_f32 v{t(m)}, v{m1(m)}, v{r1(m)}, v{m2(m)}',
        lambda m: f'v_mul_f32 v{60 + 2 * m}, v{r1(m)}, v{r2(m)}',
        lambda m: f'v_mul_f32 v{t(m)}, v{t(m)}, v{r2(m)}',
        lambda m: f'v_sub_f32 v{61 + 2 * m}, 0, v{t(m)}',
    ]
    for st_ in steps:
        for m in range(2): A(st_(m))
    A(f'''
    v_mov_b32 v64, {hex(f2u(GC1))}
    v_mov_b32 v65, {hex(f2u(GC1))}
    v_mov_b32 v66, {hex(f2u(GC2))}
    v_mov_b32 v67, {hex(f2u(GC2))}
    s_lshl_b32 s45, s54, 3
    s_lshl_b32 s46, s22, 1
    s_add_u32 s45, s45, s46
    s_mul_i32 s45, s45, {56 * 1024}
    s_mul_i32 s46, s55, 7
    s_lshr_b32 s47, s46, 1
    s_lshl_b32 s47, s47, 10
    s_add_u32 s45, s45, s47
    s_add_u32 s45, s45, {WS_H1}
    v_add_u32 v10, s45, v5
    v_add_u32 v11, {56 * 1024}, v10
    v_lshlrev_b32 v12, 3, v2
    v_add_u32 v12, s45, v12
    v_add_u32 v13, {56 * 1024}, v12
    s_and_b32 s46, s55, 1
    ''')
    if ABL('fast'): A(f's_cmp_eq_u32 s64, 1\n s_cbranch_scc0 {N}_gslow')
    W2G = ENV('W2GELU', 56)
    w2g_end = min(56, w2i + W2G)
    fill = [w2txt(k) for k in range(w2i, w2g_end)]
    if ABL('fast'):
        gelu_block(A, N, 'f', '', fill)
        A(f's_branch {N}_gdone')
    A(f'{N}_gslow:')
    gelu_block(A, N, 's', ' sc1', fill)
    A(f'{N}_gdone:')
    stamp(A, 15)
    A(f'''
    s_waitcnt vmcnt(0)
    s_barrier
    s_cmp_eq_u32 s22, 0
    s_cbranch_scc0 {N}_nf3
    s_lshl_b32 s45, s54, 4
    s_add_u32 s45, s45, s55
    s_lshl_b32 s45, s45, 6
    s_add_u32 s45, s45, {WS_F3}
    v_mov_b32 v6, s45
    v_mov_b32 v7, s38
    ''')
    lane0_store(A, 'global_store_dword v6, v7, s[20:21] sc1')
    A(f'{N}_nf3:')
    for k in range(w2g_end, 56): A(w2txt(k))

def phase_d(A, N):
    A(f'''
    s_lshr_b32 s60, s26, 3
    s_lshl_b32 s45, s23, 2
    s_add_u32 s60, s60, s45
    s_lshl_b32 s45, s60, 16
    s_lshl_b32 s46, s59, 12
    s_add_u32 s45, s45, s46
    s_lshl_b32 s46, s22, 10
    s_add_u32 s45, s45, s46
    s_add_u32 s45, s45, {WS_HT}
    v_add_u32 v6, s45, v5
    s_lshl_b32 s61, s22, 11
    s_add_u32 s61, s61, 49152
    s_mov_b32 m0, s61
    v_add_u32 v7, 32768, v6
    global_load_lds_dwordx4 v6, s[20:21] sc1
    s_add_u32 m0, s61, 1024
    s_nop 0
    global_load_lds_dwordx4 v7, s[20:21] sc1
    s_lshl_b32 s46, s59, 7
    s_lshl_b32 s47, s22, 5
    s_add_u32 s46, s46, s47
    v_lshlrev_b32 v7, 3, v4
    v_add_u32 v7, s46, v7
    global_load_dwordx2 v[12:13], v7, s[34:35]
    s_lshl_b32 s45, s60, 6
    v_add_u32 v6, s45, v3
    v_lshlrev_b32 v6, 10, v6
    v_add_u32 v14, v6, v7
    s_mul_i32 s45, s60, {4 * 56}
    s_mul_i32 s46, s22, 14
    s_add_u32 s45, s45, s46
    s_lshl_b32 s45, s45, 10
    s_add_u32 s45, s45, {WS_H1}
    ''')
    for m in range(4): A(f'v_add_u32 v{8 + m}, {m * 56 * 1024}, v5\n v_add_u32 v{8 + m}, s45, v{8 + m}')
    A('v_lshlrev_b32 v244, 3, v2')
    A(f'''
    s_cmp_eq_u32 s22, 3
    s_cbranch_scc0 {N}_np3
    s_lshr_b32 s45, s60, 1
    s_lshl_b32 s45, s45, 10
    s_add_u32 s45, s45, {WS_F3}
    v_lshlrev_b32 v6, 6, v3
    v_add_u32 v6, s45, v6
    ''')
    poll_loop(A, f'{N}_p3', 'global_load_dword v15, v6, s[20:21] sc1', 'v_cmp_eq_u32 vcc, s38, v15\n s_cmp_eq_u64 vcc, -1')
    A(f'{N}_np3:\n s_barrier')
    stamp(A, 16)
    NS = 7; B0 = 16; ACC = 176
    PD0 = ENV('PD0', 3); PD = ENV('PD', 5)
    def ltxt(s_):
        st = B0 + 16 * (s_ % NS); o = (s_ % 4) * 1024; out = []
        for m in range(4):
            t = ''
            if s_ % 4 == 0 and s_ > 0: t += f'v_add_u32 v{8 + m}, 4096, v{8 + m}\n'
            if s_ in (3, 10):
                out.append(t + f'v_sub_u32 v{240 + m}, v{8 + m}, v244\n global_load_dwordx2 v[{st + 4 * m}:{st + 4 * m + 1}], v{240 + m}, s[20:21] offset:{o}' + H1LD + f'\n global_load_dwordx2 v[{st + 4 * m + 2}:{st + 4 * m + 3}], v{240 + m}, s[20:21] offset:{o + 512}' + H1LD)
            else:
                out.append(t + f'global_load_dwordx4 v[{st + 4 * m}:{st + 4 * m + 3}], v{8 + m}, s[20:21] offset:{o}' + H1LD)
        return out
    A.auto(True)
    for s_ in range(PD0):
        for t in ltxt(s_): A(t)
    A(f's_waitcnt vmcnt({4 * PD0})')
    issued = PD0
    for s_ in range(14):
        st = B0 + 16 * (s_ % NS)
        q = []
        tgt = min(14, s_ + PD + 1)
        nq = 2 if issued < tgt - 1 else 1
        for _ in range(nq):
            if issued < tgt: q += ltxt(issued); issued += 1
        k = 0; every = 2 if len(q) > 4 else 4
        for m in range(4):
            for i in range(4):
                acc = ACC + 4 * (4 * i + m)
                cin = '0' if s_ == 0 else f'v[{acc}:{acc+3}]'
                A(f'v_mfma_f32_16x16x32_bf16 v[{acc}:{acc+3}], a[{16 * s_ + 4 * i}:{16 * s_ + 4 * i + 3}], v[{st + 4 * m}:{st + 4 * m + 3}], {cin}')
                k += 1
                if q and k % every == 0: A(q.pop(0))
        while q: A(q.pop(0))
        if s_ in (0, 3, 7, 11): stamp(A, f'd{s_}')
    A.auto(False)
    stamp(A, 17)
    A(f's_mul_i32 s45, s22, {3 * 4096}\n v_add_u32 v15, s45, v5')
    A(f'''
    v_bfe_u32 v8, v2, 2, 2
    v_lshl_add_u32 v8, v4, 2, v8
    v_lshlrev_b32 v8, 6, v8
    v_and_b32 v9, 3, v2
    v_lshlrev_b32 v9, 3, v9
    v_add3_u32 v8, v8, v9, s61
    ''')
    for m in range(4): A(f'ds_read_b64_tr_b16 v[{16 + 2 * m}:{17 + 2 * m}], v8 offset:{1024 * (m >> 1) + 32 * (m & 1)}')
    for w in range(4):
        A(f's_cmp_eq_u32 s22, {w}\n s_cbranch_scc0 {N}_r{w}')
        for idx in range(3):
            i = (w + 1 + idx) & 3
            for m in range(4):
                acc = ACC + 4 * (4 * i + m)
                A(f'ds_write_b128 v15, v[{acc}:{acc+3}] offset:{idx * 4096 + m * 1024}')
        if w != 0:
            for k in range(0, 16, 2): A(f'v_pk_mul_f32 v[{ACC + k}:{ACC + k + 1}], v[{ACC + 16 * w + k}:{ACC + 16 * w + k + 1}], 1.0 op_sel_hi:[1,0]')
        A('s_waitcnt lgkmcnt(0)\n s_barrier')
        for q in range(3):
            wp = (w + 1 + q) & 3
            idx = (w - wp - 1) & 3
            for m in range(4):
                A(f'ds_read_b128 v[{32 + 16 * q + 4 * m}:{32 + 16 * q + 4 * m + 3}], v5 offset:{(wp * 3 + idx) * 4096 + m * 1024}')
        A(f's_branch {N}_fin\n {N}_r{w}:')
    A(f'{N}_fin:')
    A(f'''
    v_lshlrev_b32 v24, 16, v12
    v_and_b32 v25, 0xffff0000, v12
    v_lshlrev_b32 v26, 16, v13
    v_and_b32 v27, 0xffff0000, v13
    ''')
    for k in range(8): A(f'v_lshlrev_b32 v{96 + 2 * k}, 16, v{16 + k}\n v_and_b32 v{97 + 2 * k}, 0xffff0000, v{16 + k}')
    A('s_waitcnt lgkmcnt(0)')
    for q in range(3):
        for k in range(8): A(f'v_pk_add_f32 v[{ACC + 2 * k}:{ACC + 2 * k + 1}], v[{ACC + 2 * k}:{ACC + 2 * k + 1}], v[{32 + 16 * q + 2 * k}:{33 + 16 * q + 2 * k}]')
    for k in range(8): A(f'v_cvt_pk_bf16_f32 v{112 + k}, v{ACC + 2 * k}, v{ACC + 2 * k + 1}')
    for k in range(8): A(f'v_lshlrev_b32 v{ACC + 2 * k}, 16, v{112 + k}\n v_and_b32 v{ACC + 2 * k + 1}, 0xffff0000, v{112 + k}')
    for k in range(8): A(f'v_pk_add_f32 v[{ACC + 2 * k}:{ACC + 2 * k + 1}], v[{ACC + 2 * k}:{ACC + 2 * k + 1}], v[{24 + 2 * (k & 1)}:{25 + 2 * (k & 1)}]')
    for k in range(8): A(f'v_cvt_pk_bf16_f32 v{112 + k}, v{ACC + 2 * k}, v{ACC + 2 * k + 1}')
    for k in range(8): A(f'v_lshlrev_b32 v{ACC + 2 * k}, 16, v{112 + k}\n v_and_b32 v{ACC + 2 * k + 1}, 0xffff0000, v{112 + k}')
    for k in range(8): A(f'v_pk_add_f32 v[{ACC + 2 * k}:{ACC + 2 * k + 1}], v[{ACC + 2 * k}:{ACC + 2 * k + 1}], v[{96 + 2 * k}:{97 + 2 * k}]')
    for m in range(4):
        for pr in range(2): A(f'v_cvt_pk_bf16_f32 v{112 + 2 * m + pr}, v{ACC + 4 * m + 2 * pr}, v{ACC + 4 * m + 2 * pr + 1}')
        A(f'v_add_u32 v9, {m * 16384}, v14')
        A(f'global_store_dwordx2 v9, v[{112 + 2 * m}:{113 + 2 * m}], s[36:37]' + os.environ.get('OUTSC', ''))

def gen_mega(N):
    A = Asm()
    stamp(A, 0)
    A(f'''
    s_cmp_ge_u32 s2, 256
    s_cbranch_scc1 {N}_end
    s_load_dwordx16 s[4:19], s[0:1], 0
    s_load_dwordx2 s[20:21], s[0:1], 128
    s_load_dwordx2 s[24:25], s[0:1], 64
    s_load_dwordx4 s[28:31], s[0:1], 80
    s_load_dwordx4 s[32:35], s[0:1], 96
    s_load_dwordx2 s[36:37], s[0:1], 112
    v_lshrrev_b32 v1, 6, v0
    v_and_b32 v2, 63, v0
    v_and_b32 v3, 15, v2
    v_lshrrev_b32 v4, 4, v2
    v_readfirstlane_b32 s22, v1
    s_and_b32 s23, s2, 7
    s_lshr_b32 s26, s2, 3
    s_lshl_b32 s27, s23, 5
    s_add_u32 s27, s27, s26
    ''')
    phase_a(A, N); phase_b(A, N); phase_c(A, N); phase_d(A, N)
    if STAMPS:
        A('s_waitcnt vmcnt(0)')
        stamp(A, 'end')
        stamp_flush(A, 0, 18, tmpv=8)
    A(f'{N}_end:\n s_endpgm')
    A.resolve()
    return A.text(), dict(name=N, grid=256, block=256, lds=LDS_TOTAL, nvgpr=256, accum=256, total=512)
if __name__ == '__main__':
    import sys
    from build import build
    NM = 'sequential_preLN__ssm_conv_s4__mixer_channel_mlp__prompt'
    k = gen_mega(NM + '_kernel')
    path = sys.argv[1] if len(sys.argv) > 1 else f'cdna_kernels/{NM}.s'
    build([k], path, single=True)
    import common
    if common.STAMPS: open(path + '.names', 'w').write(','.join(common._stamp_state['names']))
```

```python
from common import *
ABL = lambda x: x in os.environ.get('ABL', '').split(',')
ENV = lambda k, d: type(d)(os.environ.get(k, d))

L_XY = 0; WSZ = 14416; PITCH = 272; YOFF = 21 * PITCH
L_T = 4 * WSZ; TSZ = 2944
L_W2 = 68928
UP = 114688
L_XI = UP
L_RED = UP
L_U = UP + 16384; USZ = 4608
L_R = L_U + 2 * USZ; RSZ = 4160
L_CSX = UP
L_MISC = UP + 4096
W1S = 0
HS = UP
LDS_TOTAL = 163840
WS_XT2 = WS_KR
H1LD = ' sc1'

def poll_loop(A, name, loads, check):
    A(f's_mov_b32 s79, {SPIN_MAX}')
    A(f'{name}:')
    A(loads)
    A('s_waitcnt vmcnt(0)')
    A(check)
    A(f's_cbranch_scc1 {name}_ok')
    A(f's_sub_u32 s79, s79, 1\n s_cmp_eq_u32 s79, 0\n s_cbranch_scc0 {name}\n {name}_ok:')

def lane0_store(A, text):
    A('s_mov_b64 s[52:53], exec\n s_mov_b64 exec, 1\n' + text + '\n s_mov_b64 exec, s[52:53]')


def const_table():
    import numpy as np
    def bf16_round_idx(l):
        u = np.float32(l).view(np.uint32)
        r = (int(u) + 0x7fff + ((int(u) >> 16) & 1)) >> 16
        return r
    rows = []
    for t in range(256):
        lane = t & 63; w = t >> 6; n = lane & 15; g = lane >> 4
        ex = []
        for e in range(9):
            l = 2047 - 8 * t - e
            c = 0 if l < 0 else (l if l < 128 else bf16_round_idx(l) - 0x4280)
            ex.append(L_T + 4 * (c + (c >> 5)))
        sc = []
        j = 16 * (w & 1) + n; base = L_T + (w >> 1) * TSZ
        for rt in range(2):
            for r in range(4):
                if rt == 0:
                    c = (4 * g + r + 8 * j) if g < 2 else ((256 + r + 4 * j) if g == 2 else (384 + 64 * (r >> 1) + (r & 1) + 2 * j))
                else:
                    c = (512 + 32 * r + j) if g == 0 else ((640 + j) if (g == 1 and r == 0) else 672 + j)
                sc.append(base + 4 * (c + (c >> 5)))
        h = ex + [0] + sc
        assert max(h) < 65536
        d = [h[2 * i] | (h[2 * i + 1] << 16) for i in range(9)]
        w1 = []
        for jj in range(7):
            q = 64 * jj + lane
            w1.append((q // 14) * 3584 + (q % 14) * 16)
        rows.append(d + w1)
    return rows

def phase_a(A, N):
    A(f'''
    s_lshl_b32 s40, s2, 3
    s_lshl_b32 s41, s22, 1
    s_add_u32 s40, s40, s41
    s_lshl_b32 s41, s40, 10
    v_lshlrev_b32 v5, 4, v2
    v_add_u32 v6, s41, v5
    s_lshl_b32 s42, s26, 6
    s_lshl_b32 s43, s22, 4
    s_add_u32 s42, s42, s43
    v_lshrrev_b32 v8, 3, v2
    v_add_u32 v8, s42, v8
    v_lshlrev_b32 v8, 10, v8
    v_and_b32 v7, 7, v2
    v_lshlrev_b32 v7, 4, v7
    s_lshl_b32 s42, s23, 7
    v_add3_u32 v24, v8, v7, s42
    v_add_u32 v25, 8192, v24
    s_lshl_b32 s43, s22, 11
    s_add_u32 s43, s43, {L_XI}
    s_lshr_b32 s42, s22, 1
    s_lshl_b32 s44, s27, 1
    s_add_u32 s44, s44, s42
    s_and_b32 s45, s22, 1
    s_lshl_b32 s45, s45, 6
    s_lshl_b32 s46, s44, 7
    s_add_u32 s46, s46, s45
    v_add_u32 v26, s46, v2
    v_lshlrev_b32 v26, 1, v26
    s_lshl_b32 s46, s44, 1
    v_mov_b32 v27, s46
    s_mov_b32 m0, s43
    s_waitcnt lgkmcnt(0)
    ''')
    stamp(A, '0k')
    A(f'''
    global_load_dwordx4 v[8:11], v6, s[4:5]
    global_load_dwordx4 v[12:15], v6, s[4:5] offset:1024
    global_load_lds_dwordx4 v24, s[4:5]
    s_add_u32 m0, s43, 1024
    s_load_dword s38, s[20:21], {WS_TAG}
    global_load_lds_dwordx4 v25, s[4:5]
    global_load_ushort v16, v26, s[6:7]
    global_load_ushort v17, v26, s[8:9]
    global_load_ushort v18, v26, s[10:11]
    global_load_ushort v19, v26, s[12:13]
    global_load_ushort v20, v26, s[14:15]
    global_load_ushort v21, v26, s[16:17]
    global_load_ushort v22, v27, s[18:19]
    global_load_ushort v23, v27, s[24:25]
    s_getpc_b64 s[62:63]
    {N}_pc:
    s_add_u32 s62, s62, ({N}_tbl - {N}_pc)
    s_addc_u32 s63, s63, 0
    v_lshlrev_b32 v6, 6, v0
    global_load_dwordx4 v[216:219], v6, s[62:63]
    global_load_dwordx4 v[220:223], v6, s[62:63] offset:16
    global_load_dwordx4 v[224:227], v6, s[62:63] offset:32
    global_load_dwordx4 v[228:231], v6, s[62:63] offset:48
    s_cmp_lt_u32 s26, 4
    s_cbranch_scc0 {N}_ncw
    s_getpc_b64 s[62:63]
    s_and_b32 s62, s62, 0xffffff00
    v_lshlrev_b32 v6, 7, v0
    v_min_u32 v6, ({N}_end - {N} - 1024), v6
    global_load_dword v250, v6, s[62:63]
    v_add_u32 v6, 32768, v6
    v_min_u32 v6, ({N}_end - {N} - 1024), v6
    global_load_dword v251, v6, s[62:63]
    {N}_ncw:
    ''')
    if not ABL('notlb'):
        A(f'''
        s_cmp_eq_u32 s22, 1
        s_cbranch_scc0 {N}_ntlb
        v_min_u32 v6, 9, v2
        v_lshlrev_b32 v6, 21, v6
        v_add_u32 v6, 0x1000, v6
        global_load_dword v252, v6, s[20:21]
        v_mov_b32 v6, 0
        global_load_dword v253, v6, s[36:37]
        global_load_dword v254, v6, s[28:29]
        global_load_dword v255, v6, s[32:33]
        {N}_ntlb:
        ''')
    A(f'''
    ''')
    stamp(A, 1)
    A(f'''
    v_mov_b32 v50, 0
    v_mov_b32 v51, 0
    v_mov_b32 v52, 0
    v_mov_b32 v53, 0
    v_lshlrev_b32 v55, 4, v0
    v_add_u32 v55, {L_U}, v55
    v_cmp_gt_u32 vcc, 30, v0
    s_and_saveexec_b64 s[52:53], vcc
    ds_write_b128 v55, v[50:53]
    ds_write_b128 v55, v[50:53] offset:{USZ}
    s_mov_b64 exec, s[52:53]
    v_cmp_gt_u32 vcc, 2, v0
    s_and_saveexec_b64 s[52:53], vcc
    ''')
    for k in range(4): A(f'ds_write_b128 v55, v[50:53] offset:{L_R - L_U + k * RSZ + 2 * 2064}')
    A('s_mov_b64 exec, s[52:53]')
    A(f'''
    v_bfe_u32 v50, v2, 2, 2
    v_lshl_add_u32 v51, v4, 3, v50
    v_lshlrev_b32 v51, 7, v51
    v_and_b32 v52, 3, v2
    v_lshlrev_b32 v52, 3, v52
    s_lshl_b32 s42, s22, 5
    s_add_u32 s42, s42, {L_XI}
    v_add3_u32 v51, v51, v52, s42
    s_lshl_b32 s42, s23, 6
    s_lshl_b32 s43, s22, 4
    s_add_u32 s42, s42, s43
    v_add_u32 v53, s42, v3
    v_lshlrev_b32 v53, 12, v53
    v_lshlrev_b32 v54, 4, v4
    s_lshl_b32 s42, s26, 7
    s_add_u32 s42, s42, {WS_XT2}
    v_add3_u32 v53, v53, v54, s42
    s_lshl_b32 s47, s26, 2
    s_add_u32 s47, s47, s22
    v_lshrrev_b32 v56, 3, v2
    s_lshl_b32 s48, s47, 5
    v_add_u32 v56, s48, v56
    v_lshlrev_b32 v56, 10, v56
    v_and_b32 v57, 7, v2
    v_lshlrev_b32 v57, 4, v57
    s_lshl_b32 s48, s23, 7
    v_add3_u32 v56, v56, v57, s48
    s_lshl_b32 s49, s22, 12
    s_add_u32 s49, s49, {L_W2}
    s_lshr_b32 s55, s26, 1
    ''')
    stamp(A, '1p')
    A('s_waitcnt vmcnt(12) lgkmcnt(0)')
    stamp(A, '1x')
    A('s_barrier')
    stamp(A, 2)
    A(f'''
    ds_read_b64_tr_b16 v[96:97], v51
    ds_read_b64_tr_b16 v[98:99], v51 offset:512
    ds_read_b64_tr_b16 v[100:101], v51 offset:4096
    ds_read_b64_tr_b16 v[102:103], v51 offset:4608
    s_waitcnt lgkmcnt(0)
    global_store_dwordx4 v53, v[96:99], s[20:21] sc1
    global_store_dwordx4 v53, v[100:103], s[20:21] offset:64 sc1
    ''')
    for row in range(2):
        for k in range(4):
            src = 8 + 4 * row + k
            A(f'v_lshlrev_b32 v{64 + 8 * row + 2 * k}, 16, v{src}')
            A(f'v_and_b32 v{65 + 8 * row + 2 * k}, 0xffff0000, v{src}')
    A(f's_cmp_lt_u32 s2, 112\n s_cbranch_scc0 {N}_nw2')
    for i in range(4):
        A(f's_add_u32 m0, s49, {1024 * i}\n v_add_u32 v57, {8192 * i}, v56\n global_load_lds_dwordx4 v57, s[32:33]')
    A(f'{N}_nw2:')
    for row in range(2):
        b = 64 + 8 * row
        A(f'v_add_f32 v{80 + row}, v{b}, v{b + 1}')
        A(f'v_add_f32 v{82 + row}, v{b + 2}, v{b + 3}')
        A(f'v_add_f32 v{84 + row}, v{b + 4}, v{b + 5}')
        A(f'v_add_f32 v{86 + row}, v{b + 6}, v{b + 7}')
    for row in range(2):
        A(f'v_add_f32 v{80 + row}, v{80 + row}, v{82 + row}')
        A(f'v_add_f32 v{84 + row}, v{84 + row}, v{86 + row}')
    for row in range(2): A(f'v_add_f32 v{80 + row}, v{80 + row}, v{84 + row}')
    allsum64(A, [80, 81], [82, 83])
    for row in range(2): A(f'v_mul_f32 v{80 + row}, 0x3b000000, v{80 + row}')
    for row in range(2):
        b = 64 + 8 * row
        for k in range(8): A(f'v_sub_f32 v{b + k}, v{b + k}, v{80 + row}')
    for row in range(2):
        b = 64 + 8 * row
        A(f'v_mul_f32 v{84 + row}, v{b}, v{b}')
        A(f'v_mul_f32 v{86 + row}, v{b + 1}, v{b + 1}')
    for k in range(2, 8, 2):
        for row in range(2):
            b = 64 + 8 * row
            A(f'v_fmac_f32 v{84 + row}, v{b + k}, v{b + k}')
            A(f'v_fmac_f32 v{86 + row}, v{b + k + 1}, v{b + k + 1}')
    for row in range(2): A(f'v_add_f32 v{84 + row}, v{84 + row}, v{86 + row}')
    allsum64(A, [84, 85], [82, 83])
    for row in range(2):
        A(f'v_mul_f32 v{84 + row}, 0x3b000000, v{84 + row}')
    for row in range(2): A(f'v_cvt_pk_bf16_f32 v{84 + row}, v{84 + row}, v{84 + row}')
    for row in range(2): A(f'v_lshlrev_b32 v{84 + row}, 16, v{84 + row}')
    for row in range(2): A(f'v_add_f32 v{84 + row}, {EPS:#x}, v{84 + row}')
    for row in range(2): A(f'v_cvt_pk_bf16_f32 v{84 + row}, v{84 + row}, v{84 + row}')
    for row in range(2): A(f'v_lshlrev_b32 v{84 + row}, 16, v{84 + row}')
    for row in range(2): A(f'v_sqrt_f32 v{84 + row}, v{84 + row}')
    A(f'''
    s_mul_i32 s38, s38, 0x9e3779b1
    s_add_u32 s38, s38, 0x7f4a7c15
    v_cvt_pk_bf16_f32 v88, v80, v84
    v_cvt_pk_bf16_f32 v90, v81, v85
    v_mov_b32 v89, s38
    v_mov_b32 v91, s38
    s_lshl_b32 s50, s40, 3
    s_add_u32 s50, s50, {WS_GR}
    v_mov_b32 v92, s50
    s_cmp_lt_u32 s2, 112
    s_cbranch_scc1 {N}_wq1
    s_waitcnt vmcnt(2)
    s_branch {N}_wq2
    {N}_wq1:
    s_waitcnt vmcnt(6)
    {N}_wq2:
    ''')
    if ABL('w1wait'):
        A('s_waitcnt vmcnt(0)')
        stamp(A, '3w')
    for e in range(9):
        src = 216 + e // 2
        A(f'v_and_b32 v{24 + e}, 0xffff, v{src}' if e % 2 == 0 else f'v_lshrrev_b32 v{24 + e}, 16, v{src}')
    for k in range(8):
        src = 221 + k // 2
        A(f'v_and_b32 v{40 + k}, 0xffff, v{src}' if k % 2 == 0 else f'v_lshrrev_b32 v{40 + k}, 16, v{src}')
    A('s_mul_i32 s56, s55, 224')
    for j in range(7): A(f'v_add_u32 v{232 + j}, s56, v{225 + j}')
    A(f's_add_u32 s57, s22, 12\n s_mul_i32 s56, s57, {32 * 3584}\n s_mul_i32 s57, s57, {32 * 224}')
    early = [f's_add_u32 m0, s57, {W1S + j * 1024}\n v_add_u32 v239, s56, v{232 + j}\n global_load_lds_dwordx4 v239, s[28:29]' for j in range(7)]
    outerA = A; A = Asm()
    for i in range(16, 24): A(f'v_lshlrev_b32 v{i}, 16, v{i}')
    A(f'v_mul_f32 v22, {LOG2E:#x}, v22\n v_exp_f32 v22, v22')
    round_bf16(A, 22, 22)
    A(f'''
    v_mul_f32 v16, v22, v16
    v_mul_f32 v17, v22, v17
    v_mul_f32 v18, v22, v18
    v_mul_f32 v19, v22, v19
    v_mul_f32 v16, {LOG2E:#x}, v16
    v_mul_f32 v17, {INV2PI:#x}, v17
    ''')
    Z1, Z2, Z4, Z8, Z32, Z256 = 56, 58, 60, 62, 64, 66
    def cm(D, X, Yr, T):
        return [f'v_pk_mul_f32 v[{T}:{T+1}], v[{X}:{X+1}], v[{Yr}:{Yr+1}] op_sel_hi:[1,0]',
                f'v_pk_fma_f32 v[{D}:{D+1}], v[{X}:{X+1}], v[{Yr}:{Yr+1}], v[{T}:{T+1}] op_sel:[1,1,0] op_sel_hi:[0,1,1] neg_lo:[1,0,0]']
    pw = [(Z1, 1), (Z8, 8), (Z32, 32), (Z256, 256)]
    for k, (d, p) in enumerate(pw):
        lit = '1.0' if p == 1 else hex(f2u(p))
        A(f'v_mul_f32 v{100 + 2 * k}, {lit}, v16\n v_mul_f32 v{101 + 2 * k}, {lit}, v17')
    for x in cm(50, 20, 18, 52): A(x)
    for k in range(4): A(f'v_exp_f32 v{100 + 2 * k}, v{100 + 2 * k}\n v_fract_f32 v{101 + 2 * k}, v{101 + 2 * k}')
    for k, (d, p) in enumerate(pw): A(f'v_cos_f32 v{d}, v{101 + 2 * k}\n v_sin_f32 v{d + 1}, v{101 + 2 * k}')
    for k, (d, p) in enumerate(pw): A(f'v_pk_mul_f32 v[{d}:{d + 1}], v[{d}:{d + 1}], v[{100 + 2 * k}:{101 + 2 * k}] op_sel_hi:[1,0]')
    A(f'''
    s_cmp_lt_u32 s2, 112
    s_cbranch_scc1 {N}_wd1
    s_waitcnt vmcnt(0)
    s_branch {N}_wd2
    {N}_wd1:
    s_waitcnt vmcnt(4)
    {N}_wd2:
    s_barrier
    ''')
    lane0_store(A, 'global_store_dwordx4 v92, v[88:91], s[20:21] sc1')
    stamp(A, 3)
    A(f'''
    s_cmp_eq_u32 s22, 0
    s_cbranch_scc0 {N}_nmw0
    s_mul_i32 s45, s2, {56 * 128}
    v_min_u32 v6, 55, v2
    v_lshlrev_b32 v6, 7, v6
    v_add_u32 v6, s45, v6
    global_load_dword v250, v6, s[28:29]
    {N}_nmw0:
    s_cmp_eq_u32 s22, 1
    s_cbranch_scc0 {N}_nmw1
    v_min_u32 v6, 27, v2
    v_lshlrev_b32 v6, 7, v6
    global_load_dword v251, v6, s[30:31]
    {N}_nmw1:
    s_cmp_eq_u32 s22, 2
    s_cbranch_scc0 {N}_nmw
    v_min_u32 v6, 7, v2
    v_lshlrev_b32 v6, 7, v6
    global_load_dword v252, v6, s[34:35]
    {N}_nmw:
    ''')
    A(f'''
    s_mul_i32 s50, s22, {WSZ}
    s_add_u32 s50, s50, {L_XY}
    v_lshlrev_b32 v34, 2, v2
    v_add_u32 v34, s50, v34
    v_mov_b32 v68, 1.0
    v_mov_b32 v69, 0
    v_mov_b32 v70, v62
    v_mov_b32 v71, v63
    v_mov_b32 v84, v50
    v_mov_b32 v85, v51
    ''')
    a_, b_, c_ = cm(Z2, Z1, Z1, 52), cm(72, Z8, Z8, 76), None
    A(a_[0]); A(b_[0]); A(a_[1]); A(b_[1])
    a_, b_ = cm(Z4, Z2, Z2, 52), cm(74, 72, Z8, 76)
    A(a_[0]); A(b_[0]); A(a_[1]); A(b_[1])
    Y = [68, 70, 72, 74]; TM = [76, 78, 80, 82]
    def pX(row, reg, t): return [f'v_cvt_pk_bf16_f32 v{t}, v{reg}, v{reg + 1}', f'ds_write_b32 v34, v{t} offset:{row * PITCH}']
    def pY(row, reg, t): return [f'v_cvt_pk_bf16_f32 v{t}, v{reg}, -v{reg + 1}', f'ds_write_b32 v34, v{t} offset:{YOFF + row * PITCH}']
    sy = []
    for it in range(8):
        cv = [pY(4 * it + c, Y[c], 86 + c) for c in range(4)]
        sy += [x[0] for x in cv]
        if it < 7: sy += [cm(Y[c], Y[c], Z32, TM[c])[0] for c in range(4)]
        sy += [x[1] for x in cv]
        if it < 7: sy += [cm(Y[c], Y[c], Z32, TM[c])[1] for c in range(4)]
    sa = pX(0, 50, 90)
    for p in range(1, 8): sa += cm(50, 50, Z1, 52) + pX(p, 50, 90)
    Wc = 84; sb = []
    def wstep(row): return cm(Wc, Wc, Z256, 92) + pX(row, Wc, 91)
    def bstep(src, z, row): return cm(94, src, z, 96) + pX(row, 94, 98)
    sb += wstep(8) + bstep(Wc, Z2, 9) + bstep(94, Z2, 10) + bstep(94, Z2, 11) + wstep(12) + bstep(Wc, Z4, 13) + wstep(14) + bstep(Wc, Z4, 15)
    for row in range(16, 21): sb += wstep(row)
    iy = ia = ib = 0
    while iy < len(sy) or ia < len(sa) or ib < len(sb):
        for _ in range(2):
            if iy < len(sy): A(sy[iy]); iy += 1
        if ib < len(sb): A(sb[ib]); ib += 1
        if iy < len(sy): A(sy[iy]); iy += 1
        if ia < len(sa): A(sa[ia]); ia += 1
        elif ib < len(sb): A(sb[ib]); ib += 1
    seg = A; A = outerA
    interleave(A, seg, early, first=ENV('EARLY0', 95), last_frac=0.95)
    stamp(A, 5)
    A(f'v_lshlrev_b32 v208, 6, v0\n v_add_u32 v208, {WS_GR}, v208')
    for k in range(4): A(f'global_load_dwordx4 v[{192 + 4 * k}:{195 + 4 * k}], v208, s[20:21] offset:{16 * k} sc1')
    A(f'''
    v_mul_u32_u24 v38, {PITCH}, v3
    v_lshlrev_b32 v39, 4, v4
    v_add_u32 v38, v38, v39
    s_lshr_b32 s50, s22, 1
    s_mul_i32 s50, s50, {2 * WSZ}
    s_add_u32 s50, s50, {L_XY}
    v_add_u32 v35, s50, v38
    s_and_b32 s51, s22, 1
    s_mul_i32 s51, s51, {16 * PITCH}
    s_add_u32 s51, s51, {YOFF}
    v_add_u32 v36, s51, v35
    s_waitcnt lgkmcnt(0)
    s_barrier
    ''')
    stamp(A, '5b')
    A.auto(True)
    for ks in range(8):
        o = (ks >> 2) * WSZ + (ks & 3) * 64; b = 88 + 12 * ks
        A(f'ds_read_b128 v[{b}:{b + 3}], v36 offset:{o}')
        A(f'ds_read_b128 v[{b + 4}:{b + 7}], v35 offset:{o}')
        A(f'ds_read_b128 v[{b + 8}:{b + 11}], v35 offset:{o + 16 * PITCH}')
    for ks in range(8):
        b = 88 + 12 * ks
        for rt in range(2):
            acc = 184 + 4 * rt
            cin = '0' if ks == 0 else f'v[{acc}:{acc + 3}]'
            A(f'v_mfma_f32_16x16x32_bf16 v[{acc}:{acc + 3}], v[{b + 4 + 4 * rt}:{b + 7 + 4 * rt}], v[{b}:{b + 3}], {cin}')
    A.auto(False)
    for k in range(8): A(f'ds_write_b32 v{40 + k}, v{184 + k}')
    A('s_waitcnt lgkmcnt(0)\n s_barrier')
    stamp(A, 6)
    for ch in range(2):
        for e in range(9): A(f'ds_read_b32 v{64 + 9 * ch + e}, v{24 + e} offset:{TSZ * ch}')
    A(f'''
    v_lshlrev_b32 v54, 4, v0
    v_add_u32 v54, {L_R + 32}, v54
    v_cmp_eq_u32 vcc, 255, v0
    s_waitcnt lgkmcnt(0)
    ''')
    for ch in range(2):
        b = 64 + 9 * ch
        A(f'v_cndmask_b32_e64 v{b + 8}, v{b + 8}, 0, vcc')
        for k in range(4):
            A(f'v_cvt_pk_bf16_f32 v{104 + 8 * ch + k}, v{b + 2 * k}, v{b + 2 * k + 1}')
            A(f'v_cvt_pk_bf16_f32 v{108 + 8 * ch + k}, v{b + 2 * k + 1}, v{b + 2 * k + 2}')
        A(f'ds_write_b128 v54, v[{104 + 8 * ch}:{107 + 8 * ch}] offset:{2 * RSZ * ch}')
        A(f'ds_write_b128 v54, v[{108 + 8 * ch}:{111 + 8 * ch}] offset:{2 * RSZ * ch + RSZ}')
    stamp(A, 7)

def phase_b(A, N):
    loads = '\n'.join(f'global_load_dwordx4 v[{192 + 4 * k}:{195 + 4 * k}], v208, s[20:21] offset:{16 * k} sc1' for k in range(4))
    chk = 'v_cmp_eq_u32 vcc, s38, v193\n'
    for r in (195, 197, 199, 201, 203, 205, 207):
        chk += f'v_cmp_eq_u32 s[52:53], s38, v{r}\n s_and_b64 vcc, vcc, s[52:53]\n'
    chk += 's_cmp_eq_u64 vcc, -1'
    A('s_waitcnt vmcnt(0)')
    A(chk)
    A(f's_cbranch_scc1 {N}_p1_ok')
    poll_loop(A, f'{N}_p1', loads, chk)
    stamp(A, 8)
    A(f'''
    s_lshl_b32 s45, s27, 13
    s_add_u32 s45, s45, {WS_XT2}
    v_lshlrev_b32 v5, 4, v0
    v_add_u32 v6, s45, v5
    v_add_u32 v7, 4096, v6
    global_load_dwordx4 v[80:83], v6, s[20:21] sc1
    global_load_dwordx4 v[84:87], v7, s[20:21] sc1
    s_lshr_b32 s55, s26, 1
    s_lshr_b32 s42, s22, 1
    s_and_b32 s44, s22, 1
    ''')
    A(f'''
    s_cmp_lt_u32 s2, 112
    s_cbranch_scc0 {N}_nw2b
    v_bfe_u32 v50, v2, 2, 2
    v_and_b32 v52, 3, v2
    v_lshlrev_b32 v52, 3, v52
    v_lshl_add_u32 v50, v4, 2, v50
    v_lshlrev_b32 v50, 7, v50
    v_add3_u32 v50, v50, v52, s49
    s_mul_i32 s48, s23, {4 * 56}
    s_add_u32 s48, s48, s47
    s_lshl_b32 s48, s48, 10
    s_add_u32 s48, s48, {WS_W2P}
    v_lshlrev_b32 v53, 4, v2
    v_add_u32 v53, s48, v53
    ''')
    for i in range(4):
        A(f'ds_read_b64_tr_b16 v[{100 + 4 * i}:{101 + 4 * i}], v50 offset:{32 * i}')
        A(f'ds_read_b64_tr_b16 v[{102 + 4 * i}:{103 + 4 * i}], v50 offset:{32 * i + 2048}')
    A('s_waitcnt lgkmcnt(0)')
    for i in range(4):
        A(f'v_add_u32 v54, {56 * 1024 * i}, v53')
        A(f'global_store_dwordx4 v54, v[{100 + 4 * i}:{103 + 4 * i}], s[20:21] sc1')
    if ABL('w2drain'): A('s_waitcnt vmcnt(0)')
    A(f'{N}_nw2b:')
    stamp(A, '8w')
    A(f's_mul_i32 s56, s22, {32 * 3584}\n s_mul_i32 s57, s22, {32 * 224}')
    for j in range(7): A(f'v_add_u32 v{232 + j}, s56, v{232 + j}')
    w1f = [f's_add_u32 m0, s57, {W1S + b * 4 * 32 * 224 + j * 1024}\n global_load_lds_dwordx4 v{232 + j}, s[28:29]' + (f'\n v_add_u32 v{232 + j}, {4 * 32 * 3584}, v{232 + j}' if b < 2 else '') for b in range(3) for j in range(7)]
    NW1U = ENV('NW1U', 0)
    for x in w1f[:NW1U]: A(x)
    for e in range(8):
        p = 64 + 2 * e; q = 192 + 2 * e
        A(f'v_and_b32 v{p + 1}, 0xffff0000, v{q}\n v_lshlrev_b32 v{p}, 16, v{q}\n v_rcp_f32 v{p + 1}, v{p + 1}')
    A(f'''
    v_lshlrev_b32 v56, 5, v3
    v_lshlrev_b32 v57, 4, v4
    v_add_u32 v56, v56, v57
    s_lshl_b32 s45, s44, 8
    s_mul_i32 s46, s42, {USZ}
    s_sub_u32 s46, s46, s45
    s_add_u32 s46, s46, {L_U + 448}
    v_add_u32 v60, s46, v56
    v_lshrrev_b32 v58, 1, v3
    v_lshlrev_b32 v58, 2, v58
    v_sub_u32 v58, v57, v58
    v_and_b32 v59, 1, v3
    v_sub_u32 v59, 1, v59
    v_mul_u32_u24 v59, {RSZ}, v59
    v_add_u32 v58, v58, v59
    s_mul_i32 s46, s42, {2 * RSZ}
    s_sub_u32 s46, s46, s45
    s_add_u32 s46, s46, {L_R + 4092}
    v_add_u32 v58, s46, v58
    ''')
    for k in range(4): A(f'v_subrev_u32 v{12 + k}, {512 * (2 * k + 1)}, v58')
    A(f's_cmp_lt_u32 s2, 112\n s_cbranch_scc1 {N}_wx1\n s_waitcnt vmcnt({NW1U})\n s_branch {N}_wx2\n {N}_wx1:\n s_waitcnt vmcnt({4 + NW1U})\n {N}_wx2:')
    stamp(A, '8b')
    for ch in range(2):
        b = 88 + 8 * ch; src = 80 + 4 * ch
        for k in range(4):
            A(f'v_lshlrev_b32 v{b + 2 * k}, 16, v{src + k}')
            A(f'v_and_b32 v{b + 2 * k + 1}, 0xffff0000, v{src + k}')
    for e in range(8):
        for ch in range(2): A(f'v_sub_f32 v{88 + 8 * ch + e}, v{88 + 8 * ch + e}, v{64 + 2 * e}')
    for ch in range(2):
        for k in range(4): A(f'v_cvt_pk_bf16_f32 v{104 + 4 * ch + k}, v{88 + 8 * ch + 2 * k}, v{89 + 8 * ch + 2 * k}')
    for ch in range(2):
        for k in range(4):
            A(f'v_lshlrev_b32 v{88 + 8 * ch + 2 * k}, 16, v{104 + 4 * ch + k}')
            A(f'v_and_b32 v{89 + 8 * ch + 2 * k}, 0xffff0000, v{104 + 4 * ch + k}')
    for e in range(8):
        for ch in range(2): A(f'v_mul_f32 v{88 + 8 * ch + e}, v{88 + 8 * ch + e}, v{65 + 2 * e}')
    for ch in range(2):
        for k in range(4): A(f'v_cvt_pk_bf16_f32 v{104 + 4 * ch + k}, v{88 + 8 * ch + 2 * k}, v{89 + 8 * ch + 2 * k}')
    A(f'''
    v_add_u32 v5, {L_U + 480}, v5
    ds_write_b128 v5, v[104:107]
    ds_write_b128 v5, v[108:111] offset:{USZ}
    s_waitcnt lgkmcnt(0)
    s_barrier
    ''')
    stamp(A, 9)
    A(f'''
    v_lshlrev_b32 v56, 5, v3
    v_lshlrev_b32 v57, 3, v4
    v_add_u32 v56, v56, v57
    s_lshl_b32 s45, s44, 11
    s_lshl_b32 s46, s27, 1
    s_add_u32 s46, s46, s42
    s_lshl_b32 s46, s46, 12
    s_add_u32 s46, s46, s45
    s_add_u32 s46, s46, {WS_XT2}
    v_add_u32 v59, s46, v56
    ''')
    for t in range(4): A(f'global_load_dwordx2 v[{240 + 2 * t}:{241 + 2 * t}], v59, s[20:21] offset:{512 * t} sc1')
    A(f'''
    s_and_b32 s59, s26, 7
    s_mul_i32 s45, s59, {4 * 56}
    s_mul_i32 s46, s22, 14
    s_add_u32 s45, s45, s46
    s_lshl_b32 s45, s45, 10
    s_add_u32 s45, s45, {WS_W2P}
    v_lshlrev_b32 v6, 4, v2
    v_add_u32 v8, s45, v6
    ''')
    G = [72, 136]; F = [104, 168]; ACC = 200
    def loads_(set_):
        Gs = [f'ds_read_b128 v[{G[set_] + 4 * t}:{G[set_] + 4 * t + 3}], v60 offset:{512 * t}' for t in range(8)]
        Fs = []
        for j in range(8):
            k = j >> 1; o = 0 if (j & 1) else 128
            Fs.append([f'ds_read2_b32 v[{F[set_] + 4 * j}:{F[set_] + 4 * j + 1}], v{12 + k} offset0:{o} offset1:{o + 1}',
                       f'ds_read2_b32 v[{F[set_] + 4 * j + 2}:{F[set_] + 4 * j + 3}], v{12 + k} offset0:{o + 2} offset1:{o + 3}'])
        return Fs[0] + Gs + [x for f in Fs[1:] for x in f]
    adv = ['v_subrev_u32 v60, 64, v60'] + [f'v_subrev_u32 v{12 + k}, 64, v{12 + k}' for k in range(4)]
    def mfmas(set_, first):
        out = []
        for j in range(8):
            for t in range(8 - j):
                acc = ACC + 4 * (t + j)
                cin = '0' if (first and j == 0) else f'v[{acc}:{acc+3}]'
                out.append(f'v_mfma_f32_16x16x32_bf16 v[{acc}:{acc+3}], v[{F[set_] + 4 * j}:{F[set_] + 4 * j + 3}], v[{G[set_] + 4 * t}:{G[set_] + 4 * t + 3}], {cin}')
        return out
    W2W = ENV('W2W', 0)
    A(f's_lshl_b32 s45, s2, 6\n s_lshl_b32 s46, s22, 2\n s_add_u32 s45, s45, s46\n s_add_u32 s45, s45, {WS_FW}\n v_mov_b32 v10, s45\n v_mov_b32 v11, s38')
    A.auto(True)
    for x in loads_(0) + adv: A(x)
    wi = NW1U
    NW1 = ENV('NW1', 21); W2B = ENV('W2B', 0); W2BSTEP = ENV('W2BSTEP', 7); w2b = 0
    nvm_loop = 0
    for it in range(4):
        if it == 1 and W2W:
            A(f's_waitcnt vmcnt({4 + (wi - NW1U)})\n s_mov_b64 exec, 1\n global_store_dword v10, v11, s[20:21] sc1\n s_mov_b64 exec, -1')
        fill = (loads_((it + 1) & 1) + adv) if it < 3 else []
        ms = mfmas(it & 1, it == 0)
        fi = 0
        for i, m in enumerate(ms):
            A(m)
            if fi < len(fill): A(fill[fi]); fi += 1
            if i % ENV('W1STEP', 6) == ENV('W1STEP', 6) - 1 and wi < NW1: A(w1f[wi]); wi += 1
            if i % W2BSTEP == 2 and w2b < W2B: A(w2txt(w2b)); w2b += 1
        assert fi == len(fill)
    A.auto(False)
    assert w2b == W2B, w2b
    global W2DONE_B
    W2DONE_B = w2b
    stamp(A, 10)
    for x in w1f[wi:]: A(x)
    if W2W:
        A(f'''
        v_lshlrev_b32 v66, 6, v2
        v_add_u32 v66, {WS_FW}, v66
        v_add_u32 v67, 64, v2
        v_min_u32 v67, 111, v67
        v_lshlrev_b32 v67, 6, v67
        v_add_u32 v67, {WS_FW}, v67
        global_load_dwordx4 v[24:27], v66, s[20:21] sc1
        global_load_dwordx4 v[28:31], v67, s[20:21] sc1
        ''')
    A(f'''
    s_lshl_b32 s45, s22, 12
    s_add_u32 s45, s45, {L_RED}
    v_lshlrev_b32 v68, 4, v2
    v_add_u32 v69, s45, v68
    s_xor_b32 s46, s22, 1
    s_lshl_b32 s46, s46, 12
    s_add_u32 s46, s46, {L_RED}
    v_add_u32 v70, s46, v68
    s_cmp_eq_u32 s44, 0
    s_cbranch_scc0 {N}_odd
    ''')
    for t in range(4): A(f'ds_write_b128 v69, v[{ACC + 16 + 4 * t}:{ACC + 16 + 4 * t + 3}] offset:{1024 * t}')
    A(f's_branch {N}_join\n {N}_odd:')
    for t in range(4): A(f'ds_write_b128 v69, v[{ACC + 4 * t}:{ACC + 4 * t + 3}] offset:{1024 * t}')
    for t in range(0, 16, 2): A(f'v_pk_mul_f32 v[{ACC + t}:{ACC + t + 1}], v[{ACC + 16 + t}:{ACC + 17 + t}], 1.0 op_sel_hi:[1,0]')
    A(f'{N}_join:')
    A(f'''
    s_lshl_b32 s45, s44, 11
    s_mul_i32 s46, s42, {USZ}
    s_add_u32 s46, s46, s45
    s_add_u32 s46, s46, {L_U + 480}
    v_add_u32 v57, s46, v56
    ''')
    for t in range(4): A(f'ds_read_b64 v[{88 + 2 * t}:{89 + 2 * t}], v57 offset:{512 * t}')
    A(f'''
    s_lshl_b32 s46, s27, 1
    s_add_u32 s46, s46, s42
    s_lshl_b32 s46, s46, 6
    s_lshl_b32 s47, s44, 20
    s_add_u32 s46, s46, s47
    s_add_u32 s46, s46, {WS_HT}
    v_lshrrev_b32 v58, 1, v3
    v_lshlrev_b32 v58, 15, v58
    v_and_b32 v55, 1, v3
    v_lshlrev_b32 v55, 5, v55
    v_lshlrev_b32 v54, 3, v4
    v_add3_u32 v58, v58, v55, v54
    v_add_u32 v58, s46, v58
    s_waitcnt lgkmcnt(0)
    s_barrier
    ''')
    for t in range(4): A(f'ds_read_b128 v[{72 + 4 * t}:{72 + 4 * t + 3}], v70 offset:{1024 * t}')
    for t in range(4):
        for pr in range(2):
            u = 88 + 2 * t + pr; d = 112 + 4 * t + 2 * pr
            A(f'v_lshlrev_b32 v{d}, 16, v{u}\n v_and_b32 v{d + 1}, 0xffff0000, v{u}')
    for k in range(8): A(f'v_pk_mul_f32 v[{112 + 2 * k}:{113 + 2 * k}], v[{112 + 2 * k}:{113 + 2 * k}], v[22:23] op_sel:[0,1] op_sel_hi:[1,1]')
    for k in range(8): A(f'v_cvt_pk_bf16_f32 v{128 + k}, v{112 + 2 * k}, v{113 + 2 * k}')
    for k in range(8): A(f'v_lshlrev_b32 v{112 + 2 * k}, 16, v{128 + k}\n v_and_b32 v{113 + 2 * k}, 0xffff0000, v{128 + k}')
    A('s_waitcnt lgkmcnt(0)')
    for k in range(8): A(f'v_pk_add_f32 v[{ACC + 2 * k}:{ACC + 2 * k + 1}], v[{ACC + 2 * k}:{ACC + 2 * k + 1}], v[{72 + 2 * k}:{73 + 2 * k}]')
    for k in range(8): A(f'v_cvt_pk_bf16_f32 v{128 + k}, v{ACC + 2 * k}, v{ACC + 2 * k + 1}')
    for k in range(8): A(f'v_lshlrev_b32 v{ACC + 2 * k}, 16, v{128 + k}\n v_and_b32 v{ACC + 2 * k + 1}, 0xffff0000, v{128 + k}')
    for k in range(8): A(f'v_pk_add_f32 v[{ACC + 2 * k}:{ACC + 2 * k + 1}], v[{ACC + 2 * k}:{ACC + 2 * k + 1}], v[{112 + 2 * k}:{113 + 2 * k}]')
    for k in range(8): A(f'v_cvt_pk_bf16_f32 v{128 + k}, v{ACC + 2 * k}, v{ACC + 2 * k + 1}')
    for k in range(8): A(f'v_lshlrev_b32 v{ACC + 2 * k}, 16, v{128 + k}\n v_and_b32 v{ACC + 2 * k + 1}, 0xffff0000, v{128 + k}')
    A(f's_waitcnt vmcnt({21 - NW1U + w2b + (2 if W2W else 0)})')
    for k in range(8): A(f'v_lshlrev_b32 v{112 + 2 * k}, 16, v{240 + k}\n v_and_b32 v{113 + 2 * k}, 0xffff0000, v{240 + k}')
    for k in range(8): A(f'v_pk_add_f32 v[{ACC + 2 * k}:{ACC + 2 * k + 1}], v[{ACC + 2 * k}:{ACC + 2 * k + 1}], v[{112 + 2 * k}:{113 + 2 * k}]')
    if ABL('hx2'):
        for t in range(4):
            for pr in range(2): A(f'v_cvt_pk_bf16_f32 v{128 + 2 * t + pr}, v{ACC + 4 * t + 2 * pr}, v{ACC + 4 * t + 2 * pr + 1}')
            A(f'global_store_dwordx2 v58, v[{128 + 2 * t}:{129 + 2 * t}], s[20:21] sc1')
            if t < 3: A('v_add_u32 v58, 0x40000, v58')
    else:
        for t in range(4):
            for pr in range(2): A(f'v_cvt_pk_bf16_f32 v{128 + 2 * t + pr}, v{ACC + 4 * t + 2 * pr}, v{ACC + 4 * t + 2 * pr + 1}')
            A(f'ds_write_b64 v57, v[{128 + 2 * t}:{129 + 2 * t}] offset:{512 * t}')
        A(f'''
        v_lshrrev_b32 v54, 3, v2
        s_lshl_b32 s45, s22, 4
        v_add_u32 v54, s45, v54
        v_bfe_u32 v55, v2, 2, 1
        v_mul_u32_u24 v55, {USZ}, v55
        v_and_b32 v58, 3, v2
        v_lshlrev_b32 v58, 4, v58
        v_lshlrev_b32 v56, 6, v54
        v_add3_u32 v56, v56, v55, v58
        v_add_u32 v56, {L_U + 480}, v56
        v_lshlrev_b32 v54, 15, v54
        v_and_b32 v58, 7, v2
        v_lshlrev_b32 v58, 4, v58
        s_lshl_b32 s45, s27, 7
        s_add_u32 s45, s45, {WS_HT}
        v_add3_u32 v58, v54, v58, s45
        v_add_u32 v59, {8 * 32768}, v58
        s_waitcnt lgkmcnt(0)
        s_barrier
        ds_read_b128 v[128:131], v56
        ds_read_b128 v[132:135], v56 offset:512
        s_waitcnt lgkmcnt(1)
        global_store_dwordx4 v58, v[128:131], s[20:21] sc1
        s_waitcnt lgkmcnt(0)
        global_store_dwordx4 v59, v[132:135], s[20:21] sc1
        ''')
    stamp(A, '10a')
    A(f'''
    s_waitcnt vmcnt(0)
    s_barrier
    s_cmp_eq_u32 s22, 0
    s_cbranch_scc0 {N}_nf2
    s_lshl_b32 s45, s2, 6
    s_add_u32 s45, s45, {WS_F2}
    v_mov_b32 v5, s45
    v_mov_b32 v6, s38
    ''')
    lane0_store(A, f'global_store_dword v5, v6, s[20:21] sc1\n s_cmp_eq_u32 s2, 0\n s_cbranch_scc0 {N}_nf2b\n v_mov_b32 v5, {WS_TAG}\n global_store_dword v5, v6, s[20:21] sc1\n {N}_nf2b:')
    A(f'{N}_nf2:')
    stamp(A, 11)
    A('v_lshlrev_b32 v5, 4, v2')
    A(f's_cmp_eq_u32 s22, 0\n s_cbranch_scc0 {N}_np2a\n v_lshlrev_b32 v9, 6, v2\n v_add_u32 v9, {WS_F2}, v9\n v_add_u32 v10, 4096, v9\n v_add_u32 v11, 8192, v9\n v_add_u32 v6, 12288, v9')
    for k, r in enumerate((9, 10, 11, 6)): A(f'global_load_dword v{176 + k}, v{r}, s[20:21] sc1')
    A(f'{N}_np2a:')
    for i in range(4): A(f'v_add_u32 v{252 + i}, {i * 56 * 1024}, v8')
    A('s_mov_b32 s65, 0')
    if W2W:
        A('v_cmp_eq_u32 vcc, s38, v24')
        for r in range(25, 32): A(f'v_cmp_eq_u32 s[52:53], s38, v{r}\n s_and_b64 vcc, vcc, s[52:53]')
        A(f's_cmp_eq_u64 vcc, -1\n s_cbranch_scc0 {N}_nearly\n s_mov_b32 s65, 1')
        for k in range(W2W): A(w2txt(k))
        A(f'{N}_nearly:')
    global W2WIN
    W2WIN = W2W
    A(f'''
    v_bfe_u32 v14, v2, 2, 2
    v_lshl_add_u32 v14, v4, 2, v14
    v_mul_u32_u24 v14, 224, v14
    v_and_b32 v15, 3, v2
    v_lshlrev_b32 v15, 3, v15
    v_add_u32 v14, v14, v15
    s_lshl_b32 s45, s22, 6
    s_min_u32 s46, s45, 160
    s_min_u32 s45, s45, 192
    s_add_u32 s46, s46, 32
    v_add_u32 v12, s45, v14
    v_add_u32 v13, s46, v14
    v_add_u32 v16, {8 * 7168}, v12
    v_add_u32 v17, {8 * 7168}, v13
    v_mov_b32 v18, 0x3f803f80
    v_mov_b32 v19, 0x3f803f80
    v_mov_b32 v20, 0x3f803f80
    v_mov_b32 v21, 0x3f803f80
    ''')
    A.auto(True)
    NB = 6
    def cs_reads(s_):
        out = []
        for t in range(2):
            b = 24 + 8 * (s_ % NB) + 4 * t
            base = (12 + t) if s_ < 8 else (16 + t)
            out.append(f'ds_read_b64_tr_b16 v[{b}:{b + 1}], v{base} offset:{7168 * (s_ % 8)}')
            out.append(f'ds_read_b64_tr_b16 v[{b + 2}:{b + 3}], v{base} offset:{7168 * (s_ % 8) + 3584}')
        return out
    for s_ in range(NB - 2):
        for x in cs_reads(s_): A(x)
    for s_ in range(16):
        if s_ + NB - 2 < 16:
            for x in cs_reads(s_ + NB - 2): A(x)
        for t in range(2):
            b = 24 + 8 * (s_ % NB) + 4 * t; acc = 140 + 8 * (s_ & 1) + 4 * t
            cin = '0' if s_ < 2 else f'v[{acc}:{acc+3}]'
            A(f'v_mfma_f32_16x16x32_bf16 v[{acc}:{acc+3}], v[{b}:{b+3}], v[18:21], {cin}')
    A.auto(False)
    for k in range(0, 8, 2): A(f'v_pk_add_f32 v[{140 + k}:{141 + k}], v[{140 + k}:{141 + k}], v[{148 + k}:{149 + k}]')
    stamp(A, '11a')
    A(f'''
    s_lshl_b32 s45, s22, 7
    s_add_u32 s45, s45, {L_CSX}
    v_lshlrev_b32 v13, 4, v4
    v_add_u32 v13, s45, v13
    v_cmp_eq_u32 vcc, 0, v3
    s_and_saveexec_b64 s[52:53], vcc
    ds_write_b128 v13, v[140:143]
    ds_write_b128 v13, v[144:147] offset:64
    s_mov_b64 exec, s[52:53]
    s_mul_i32 s45, s55, 112
    v_lshlrev_b32 v10, 2, v4
    v_add_u32 v10, s45, v10
    v_lshlrev_b32 v10, 1, v10
    ''')
    for i in range(7): A(f'global_load_dwordx2 v[{228 + 2 * i}:{229 + 2 * i}], v10, s[30:31] offset:{32 * i}')
    A(f'''
    s_waitcnt lgkmcnt(0)
    s_barrier
    v_lshlrev_b32 v13, 4, v4
    v_add_u32 v13, {L_CSX}, v13
    ''')
    CS = 200
    for ft in range(7): A(f'ds_read_b128 v[{CS + 4 * ft}:{CS + 4 * ft + 3}], v13 offset:{64 * ft}')
    stamp(A, '11b')
    A(f's_cmp_eq_u32 s22, 0\n s_cbranch_scc0 {N}_np2')
    A(f'v_lshlrev_b32 v9, 6, v2\n v_add_u32 v9, {WS_F2}, v9\n v_add_u32 v10, 4096, v9\n v_add_u32 v11, 8192, v9\n v_add_u32 v12, 12288, v9')
    A(f's_mov_b32 s79, {SPIN_MAX}\n s_cmp_eq_u32 s65, 1\n s_cbranch_scc1 {N}_p2w\n s_waitcnt vmcnt(7)\n s_branch {N}_p2\n {N}_p2w:\n s_waitcnt vmcnt({7 + W2W})\n {N}_p2:')
    for k in range(4): A(f'v_cmp_ne_u32 s[{66 + 2 * k}:{67 + 2 * k}], s38, v{176 + k}')
    A('s_or_b64 s[52:53], s[66:67], s[68:69]\n s_or_b64 vcc, s[70:71], s[72:73]\n s_or_b64 vcc, vcc, s[52:53]\n s_cmp_eq_u64 vcc, 0')
    A(f's_cbranch_scc1 {N}_p2_ok')
    for k in range(4):
        A(f's_mov_b64 exec, s[{66 + 2 * k}:{67 + 2 * k}]\n s_cbranch_execz {N}_p2s{k}\n global_load_dword v{176 + k}, v{9 + k}, s[20:21] sc1\n {N}_p2s{k}:')
    A(f's_mov_b64 exec, -1\n s_waitcnt vmcnt(0)\n s_sub_u32 s79, s79, 1\n s_cmp_eq_u32 s79, 0\n s_cbranch_scc0 {N}_p2\n {N}_p2_ok:\n {N}_np2:')
    A('s_waitcnt lgkmcnt(0)\n s_barrier')
    stamp(A, 12)

def w2txt(k):
    s_, i = k // 4, k % 4
    t = f'global_load_dwordx4 a[{16 * s_ + 4 * i}:{16 * s_ + 4 * i + 3}], v{252 + i}, s[20:21] offset:{(s_ % 4) * 1024} sc1'
    if s_ % 4 == 3: t += f'\n v_add_u32 v{252 + i}, 4096, v{252 + i}'
    return t

def RES(ft, m): return 168 + 16 * m + 2 * ft

def gelu_block(A, N, tag, sc, fillers):
    ACC = 96
    seg = Asm()
    for ft in range(7):
        seg(f'''
        v_lshlrev_b32 v68, 16, v{228 + 2 * ft}
        v_and_b32 v69, 0xffff0000, v{228 + 2 * ft}
        v_lshlrev_b32 v70, 16, v{229 + 2 * ft}
        v_and_b32 v71, 0xffff0000, v{229 + 2 * ft}
        ''')
        cs = 200 + 4 * ft
        P2 = [(m, p) for m in range(2) for p in range(2)]
        for m, p in P2:
            ab = 60 + 2 * m; T = 72 + 4 * m + 2 * p
            seg(f'v_pk_fma_f32 v[{T}:{T + 1}], v[{cs + 2 * p}:{cs + 2 * p + 1}], v[{ab}:{ab + 1}], v[{68 + 2 * p}:{69 + 2 * p}] op_sel:[0,1,0] op_sel_hi:[1,1,1]')
        for m, p in P2:
            x = ACC + 4 * (2 * ft + m) + 2 * p; ab = 60 + 2 * m; T = 72 + 4 * m + 2 * p
            seg(f'v_pk_fma_f32 v[{x}:{x + 1}], v[{x}:{x + 1}], v[{ab}:{ab + 1}], v[{T}:{T + 1}] op_sel:[0,0,0] op_sel_hi:[1,0,1]')
        for m, p in P2:
            x = ACC + 4 * (2 * ft + m) + 2 * p; T = 72 + 4 * m + 2 * p
            seg(f'v_pk_mul_f32 v[{T}:{T + 1}], v[{x}:{x + 1}], v[{x}:{x + 1}]')
        for m, p in P2:
            T = 72 + 4 * m + 2 * p
            seg(f'v_pk_fma_f32 v[{T}:{T + 1}], v[{T}:{T + 1}], v[66:67], v[64:65]')
        for m, p in P2:
            x = ACC + 4 * (2 * ft + m) + 2 * p; T = 72 + 4 * m + 2 * p
            seg(f'v_pk_mul_f32 v[{T}:{T + 1}], v[{T}:{T + 1}], v[{x}:{x + 1}]')
        for k in range(8): seg(f'v_exp_f32 v{72 + k}, v{72 + k}')
        for k in range(4): seg(f'v_pk_add_f32 v[{72 + 2 * k}:{73 + 2 * k}], v[{72 + 2 * k}:{73 + 2 * k}], 1.0 op_sel_hi:[1,0]')
        for k in range(8): seg(f'v_rcp_f32 v{72 + k}, v{72 + k}')
        for m, p in P2:
            x = ACC + 4 * (2 * ft + m) + 2 * p; T = 72 + 4 * m + 2 * p
            seg(f'v_pk_mul_f32 v[{x}:{x + 1}], v[{x}:{x + 1}], v[{T}:{T + 1}]')
        for m in range(2):
            acc = ACC + 4 * (2 * ft + m)
            seg(f'v_cvt_pk_bf16_f32 v{RES(ft, m)}, v{acc}, v{acc + 1}')
            seg(f'v_cvt_pk_bf16_f32 v{RES(ft, m) + 1}, v{acc + 2}, v{acc + 3}')
        ev = []; od = []
        for m in range(2):
            if ft % 2 == 1: ev.append(f'global_store_dwordx4 v{10 + m}, v[{RES(ft - 1, m)}:{RES(ft - 1, m) + 3}], s[20:21] offset:{1024 * (ft // 2)}' + sc)
            if ft == 6: ev.append(f'global_store_dwordx2 v{12 + m}, v[{RES(6, m)}:{RES(6, m) + 1}], s[20:21] offset:3072' + sc)
            if ft == 0: od.append(f'global_store_dwordx2 v{12 + m}, v[{RES(0, m)}:{RES(0, m) + 1}], s[20:21] offset:512' + sc)
            if ft % 2 == 0 and ft > 0: od.append(f'global_store_dwordx4 v{10 + m}, v[{RES(ft - 1, m)}:{RES(ft - 1, m) + 3}], s[20:21] offset:{1024 * (ft // 2)}' + sc)
        if ev:
            seg(f's_cmp_eq_u32 s46, 0\n s_cbranch_scc0 {N}_se{tag}{ft}')
            for x in ev: seg(x)
            seg(f'{N}_se{tag}{ft}:')
        if od:
            seg(f's_cmp_eq_u32 s46, 0\n s_cbranch_scc1 {N}_so{tag}{ft}')
            for x in od: seg(x)
            seg(f'{N}_so{tag}{ft}:')
    interleave(A, seg, fillers, first=4, last_frac=0.8)

def phase_c(A, N):
    vm = VM()
    A(f'''
    s_and_b32 s54, s26, 1
    s_lshl_b32 s45, s23, 1
    s_add_u32 s54, s54, s45
    v_lshrrev_b32 v7, 2, v2
    v_lshlrev_b32 v7, 6, v7
    v_and_b32 v10, 3, v2
    v_bfe_u32 v9, v2, 4, 1
    v_lshlrev_b32 v9, 1, v9
    v_xor_b32 v10, v10, v9
    v_lshlrev_b32 v10, 4, v10
    s_lshl_b32 s45, s54, 2
    s_add_u32 s45, s45, s22
    s_lshl_b32 s45, s45, 15
    s_add_u32 s45, s45, {WS_HT}
    v_add3_u32 v7, v7, v10, s45
    s_mul_i32 s58, s22, 12288
    s_add_u32 s58, s58, {HS}
    s_cmp_eq_u32 s22, 0
    s_cbranch_scc0 {N}_nwarmh
    s_lshl_b32 s45, s23, 18
    s_lshl_b32 s46, s26, 13
    s_add_u32 s45, s45, s46
    s_add_u32 s45, s45, {WS_HT}
    v_lshlrev_b32 v9, 7, v2
    v_add_u32 v9, s45, v9
    global_load_dword v250, v9, s[20:21] sc1
    {N}_nwarmh:
    ''')
    A('s_lshr_b32 s45, s55, 1')
    for i in range(8): A(f's_add_u32 s{66 + i}, s45, {i}\n s_and_b32 s{66 + i}, s{66 + i}, 7')
    def hdma_parts(i):
        slot = i % 3
        return [f's_add_u32 m0, s58, {slot * 4096}\n s_lshl_b32 s45, s{66 + i}, 12\n v_add_u32 v10, s45, v7\n global_load_lds_dwordx4 v10, s[20:21] sc1'] + [f'global_load_lds_dwordx4 v10, s[20:21] offset:{1024 * k} sc1' for k in range(1, 4)]
    def hdma(i):
        for x in hdma_parts(i): A(x); vm.issue()
        vm.mark(f'H{i}')
    hdma(0); hdma(1); hdma(2)
    for i in range(4): A(f'v_add_u32 v{252 + i}, {i * 56 * 1024 + (W2WIN // 16) * 4096}, v8')
    A(f'''
    v_bfe_u32 v14, v2, 2, 2
    v_lshl_add_u32 v14, v4, 2, v14
    v_and_b32 v15, 3, v2
    v_lshlrev_b32 v15, 3, v15
    v_mul_u32_u24 v11, 224, v14
    v_add_u32 v11, v11, v15
    s_mul_i32 s45, s66, 14336
    v_add_u32 v12, s45, v11
    v_lshlrev_b32 v14, 6, v14
    v_add3_u32 v14, v14, v15, s58
    v_and_b32 v15, 1, v4
    v_lshlrev_b32 v15, 5, v15
    v_add_u32 v16, v14, v15
    v_xor_b32 v15, 32, v15
    v_add_u32 v17, v14, v15
    s_lshl_b32 s45, s54, 15
    s_lshl_b32 s46, s22, 9
    s_add_u32 s45, s45, s46
    s_add_u32 s45, s45, {WS_PS}
    v_lshlrev_b32 v246, 4, v2
    s_lshl_b32 s46, s55, 11
    s_add_u32 s46, s46, s45
    v_add_u32 v247, s46, v246
    v_lshlrev_b32 v248, 4, v3
    v_lshlrev_b32 v249, 13, v4
    v_add3_u32 v248, v248, v249, s45
    v_cmp_eq_u32 s[76:77], 1, v4
    s_and_b32 s46, s55, 1
    s_cmp_eq_u32 s46, 1
    s_cselect_b64 s[74:75], -1, 0
    ''')
    for r in range(4):
        A(f'v_lshl_add_u32 v24, v4, 2, {r}\n v_cmp_eq_u32 vcc, v24, v3\n v_cndmask_b32 v{242 + r}, 0, 1.0, vcc')
    AF = [24, 60]; BF = [52, 88]; ACC = 96; SUM = 152; GR = 160
    def reads(s_):
        st = s_ & 1; outA = []; outB = []
        base = 12 + ((s_ >> 1) & 1)
        for ft in range(7):
            off = 7168 * (s_ & 1) + 32 * ft
            outA.append(f'ds_read_b64_tr_b16 v[{AF[st] + 4 * ft}:{AF[st] + 4 * ft + 1}], v{base} offset:{off}')
            outA.append(f'ds_read_b64_tr_b16 v[{AF[st] + 4 * ft + 2}:{AF[st] + 4 * ft + 3}], v{base} offset:{off + 3584}')
        o = ((s_ // 2) % 3) * 4096 + (s_ & 1) * 2048
        for m in range(2):
            outB.append(f'ds_read_b64_tr_b16 v[{BF[st] + 4 * m}:{BF[st] + 4 * m + 1}], v{16 + m} offset:{o}')
            outB.append(f'ds_read_b64_tr_b16 v[{BF[st] + 4 * m + 2}:{BF[st] + 4 * m + 3}], v{16 + m} offset:{o + 1024}')
        return outB[:2] + outA + outB[2:]
    A(f'''
    s_mul_i32 s45, s23, {16 * 56 * 1024}
    s_mul_i32 s46, s26, {224 * 128}
    s_add_u32 s45, s45, s46
    s_mul_i32 s46, s22, {56 * 128}
    s_add_u32 s45, s45, s46
    s_add_u32 s45, s45, {WS_H1}
    v_min_u32 v6, 55, v2
    v_lshlrev_b32 v6, 7, v6
    v_add_u32 v6, s45, v6
    ''')
    vm.wait(A, 'H0')
    stamp(A, 13)
    A.auto(True)
    for r in reads(0): A(r)
    w2i = W2WIN
    HQPOS = eval(os.environ.get('HQPOS', '(0,)'))
    W2LOOP = w2i + ENV('W2LOOP', 44); W2POS = eval(os.environ.get('W2POS', '(4, 8, 12)'))
    COARSE = ENV('COARSE', 0)
    S0, S1 = 152, 168
    pub = []
    for m in range(2):
        pub.append(f'v_cndmask_b32_e64 v{184 + 4 * m}, v{S0 + 4 * m}, v{S1 + 4 * m}, s[74:75]')
        for r in range(4): pub.append(f'v_cndmask_b32_e64 v{S0 + 8 + 4 * m + r}, v{S0 + 8 + 4 * m + r}, v{S1 + 8 + 4 * m + r}, s[74:75]')
    for m in range(2):
        pub.append(f'v_mul_f32 v{186 + 4 * m}, v{S0 + 8 + 4 * m}, v242')
        for r in range(1, 4): pub.append(f'v_fmac_f32 v{186 + 4 * m}, v{S0 + 8 + 4 * m + r}, v{242 + r}')
    for sw in ('v_permlane16_swap_b32', 'v_permlane32_swap_b32'):
        for m in range(2): pub.append(f'v_mov_b32 v{192 + m}, v{186 + 4 * m}')
        for m in range(2): pub.append(f'{sw} v{186 + 4 * m}, v{192 + m}')
        for m in range(2): pub.append(f'v_add_f32 v{186 + 4 * m}, v{186 + 4 * m}, v{192 + m}')
    for m in range(2): pub.append(f'v_mov_b32 v{185 + 4 * m}, s38\n v_mov_b32 v{187 + 4 * m}, s38')
    pub.append('v_cndmask_b32_e64 v184, v184, v188, s[76:77]')
    pub.append('v_cndmask_b32_e64 v186, v186, v190, s[76:77]')
    pub.append('s_mov_b32 exec_hi, 0\n global_store_dwordx4 v247, v[184:187], s[20:21] sc1\n s_mov_b32 exec_hi, -1')
    PSL = 152
    psl = [f'global_load_dwordx4 v[{PSL + 16 * m + 4 * k}:{PSL + 16 * m + 4 * k + 3}], v{248 if k < 2 else 250}, s[20:21] offset:{256 * m + 2048 * (k & 1)} sc1' for m in range(2) for k in range(4)]
    for s_ in range(16):
        st = s_ & 1
        hq = []
        if s_ % 2 == 0 and s_ >= 2 and (s_ - 2) // 2 + 3 < 8:
            hq = hdma_parts((s_ - 2) // 2 + 3); hst = (s_ - 2) // 2 + 3
        if s_ % 2 == 0 and s_ // 2 + 1 < 8:
            i1 = s_ // 2 + 1
            A(f's_mul_i32 s45, s{66 + i1}, 14336\n v_add_u32 v{12 + (i1 & 1)}, s45, v11')
        if s_ < 15:
            n = s_ + 1
            if n % 2 == 0: vm.wait(A, f'H{n // 2}')
            rd = reads(n)
        else: rd = []
        ms = []
        for m in range(2):
            b = BF[st] + 4 * m
            for ft in range(7):
                acc = ACC + 4 * (2 * ft + m)
                cin = '0' if s_ == 0 else f'v[{acc}:{acc+3}]'
                ms.append(f'v_mfma_f32_16x16x32_bf16 v[{acc}:{acc+3}], v[{AF[st] + 4 * ft}:{AF[st] + 4 * ft + 3}], v[{b}:{b+3}], {cin}')
            if s_ < 2:
                S = S0 if s_ == 0 else S1
                ms.append(f'v_mfma_f32_16x16x32_bf16 v[{S + 4 * m}:{S + 4 * m + 3}], v[18:21], v[{b}:{b+3}], 0')
                ms.append(f'v_mfma_f32_16x16x32_bf16 v[{S + 8 + 4 * m}:{S + 8 + 4 * m + 3}], v[{b}:{b+3}], v[{b}:{b+3}], 0')
        ri = 0; nm = len(ms)
        for i, mi in enumerate(ms):
            if COARSE and i == 0: A(f's_waitcnt lgkmcnt({COARSE})')
            A(mi)
            left = len(rd) - ri; gaps = nm - i
            for _ in range(2 if left > gaps - 1 and left > 1 and i % 3 == 0 else 1):
                if ri < len(rd): A(rd[ri]); ri += 1
            while hq and i in HQPOS:
                A(hq.pop(0)); vm.issue()
                if not hq: vm.mark(f'H{hst}')
                if len(HQPOS) > 1: break
            if i in W2POS and w2i < W2LOOP and s_ >= 1: A(w2txt(w2i)); vm.issue(); w2i += 1
            if s_ in (3, 4) and pub and i % 2 == 1:
                x = pub.pop(0); A(x)
                if 'global_store' in x: vm.issue(1)
        while ri < len(rd): A(rd[ri]); ri += 1
        if s_ == 4:
            while pub:
                x = pub.pop(0); A(x)
                if 'global_store' in x: vm.issue(1)
        if s_ == 11:
            A('v_add_u32 v250, 4096, v248')
            for x in psl: A(x); vm.issue()
            ps_mark = vm.n
        if s_ in (3, 7, 11): stamp(A, f'c{s_}')
    A.auto(False)
    stamp(A, 14)
    ck = ''
    first = True
    for m in range(2):
        for k in range(4):
            for o in (1, 3):
                r = 152 + 16 * m + 4 * k + o
                if first: ck += f'v_cmp_eq_u32 vcc, s38, v{r}\n'; first = False
                else: ck += f'v_cmp_eq_u32 s[52:53], s38, v{r}\n s_and_b64 vcc, vcc, s[52:53]\n'
    ck += 's_cmp_eq_u64 vcc, -1'
    A('s_waitcnt vmcnt(0)' if False else f's_waitcnt vmcnt({vm.n - ps_mark})')
    A(ck)
    A(f's_cbranch_scc1 {N}_ps_ok')
    poll_loop(A, f'{N}_ps', '\n'.join(psl), ck)
    for m in range(2):
        b = 152 + 16 * m
        A(f'v_add_f32 v{SUM + 4 * m}x, v{b}, v{b + 4}'.replace(f'v{SUM + 4 * m}x', f'v{36 + m}'))
        A(f'v_add_f32 v{38 + m}, v{b + 8}, v{b + 12}')
        A(f'v_add_f32 v{32 + m}, v{b + 2}, v{b + 6}')
        A(f'v_add_f32 v{40 + m}, v{b + 10}, v{b + 14}')
    for m in range(2):
        A(f'v_add_f32 v{36 + m}, v{36 + m}, v{38 + m}')
        A(f'v_add_f32 v{32 + m}, v{32 + m}, v{40 + m}')
    for sw in ('v_permlane16_swap_b32', 'v_permlane32_swap_b32'):
        for m in range(2): A(f'v_mov_b32 v{34 + m}, v{32 + m}\n v_mov_b32 v{38 + m}, v{36 + m}')
        for m in range(2): A(f'{sw} v{32 + m}, v{34 + m}\n {sw} v{36 + m}, v{38 + m}')
        for m in range(2): A(f'v_add_f32 v{32 + m}, v{32 + m}, v{34 + m}\n v_add_f32 v{36 + m}, v{36 + m}, v{38 + m}')
    R2 = lambda f: [f(m) for m in range(2)]
    mu, var, m1, r1, t, m2, r2 = (lambda o: (lambda m: o + 8 * m))(44), (lambda m: 45 + 8 * m), (lambda m: 46 + 8 * m), (lambda m: 47 + 8 * m), (lambda m: 48 + 8 * m), (lambda m: 49 + 8 * m), (lambda m: 50 + 8 * m)
    steps = [
        lambda m: f'v_mul_f32 v{mu(m)}, 0x3b000000, v{36 + m}',
        lambda m: f'v_mul_f32 v{var(m)}, 0x3b000000, v{32 + m}',
        lambda m: f'v_fma_f32 v{var(m)}, -v{mu(m)}, v{mu(m)}, v{var(m)}',
        lambda m: f'v_max_f32 v{var(m)}, 0, v{var(m)}',
        lambda m: f'v_cvt_pk_bf16_f32 v{m1(m)}, v{mu(m)}, v{mu(m)}',
        lambda m: f'v_cvt_pk_bf16_f32 v{t(m)}, v{var(m)}, v{var(m)}',
        lambda m: f'v_lshlrev_b32 v{m1(m)}, 16, v{m1(m)}',
        lambda m: f'v_lshlrev_b32 v{t(m)}, 16, v{t(m)}',
        lambda m: f'v_add_f32 v{t(m)}, {EPS:#x}, v{t(m)}',
        lambda m: f'v_cvt_pk_bf16_f32 v{t(m)}, v{t(m)}, v{t(m)}',
        lambda m: f'v_lshlrev_b32 v{t(m)}, 16, v{t(m)}',
        lambda m: f'v_sqrt_f32 v{t(m)}, v{t(m)}',
        lambda m: f'v_sub_f32 v{m2(m)}, v{mu(m)}, v{m1(m)}',
        lambda m: f'v_cvt_pk_bf16_f32 v{t(m)}, v{t(m)}, v{t(m)}',
        lambda m: f'v_lshlrev_b32 v{t(m)}, 16, v{t(m)}',
        lambda m: f'v_rcp_f32 v{r1(m)}, v{t(m)}',
        lambda m: f'v_mul_f32 v{m2(m)}, v{m2(m)}, v{r1(m)}',
        lambda m: f'v_mul_f32 v{t(m)}, v{var(m)}, v{r1(m)}',
        lambda m: f'v_cvt_pk_bf16_f32 v{m2(m)}, v{m2(m)}, v{m2(m)}',
        lambda m: f'v_mul_f32 v{t(m)}, v{t(m)}, v{r1(m)}',
        lambda m: f'v_lshlrev_b32 v{m2(m)}, 16, v{m2(m)}',
        lambda m: f'v_cvt_pk_bf16_f32 v{t(m)}, v{t(m)}, v{t(m)}',
        lambda m: f'v_lshlrev_b32 v{t(m)}, 16, v{t(m)}',
        lambda m: f'v_add_f32 v{t(m)}, {EPS:#x}, v{t(m)}',
        lambda m: f'v_cvt_pk_bf16_f32 v{t(m)}, v{t(m)}, v{t(m)}',
        lambda m: f'v_lshlrev_b32 v{t(m)}, 16, v{t(m)}',
        lambda m: f'v_sqrt_f32 v{t(m)}, v{t(m)}',
        lambda m: f'v_cvt_pk_bf16_f32 v{t(m)}, v{t(m)}, v{t(m)}',
        lambda m: f'v_lshlrev_b32 v{t(m)}, 16, v{t(m)}',
        lambda m: f'v_rcp_f32 v{r2(m)}, v{t(m)}',
        lambda m: f'v_fma_f32 v{t(m)}, v{m1(m)}, v{r1(m)}, v{m2(m)}',
        lambda m: f'v_mul_f32 v{60 + 2 * m}, v{r1(m)}, v{r2(m)}',
        lambda m: f'v_mul_f32 v{t(m)}, v{t(m)}, v{r2(m)}',
        lambda m: f'v_sub_f32 v{61 + 2 * m}, 0, v{t(m)}',
    ]
    for st_ in steps:
        for m in range(2): A(st_(m))
    A(f'''
    v_mov_b32 v64, {hex(f2u(GC1))}
    v_mov_b32 v65, {hex(f2u(GC1))}
    v_mov_b32 v66, {hex(f2u(GC2))}
    v_mov_b32 v67, {hex(f2u(GC2))}
    s_lshl_b32 s45, s54, 3
    s_lshl_b32 s46, s22, 1
    s_add_u32 s45, s45, s46
    s_mul_i32 s45, s45, {56 * 1024}
    s_mul_i32 s46, s55, 7
    s_lshr_b32 s47, s46, 1
    s_lshl_b32 s47, s47, 10
    s_add_u32 s45, s45, s47
    s_add_u32 s45, s45, {WS_H1}
    v_add_u32 v10, s45, v5
    v_add_u32 v11, {56 * 1024}, v10
    v_lshlrev_b32 v12, 3, v2
    v_add_u32 v12, s45, v12
    v_add_u32 v13, {56 * 1024}, v12
    s_and_b32 s46, s55, 1
    ''')
    if ABL('fast'): A(f's_cmp_eq_u32 s64, 1\n s_cbranch_scc0 {N}_gslow')
    W2G = ENV('W2GELU', 56)
    w2g_end = min(56, w2i + W2G)
    fill = [w2txt(k) for k in range(w2i, w2g_end)]
    if ABL('fast'):
        gelu_block(A, N, 'f', '', fill)
        A(f's_branch {N}_gdone')
    A(f'{N}_gslow:')
    gelu_block(A, N, 's', ' sc1', fill)
    A(f'{N}_gdone:')
    stamp(A, 15)
    A(f'''
    s_waitcnt vmcnt(0)
    s_barrier
    s_cmp_eq_u32 s22, 0
    s_cbranch_scc0 {N}_nf3
    s_lshl_b32 s45, s54, 4
    s_add_u32 s45, s45, s55
    s_lshl_b32 s45, s45, 6
    s_add_u32 s45, s45, {WS_F3}
    v_mov_b32 v6, s45
    v_mov_b32 v7, s38
    ''')
    lane0_store(A, 'global_store_dword v6, v7, s[20:21] sc1')
    A(f'{N}_nf3:')
    for k in range(w2g_end, 56): A(w2txt(k))
    if W2WIN:
        A(f's_cmp_eq_u32 s65, 1\n s_cbranch_scc1 {N}_nlate')
        for i in range(4): A(f'v_add_u32 v{252 + i}, {i * 56 * 1024}, v8')
        for k in range(W2WIN): A(w2txt(k))
        A(f'{N}_nlate:')

def phase_d(A, N):
    A(f'''
    s_lshr_b32 s60, s26, 3
    s_lshl_b32 s45, s23, 2
    s_add_u32 s60, s60, s45
    s_lshl_b32 s45, s60, 16
    s_lshl_b32 s46, s59, 12
    s_add_u32 s45, s45, s46
    s_lshl_b32 s46, s22, 10
    s_add_u32 s45, s45, s46
    s_add_u32 s45, s45, {WS_HT}
    v_add_u32 v6, s45, v5
    s_lshl_b32 s61, s22, 11
    s_add_u32 s61, s61, 49152
    s_mov_b32 m0, s61
    v_add_u32 v7, 32768, v6
    global_load_lds_dwordx4 v6, s[20:21] sc1
    s_add_u32 m0, s61, 1024
    s_nop 0
    global_load_lds_dwordx4 v7, s[20:21] sc1
    s_lshl_b32 s46, s59, 7
    s_lshl_b32 s47, s22, 5
    s_add_u32 s46, s46, s47
    v_lshlrev_b32 v7, 3, v4
    v_add_u32 v7, s46, v7
    global_load_dwordx2 v[12:13], v7, s[34:35]
    s_lshl_b32 s45, s60, 6
    v_add_u32 v6, s45, v3
    v_lshlrev_b32 v6, 10, v6
    v_add_u32 v14, v6, v7
    s_mul_i32 s45, s60, {4 * 56}
    s_mul_i32 s46, s22, 14
    s_add_u32 s45, s45, s46
    s_lshl_b32 s45, s45, 10
    s_add_u32 s45, s45, {WS_H1}
    ''')
    for m in range(4): A(f'v_add_u32 v{8 + m}, {m * 56 * 1024}, v5\n v_add_u32 v{8 + m}, s45, v{8 + m}')
    A('v_lshlrev_b32 v244, 3, v2')
    A(f'''
    s_cmp_eq_u32 s22, 3
    s_cbranch_scc0 {N}_np3
    s_lshr_b32 s45, s60, 1
    s_lshl_b32 s45, s45, 10
    s_add_u32 s45, s45, {WS_F3}
    v_lshlrev_b32 v6, 6, v3
    v_add_u32 v6, s45, v6
    ''')
    poll_loop(A, f'{N}_p3', 'global_load_dword v15, v6, s[20:21] sc1', 'v_cmp_eq_u32 vcc, s38, v15\n s_cmp_eq_u64 vcc, -1')
    A(f'{N}_np3:\n s_barrier')
    stamp(A, 16)
    NS = 7; B0 = 16; ACC = 176
    PD0 = ENV('PD0', 3); PD = ENV('PD', 5)
    def ltxt(s_):
        st = B0 + 16 * (s_ % NS); o = (s_ % 4) * 1024; out = []
        for m in range(4):
            t = ''
            if s_ % 4 == 0 and s_ > 0: t += f'v_add_u32 v{8 + m}, 4096, v{8 + m}\n'
            if s_ in (3, 10):
                out.append(t + f'v_sub_u32 v{240 + m}, v{8 + m}, v244\n global_load_dwordx2 v[{st + 4 * m}:{st + 4 * m + 1}], v{240 + m}, s[20:21] offset:{o}' + H1LD + f'\n global_load_dwordx2 v[{st + 4 * m + 2}:{st + 4 * m + 3}], v{240 + m}, s[20:21] offset:{o + 512}' + H1LD)
            else:
                out.append(t + f'global_load_dwordx4 v[{st + 4 * m}:{st + 4 * m + 3}], v{8 + m}, s[20:21] offset:{o}' + H1LD)
        return out
    A.auto(True)
    for s_ in range(PD0):
        for t in ltxt(s_): A(t)
    A(f's_waitcnt vmcnt({4 * PD0})')
    issued = PD0
    for s_ in range(14):
        st = B0 + 16 * (s_ % NS)
        q = []
        tgt = min(14, s_ + PD + 1)
        nq = 2 if issued < tgt - 1 else 1
        for _ in range(nq):
            if issued < tgt: q += ltxt(issued); issued += 1
        k = 0; every = 2 if len(q) > 4 else 4
        for m in range(4):
            for i in range(4):
                acc = ACC + 4 * (4 * i + m)
                cin = '0' if s_ == 0 else f'v[{acc}:{acc+3}]'
                A(f'v_mfma_f32_16x16x32_bf16 v[{acc}:{acc+3}], a[{16 * s_ + 4 * i}:{16 * s_ + 4 * i + 3}], v[{st + 4 * m}:{st + 4 * m + 3}], {cin}')
                k += 1
                if q and k % every == 0: A(q.pop(0))
        while q: A(q.pop(0))
        if s_ in (0, 3, 7, 11): stamp(A, f'd{s_}')
    A.auto(False)
    stamp(A, 17)
    A(f's_mul_i32 s45, s22, {3 * 4096}\n v_add_u32 v15, s45, v5')
    A(f'''
    v_bfe_u32 v8, v2, 2, 2
    v_lshl_add_u32 v8, v4, 2, v8
    v_lshlrev_b32 v8, 6, v8
    v_and_b32 v9, 3, v2
    v_lshlrev_b32 v9, 3, v9
    v_add3_u32 v8, v8, v9, s61
    ''')
    for m in range(4): A(f'ds_read_b64_tr_b16 v[{16 + 2 * m}:{17 + 2 * m}], v8 offset:{1024 * (m >> 1) + 32 * (m & 1)}')
    for w in range(4):
        A(f's_cmp_eq_u32 s22, {w}\n s_cbranch_scc0 {N}_r{w}')
        for idx in range(3):
            i = (w + 1 + idx) & 3
            for m in range(4):
                acc = ACC + 4 * (4 * i + m)
                A(f'ds_write_b128 v15, v[{acc}:{acc+3}] offset:{idx * 4096 + m * 1024}')
        if w != 0:
            for k in range(0, 16, 2): A(f'v_pk_mul_f32 v[{ACC + k}:{ACC + k + 1}], v[{ACC + 16 * w + k}:{ACC + 16 * w + k + 1}], 1.0 op_sel_hi:[1,0]')
        A('s_waitcnt lgkmcnt(0)\n s_barrier')
        for q in range(3):
            wp = (w + 1 + q) & 3
            idx = (w - wp - 1) & 3
            for m in range(4):
                A(f'ds_read_b128 v[{32 + 16 * q + 4 * m}:{32 + 16 * q + 4 * m + 3}], v5 offset:{(wp * 3 + idx) * 4096 + m * 1024}')
        A(f's_branch {N}_fin\n {N}_r{w}:')
    A(f'{N}_fin:')
    A(f'''
    v_lshlrev_b32 v24, 16, v12
    v_and_b32 v25, 0xffff0000, v12
    v_lshlrev_b32 v26, 16, v13
    v_and_b32 v27, 0xffff0000, v13
    ''')
    for k in range(8): A(f'v_lshlrev_b32 v{96 + 2 * k}, 16, v{16 + k}\n v_and_b32 v{97 + 2 * k}, 0xffff0000, v{16 + k}')
    A('s_waitcnt lgkmcnt(0)')
    for q in range(3):
        for k in range(8): A(f'v_pk_add_f32 v[{ACC + 2 * k}:{ACC + 2 * k + 1}], v[{ACC + 2 * k}:{ACC + 2 * k + 1}], v[{32 + 16 * q + 2 * k}:{33 + 16 * q + 2 * k}]')
    for k in range(8): A(f'v_cvt_pk_bf16_f32 v{112 + k}, v{ACC + 2 * k}, v{ACC + 2 * k + 1}')
    for k in range(8): A(f'v_lshlrev_b32 v{ACC + 2 * k}, 16, v{112 + k}\n v_and_b32 v{ACC + 2 * k + 1}, 0xffff0000, v{112 + k}')
    for k in range(8): A(f'v_pk_add_f32 v[{ACC + 2 * k}:{ACC + 2 * k + 1}], v[{ACC + 2 * k}:{ACC + 2 * k + 1}], v[{24 + 2 * (k & 1)}:{25 + 2 * (k & 1)}]')
    for k in range(8): A(f'v_cvt_pk_bf16_f32 v{112 + k}, v{ACC + 2 * k}, v{ACC + 2 * k + 1}')
    for k in range(8): A(f'v_lshlrev_b32 v{ACC + 2 * k}, 16, v{112 + k}\n v_and_b32 v{ACC + 2 * k + 1}, 0xffff0000, v{112 + k}')
    for k in range(8): A(f'v_pk_add_f32 v[{ACC + 2 * k}:{ACC + 2 * k + 1}], v[{ACC + 2 * k}:{ACC + 2 * k + 1}], v[{96 + 2 * k}:{97 + 2 * k}]')
    for m in range(4):
        for pr in range(2): A(f'v_cvt_pk_bf16_f32 v{112 + 2 * m + pr}, v{ACC + 4 * m + 2 * pr}, v{ACC + 4 * m + 2 * pr + 1}')
        A(f'v_add_u32 v9, {m * 16384}, v14')
        A(f'global_store_dwordx2 v9, v[{112 + 2 * m}:{113 + 2 * m}], s[36:37]' + os.environ.get('OUTSC', ''))

def gen_mega(N):
    A = Asm()
    stamp(A, 0)
    A(f'''
    s_cmp_ge_u32 s2, 256
    s_cbranch_scc1 {N}_end
    s_load_dwordx16 s[4:19], s[0:1], 0
    s_load_dwordx2 s[20:21], s[0:1], 128
    s_load_dwordx2 s[24:25], s[0:1], 64
    s_load_dwordx4 s[28:31], s[0:1], 80
    s_load_dwordx4 s[32:35], s[0:1], 96
    s_load_dwordx2 s[36:37], s[0:1], 112
    v_lshrrev_b32 v1, 6, v0
    v_and_b32 v2, 63, v0
    v_and_b32 v3, 15, v2
    v_lshrrev_b32 v4, 4, v2
    v_readfirstlane_b32 s22, v1
    s_and_b32 s23, s2, 7
    s_lshr_b32 s26, s2, 3
    s_lshl_b32 s27, s23, 5
    s_add_u32 s27, s27, s26
    ''')
    phase_a(A, N); phase_b(A, N); phase_c(A, N); phase_d(A, N)
    if STAMPS:
        A('s_waitcnt vmcnt(0)')
        stamp(A, 'end')
        stamp_flush(A, 0, 18, tmpv=8)
    A(f'{N}_end:\n s_endpgm')
    A.resolve()
    txt = A.text() + f'.p2align 8\n.type {N}_tbl,@object\n{N}_tbl:\n' + ''.join('.long ' + ', '.join(hex(x) for x in row) + '\n' for row in const_table()) + f'.size {N}_tbl, 16384\n'
    return txt, dict(name=N, grid=256, block=256, lds=LDS_TOTAL, nvgpr=256, accum=256, total=512)
if __name__ == '__main__':
    import sys
    from build import build
    NM = 'sequential_preLN__ssm_conv_s4__mixer_channel_mlp__prompt'
    k = gen_mega(NM + '_kernel')
    path = sys.argv[1] if len(sys.argv) > 1 else f'cdna_kernels/{NM}.s'
    build([k], path, single=True)
    import common
    if common.STAMPS: open(path + '.names', 'w').write(','.join(common._stamp_state['names']))
```

```python
from asmlib import *
WS_XT  = 0x0000000
WS_MU  = 0x0200000
WS_RS  = 0x0202000
WS_CS  = 0x0204000
WS_KR  = 0x0300000
WS_HT  = 0x0500000
WS_W1P = 0x0700000
WS_W2P = 0x0900000
WS_H1  = 0x0B00000
WS_HR  = 0x1200000
WS_A2  = 0x1400000
LOG2E = 0x3fb8aa3b
INV2PI = 0x3e22f983
EPS = 0x3727c5ac

def allsum64(A, regs, tmp):
    for pat in ('quad_perm:[1,0,3,2]', 'quad_perm:[2,3,0,1]', 'row_half_mirror', 'row_mirror'):
        for r in regs:
            A(f'v_add_f32_dpp v{r}, v{r}, v{r} {pat} row_mask:0xf bank_mask:0xf')
    for sw in ('v_permlane16_swap_b32', 'v_permlane32_swap_b32'):
        for r, t in zip(regs, tmp): A(f'v_mov_b32 v{t}, v{r}')
        for r, t in zip(regs, tmp): A(f'{sw} v{r}, v{t}')
        for r, t in zip(regs, tmp): A(f'v_add_f32 v{r}, v{r}, v{t}')

def cmul(A, D, X, Y, T):
    A(f'v_pk_mul_f32 v[{T}:{T+1}], v[{X}:{X+1}], v[{Y}:{Y+1}] op_sel_hi:[1,0]')
    A(f'v_pk_fma_f32 v[{D}:{D+1}], v[{X}:{X+1}], v[{Y}:{Y+1}], v[{T}:{T+1}] op_sel:[1,1,0] op_sel_hi:[0,1,1] neg_lo:[1,0,0]')

def round_bf16(A, d, s_):
    A(f'v_cvt_pk_bf16_f32 v{d}, v{s_}, v{s_}')
    A(f'v_lshlrev_b32 v{d}, 16, v{d}')

import os
STAMPS = os.environ.get('STAMPS', '0') == '1'
WS_STAMP = 0x3000000
_stamp_state = {'last': None, 'names': []}
STAMP_SEL = os.environ.get('STSEL', '')
def stamp(A, i):
    if not STAMPS: return
    st = _stamp_state
    name = str(i)
    if name == '0' or name == 'start': st['last'] = None; st['names'] = []
    sel = STAMP_SEL.split(',') if STAMP_SEL else None
    if name not in ('0', 'start'):
        if sel is None:
            if not name[0].isdigit(): return
        elif not any(name == p or (p.endswith('*') and name.startswith(p[:-1])) for p in sel): return
    k = len(st['names']); assert k < 18, st['names']
    st['names'].append(name)
    if st['last'] is not None:
        A(f's_waitcnt lgkmcnt(0)\n s_mov_b32 s{80 + st["last"][0]}, s{st["last"][1]}')
    tmp = 98 if (st['last'] is None or st['last'][1] == 100) else 100
    A(f's_{"memtime" if os.environ.get("STCLK") == "1" else "memrealtime"} s[{tmp}:{tmp + 1}]')
    st['last'] = (k, tmp)
def stamp_flush(A, kid, n, wsreg=20, wave_sgpr=22, tmpv=250):
    if not STAMPS: return
    st = _stamp_state
    n = len(st['names'])
    A(f's_waitcnt lgkmcnt(0)\n s_mov_b32 s{80 + st["last"][0]}, s{st["last"][1]}')
    if os.environ.get('DBGOUT'):
        wg = int(os.environ['DBGOUT'])
        A(f'''
        s_mov_b64 exec, 1
        s_cmp_eq_u32 s2, {wg}
        s_cbranch_scc0 dbg_skip
        s_cmp_eq_u32 s{wave_sgpr}, 0
        s_cbranch_scc0 dbg_skip
        s_load_dwordx2 s[76:77], s[0:1], 120
        s_waitcnt lgkmcnt(0)
        v_mov_b32 v{tmpv}, 0
        ''')
        for i in range(1, min(n, 17)):
            A(f's_sub_u32 s78, s{80 + i}, s80\n v_mov_b32 v{tmpv + 1}, s78')
            A(f'global_store_dword v{tmpv}, v{tmpv + 1}, s[76:77] offset:{4 * (i - 1)}')
        A('dbg_skip:')
        return
    A(f'''
    s_mov_b64 exec, 1
    s_lshl_b32 s78, s2, 9
    s_lshl_b32 s79, s{wave_sgpr}, 7
    s_add_u32 s78, s78, s79
    s_add_u32 s78, s78, {WS_STAMP + kid * 0x40000}
    v_mov_b32 v{tmpv}, s78
    ''')
    for i in range(n):
        A(f'v_mov_b32 v{tmpv + 1}, s{80 + i}')
        A(f'global_store_dword v{tmpv}, v{tmpv + 1}, s[{wsreg}:{wsreg + 1}] offset:{4 * i}')

class VM:
    def __init__(self): self.n = 0; self.marks = {}
    def issue(self, k=1): self.n += k
    def mark(self, name): self.marks[name] = self.n
    def wait(self, A, name):
        N = self.n - self.marks[name]
        assert N <= 63, N
        A(f's_waitcnt vmcnt({N})')
import struct
f2u = lambda x: struct.unpack('<I', struct.pack('<f', float(x)))[0]
GC1 = -2.0 * 0.7978845608028654 * 1.4426950408889634
GC2 = GC1 * 0.044715

WS_TAG = 0x0000000
WS_GR  = 0x0008000
WS_F2  = 0x0010000
WS_F3  = 0x0014000
SPIN_MAX = 200000

def interleave(A, main, fillers, first=0, step=None, last_frac=1.0):
    items = main.items
    n = sum(1 for k, _ in items if k == 'i')
    if not fillers:
        A.items.extend(items); return
    if step is None: step = max(1, int((n * last_frac - first) // len(fillers)))
    fi = 0; cnt = 0; cond = False
    for it in items:
        A.items.append(it)
        if it[0] == 'l': cond = False
        if it[0] == 'i':
            cnt += 1
            if it[1].op.startswith(('s_cbranch', 's_cmp')): cond = True
            if not cond and fi < len(fillers) and cnt >= first + fi * step + 1 and cnt > first:
                A(fillers[fi]); fi += 1
    while fi < len(fillers):
        A(fillers[fi]); fi += 1
WS_FW  = 0x0018000
WS_PS  = 0x0020000
```

```python
from common import *
ABL = lambda x: x in os.environ.get('ABL', '').split(',')
ENV = lambda k, d: type(d)(os.environ.get(k, d))

L_XY = 0; WSZ = 14416; PITCH = 272; YOFF = 21 * PITCH
L_T = 4 * WSZ; TSZ = 2944
L_W2 = 68928
UP = 114688
L_XI = UP
L_RED = UP
L_U = UP + 16384; USZ = 4608
L_R = L_U + 2 * USZ; RSZ = 4160
L_CSX = UP
L_MISC = UP + 4096
W1S = 0
HS = UP
LDS_TOTAL = 163840
WS_XT2 = WS_KR
H1LD = ' sc1'

def poll_loop(A, name, loads, check):
    A(f's_mov_b32 s79, {SPIN_MAX}')
    A(f'{name}:')
    A(loads)
    A('s_waitcnt vmcnt(0)')
    A(check)
    A(f's_cbranch_scc1 {name}_ok')
    A(f's_sub_u32 s79, s79, 1\n s_cmp_eq_u32 s79, 0\n s_cbranch_scc0 {name}\n {name}_ok:')

def lane0_store(A, text):
    A('s_mov_b64 s[52:53], exec\n s_mov_b64 exec, 1\n' + text + '\n s_mov_b64 exec, s[52:53]')


def const_table():
    import numpy as np
    def bf16_round_idx(l):
        u = np.float32(l).view(np.uint32)
        r = (int(u) + 0x7fff + ((int(u) >> 16) & 1)) >> 16
        return r
    rows = []
    for t in range(256):
        lane = t & 63; w = t >> 6; n = lane & 15; g = lane >> 4
        ex = []
        for e in range(9):
            l = 2047 - 8 * t - e
            c = 0 if l < 0 else (l if l < 128 else bf16_round_idx(l) - 0x4280)
            ex.append(L_T + 4 * (c + (c >> 5)))
        sc = []
        j = 16 * (w & 1) + n; base = L_T + (w >> 1) * TSZ
        for rt in range(2):
            for r in range(4):
                if rt == 0:
                    c = (4 * g + r + 8 * j) if g < 2 else ((256 + r + 4 * j) if g == 2 else (384 + 64 * (r >> 1) + (r & 1) + 2 * j))
                else:
                    c = (512 + 32 * r + j) if g == 0 else ((640 + j) if (g == 1 and r == 0) else 672 + j)
                sc.append(base + 4 * (c + (c >> 5)))
        h = ex + [0] + sc
        assert max(h) < 65536
        d = [h[2 * i] | (h[2 * i + 1] << 16) for i in range(9)]
        w1 = []
        for jj in range(7):
            q = 64 * jj + lane
            w1.append((q // 14) * 3584 + (q % 14) * 16)
        rows.append(d + w1)
    return rows

def phase_a(A, N):
    A(f'''
    s_lshl_b32 s40, s2, 3
    s_lshl_b32 s41, s22, 1
    s_add_u32 s40, s40, s41
    s_lshl_b32 s41, s40, 10
    v_lshlrev_b32 v5, 4, v2
    v_add_u32 v6, s41, v5
    s_lshl_b32 s42, s26, 6
    s_lshl_b32 s43, s22, 4
    s_add_u32 s42, s42, s43
    v_lshrrev_b32 v8, 3, v2
    v_add_u32 v8, s42, v8
    v_lshlrev_b32 v8, 10, v8
    v_and_b32 v7, 7, v2
    v_lshlrev_b32 v7, 4, v7
    s_lshl_b32 s42, s23, 7
    v_add3_u32 v24, v8, v7, s42
    v_add_u32 v25, 8192, v24
    s_lshl_b32 s43, s22, 11
    s_add_u32 s43, s43, {L_XI}
    s_lshr_b32 s42, s22, 1
    s_lshl_b32 s44, s27, 1
    s_add_u32 s44, s44, s42
    s_and_b32 s45, s22, 1
    s_lshl_b32 s45, s45, 6
    s_lshl_b32 s46, s44, 7
    s_add_u32 s46, s46, s45
    v_add_u32 v26, s46, v2
    v_lshlrev_b32 v26, 1, v26
    s_lshl_b32 s46, s44, 1
    v_mov_b32 v27, s46
    s_mov_b32 m0, s43
    s_waitcnt lgkmcnt(0)
    ''')
    stamp(A, '0k')
    A(f'''
    global_load_dwordx4 v[8:11], v6, s[4:5]
    global_load_dwordx4 v[12:15], v6, s[4:5] offset:1024
    global_load_lds_dwordx4 v24, s[4:5]
    s_add_u32 m0, s43, 1024
    s_load_dword s38, s[20:21], {WS_TAG}
    global_load_lds_dwordx4 v25, s[4:5]
    global_load_ushort v16, v26, s[6:7]
    global_load_ushort v17, v26, s[8:9]
    global_load_ushort v18, v26, s[10:11]
    global_load_ushort v19, v26, s[12:13]
    global_load_ushort v20, v26, s[14:15]
    global_load_ushort v21, v26, s[16:17]
    global_load_ushort v22, v27, s[18:19]
    global_load_ushort v23, v27, s[24:25]
    s_getpc_b64 s[62:63]
    {N}_pc:
    s_add_u32 s62, s62, ({N}_tbl - {N}_pc)
    s_addc_u32 s63, s63, 0
    v_lshlrev_b32 v6, 6, v0
    global_load_dwordx4 v[216:219], v6, s[62:63]
    global_load_dwordx4 v[220:223], v6, s[62:63] offset:16
    global_load_dwordx4 v[224:227], v6, s[62:63] offset:32
    global_load_dwordx4 v[228:231], v6, s[62:63] offset:48
    s_cmp_lt_u32 s26, {ENV('CWARM', 4)}
    s_cbranch_scc0 {N}_ncw
    s_getpc_b64 s[62:63]
    s_and_b32 s62, s62, 0xffffff00
    v_lshlrev_b32 v6, 7, v0
    v_min_u32 v6, ({N}_end - {N} - 1024), v6
    global_load_dword v250, v6, s[62:63]
    v_add_u32 v6, 32768, v6
    v_min_u32 v6, ({N}_end - {N} - 1024), v6
    global_load_dword v251, v6, s[62:63]
    {N}_ncw:
    ''')
    if not ABL('notlb'):
        A(f'''
        s_cmp_eq_u32 s22, 1
        s_cbranch_scc0 {N}_ntlb
        v_min_u32 v6, 9, v2
        v_lshlrev_b32 v6, 21, v6
        v_add_u32 v6, 0x1000, v6
        global_load_dword v252, v6, s[20:21]
        v_mov_b32 v6, 0
        global_load_dword v253, v6, s[36:37]
        global_load_dword v254, v6, s[28:29]
        global_load_dword v255, v6, s[32:33]
        {N}_ntlb:
        ''')
    A(f'''
    ''')
    stamp(A, 1)
    A(f'''
    v_mov_b32 v50, 0
    v_mov_b32 v51, 0
    v_mov_b32 v52, 0
    v_mov_b32 v53, 0
    v_lshlrev_b32 v55, 4, v0
    v_add_u32 v55, {L_U}, v55
    v_cmp_gt_u32 vcc, 30, v0
    s_and_saveexec_b64 s[52:53], vcc
    ds_write_b128 v55, v[50:53]
    ds_write_b128 v55, v[50:53] offset:{USZ}
    s_mov_b64 exec, s[52:53]
    v_cmp_gt_u32 vcc, 2, v0
    s_and_saveexec_b64 s[52:53], vcc
    ''')
    for k in range(4): A(f'ds_write_b128 v55, v[50:53] offset:{L_R - L_U + k * RSZ + 2 * 2064}')
    A('s_mov_b64 exec, s[52:53]')
    A(f'''
    v_bfe_u32 v50, v2, 2, 2
    v_lshl_add_u32 v51, v4, 3, v50
    v_lshlrev_b32 v51, 7, v51
    v_and_b32 v52, 3, v2
    v_lshlrev_b32 v52, 3, v52
    s_lshl_b32 s42, s22, 5
    s_add_u32 s42, s42, {L_XI}
    v_add3_u32 v51, v51, v52, s42
    s_lshl_b32 s42, s23, 6
    s_lshl_b32 s43, s22, 4
    s_add_u32 s42, s42, s43
    v_add_u32 v53, s42, v3
    v_lshlrev_b32 v53, 12, v53
    v_lshlrev_b32 v54, 4, v4
    s_lshl_b32 s42, s26, 7
    s_add_u32 s42, s42, {WS_XT2}
    v_add3_u32 v53, v53, v54, s42
    s_lshl_b32 s47, s26, 2
    s_add_u32 s47, s47, s22
    v_lshrrev_b32 v56, 3, v2
    s_lshl_b32 s48, s47, 5
    v_add_u32 v56, s48, v56
    v_lshlrev_b32 v56, 10, v56
    v_and_b32 v57, 7, v2
    v_lshlrev_b32 v57, 4, v57
    s_lshl_b32 s48, s23, 7
    v_add3_u32 v56, v56, v57, s48
    s_lshl_b32 s49, s22, 12
    s_add_u32 s49, s49, {L_W2}
    s_lshr_b32 s55, s26, 1
    ''')
    stamp(A, '1p')
    A('s_waitcnt vmcnt(12) lgkmcnt(0)')
    stamp(A, '1x')
    A('s_barrier')
    stamp(A, 2)
    A(f'''
    ds_read_b64_tr_b16 v[96:97], v51
    ds_read_b64_tr_b16 v[98:99], v51 offset:512
    ds_read_b64_tr_b16 v[100:101], v51 offset:4096
    ds_read_b64_tr_b16 v[102:103], v51 offset:4608
    s_waitcnt lgkmcnt(0)
    global_store_dwordx4 v53, v[96:99], s[20:21] sc1
    global_store_dwordx4 v53, v[100:103], s[20:21] offset:64 sc1
    ''')
    for row in range(2):
        for k in range(4):
            src = 8 + 4 * row + k
            A(f'v_lshlrev_b32 v{64 + 8 * row + 2 * k}, 16, v{src}')
            A(f'v_and_b32 v{65 + 8 * row + 2 * k}, 0xffff0000, v{src}')
    A(f's_cmp_lt_u32 s2, 112\n s_cbranch_scc0 {N}_nw2')
    for i in range(4):
        A(f's_add_u32 m0, s49, {1024 * i}\n v_add_u32 v57, {8192 * i}, v56\n global_load_lds_dwordx4 v57, s[32:33]')
    A(f'{N}_nw2:')
    for row in range(2):
        b = 64 + 8 * row
        A(f'v_add_f32 v{80 + row}, v{b}, v{b + 1}')
        A(f'v_mul_f32 v{84 + row}, v{b}, v{b}')
        A(f'v_add_f32 v{82 + row}, v{b + 2}, v{b + 3}')
        A(f'v_mul_f32 v{86 + row}, v{b + 1}, v{b + 1}')
    for k in range(2, 8, 2):
        for row in range(2):
            b = 64 + 8 * row
            A(f'v_fmac_f32 v{84 + row}, v{b + k}, v{b + k}')
            A(f'v_fmac_f32 v{86 + row}, v{b + k + 1}, v{b + k + 1}')
            if k == 2: A(f'v_add_f32 v{80 + row}, v{80 + row}, v{b + 4}\n v_add_f32 v{82 + row}, v{82 + row}, v{b + 5}')
            if k == 4: A(f'v_add_f32 v{80 + row}, v{80 + row}, v{b + 6}\n v_add_f32 v{82 + row}, v{82 + row}, v{b + 7}')
    for row in range(2):
        A(f'v_add_f32 v{80 + row}, v{80 + row}, v{82 + row}')
        A(f'v_add_f32 v{84 + row}, v{84 + row}, v{86 + row}')
    allsum64(A, [80, 81, 84, 85], [82, 83, 86, 87])
    for row in range(2):
        A(f'v_mul_f32 v{80 + row}, 0x3b000000, v{80 + row}')
        A(f'v_mul_f32 v{84 + row}, 0x3b000000, v{84 + row}')
    for row in range(2): A(f'v_fma_f32 v{84 + row}, -v{80 + row}, v{80 + row}, v{84 + row}')
    for row in range(2): A(f'v_max_f32 v{84 + row}, 0, v{84 + row}')
    for row in range(2): A(f'v_cvt_pk_bf16_f32 v{84 + row}, v{84 + row}, v{84 + row}')
    for row in range(2): A(f'v_lshlrev_b32 v{84 + row}, 16, v{84 + row}')
    for row in range(2): A(f'v_add_f32 v{84 + row}, {EPS:#x}, v{84 + row}')
    for row in range(2): A(f'v_cvt_pk_bf16_f32 v{84 + row}, v{84 + row}, v{84 + row}')
    for row in range(2): A(f'v_lshlrev_b32 v{84 + row}, 16, v{84 + row}')
    for row in range(2): A(f'v_sqrt_f32 v{84 + row}, v{84 + row}')
    A(f'''
    s_mul_i32 s38, s38, 0x9e3779b1
    s_add_u32 s38, s38, 0x7f4a7c15
    v_cvt_pk_bf16_f32 v88, v80, v84
    v_cvt_pk_bf16_f32 v90, v81, v85
    v_mov_b32 v89, s38
    v_mov_b32 v91, s38
    s_lshl_b32 s50, s40, 3
    s_add_u32 s50, s50, {WS_GR}
    v_mov_b32 v92, s50
    s_cmp_lt_u32 s2, 112
    s_cbranch_scc1 {N}_wq1
    s_waitcnt vmcnt(2)
    s_branch {N}_wq2
    {N}_wq1:
    s_waitcnt vmcnt(6)
    {N}_wq2:
    ''')
    if ABL('w1wait'):
        A('s_waitcnt vmcnt(0)')
        stamp(A, '3w')
    for e in range(9):
        src = 216 + e // 2
        A(f'v_and_b32 v{24 + e}, 0xffff, v{src}' if e % 2 == 0 else f'v_lshrrev_b32 v{24 + e}, 16, v{src}')
    for k in range(8):
        src = 221 + k // 2
        A(f'v_and_b32 v{40 + k}, 0xffff, v{src}' if k % 2 == 0 else f'v_lshrrev_b32 v{40 + k}, 16, v{src}')
    A('s_mul_i32 s56, s55, 224')
    for j in range(7): A(f'v_add_u32 v{232 + j}, s56, v{225 + j}')
    A(f's_add_u32 s57, s22, 12\n s_mul_i32 s56, s57, {32 * 3584}\n s_mul_i32 s57, s57, {32 * 224}')
    early = [f's_add_u32 m0, s57, {W1S + j * 1024}\n v_add_u32 v239, s56, v{232 + j}\n global_load_lds_dwordx4 v239, s[28:29]' for j in range(7)]
    outerA = A; A = Asm()
    for i in range(16, 24): A(f'v_lshlrev_b32 v{i}, 16, v{i}')
    A(f'v_mul_f32 v22, {LOG2E:#x}, v22\n v_exp_f32 v22, v22')
    round_bf16(A, 22, 22)
    A(f'''
    v_mul_f32 v16, v22, v16
    v_mul_f32 v17, v22, v17
    v_mul_f32 v18, v22, v18
    v_mul_f32 v19, v22, v19
    v_mul_f32 v16, {LOG2E:#x}, v16
    v_mul_f32 v17, {INV2PI:#x}, v17
    ''')
    Z1, Z2, Z4, Z8, Z32, Z256 = 56, 58, 60, 62, 64, 66
    def cm(D, X, Yr, T):
        return [f'v_pk_mul_f32 v[{T}:{T+1}], v[{X}:{X+1}], v[{Yr}:{Yr+1}] op_sel_hi:[1,0]',
                f'v_pk_fma_f32 v[{D}:{D+1}], v[{X}:{X+1}], v[{Yr}:{Yr+1}], v[{T}:{T+1}] op_sel:[1,1,0] op_sel_hi:[0,1,1] neg_lo:[1,0,0]']
    pw = [(Z1, 1), (Z8, 8), (Z32, 32), (Z256, 256)]
    for k, (d, p) in enumerate(pw):
        lit = '1.0' if p == 1 else hex(f2u(p))
        A(f'v_mul_f32 v{100 + 2 * k}, {lit}, v16\n v_mul_f32 v{101 + 2 * k}, {lit}, v17')
    for x in cm(50, 20, 18, 52): A(x)
    for k in range(4): A(f'v_exp_f32 v{100 + 2 * k}, v{100 + 2 * k}\n v_fract_f32 v{101 + 2 * k}, v{101 + 2 * k}')
    for k, (d, p) in enumerate(pw): A(f'v_cos_f32 v{d}, v{101 + 2 * k}\n v_sin_f32 v{d + 1}, v{101 + 2 * k}')
    for k, (d, p) in enumerate(pw): A(f'v_pk_mul_f32 v[{d}:{d + 1}], v[{d}:{d + 1}], v[{100 + 2 * k}:{101 + 2 * k}] op_sel_hi:[1,0]')
    A(f'''
    s_cmp_lt_u32 s2, 112
    s_cbranch_scc1 {N}_wd1
    s_waitcnt vmcnt(0)
    s_branch {N}_wd2
    {N}_wd1:
    s_waitcnt vmcnt(4)
    {N}_wd2:
    s_barrier
    ''')
    lane0_store(A, 'global_store_dwordx4 v92, v[88:91], s[20:21] sc1')
    stamp(A, 3)
    if not ABL('nomall'): A(f'''
    s_cmp_eq_u32 s22, 0
    s_cbranch_scc0 {N}_nmw0
    s_mul_i32 s45, s2, {56 * 128}
    v_min_u32 v6, 55, v2
    v_lshlrev_b32 v6, 7, v6
    v_add_u32 v6, s45, v6
    global_load_dword v250, v6, s[28:29]
    {N}_nmw0:
    s_cmp_eq_u32 s22, 1
    s_cbranch_scc0 {N}_nmw1
    v_min_u32 v6, 27, v2
    v_lshlrev_b32 v6, 7, v6
    global_load_dword v251, v6, s[30:31]
    {N}_nmw1:
    s_cmp_eq_u32 s22, 2
    s_cbranch_scc0 {N}_nmw
    v_min_u32 v6, 7, v2
    v_lshlrev_b32 v6, 7, v6
    global_load_dword v252, v6, s[34:35]
    {N}_nmw:
    ''')
    A(f'''
    s_mul_i32 s50, s22, {WSZ}
    s_add_u32 s50, s50, {L_XY}
    v_lshlrev_b32 v34, 2, v2
    v_add_u32 v34, s50, v34
    v_mov_b32 v68, 1.0
    v_mov_b32 v69, 0
    v_mov_b32 v70, v62
    v_mov_b32 v71, v63
    v_mov_b32 v84, v50
    v_mov_b32 v85, v51
    ''')
    a_, b_, c_ = cm(Z2, Z1, Z1, 52), cm(72, Z8, Z8, 76), None
    A(a_[0]); A(b_[0]); A(a_[1]); A(b_[1])
    a_, b_ = cm(Z4, Z2, Z2, 52), cm(74, 72, Z8, 76)
    A(a_[0]); A(b_[0]); A(a_[1]); A(b_[1])
    Y = [68, 70, 72, 74]; TM = [76, 78, 80, 82]
    def pX(row, reg, t): return [f'v_cvt_pk_bf16_f32 v{t}, v{reg}, v{reg + 1}', f'ds_write_b32 v34, v{t} offset:{row * PITCH}']
    def pY(row, reg, t): return [f'v_cvt_pk_bf16_f32 v{t}, v{reg}, -v{reg + 1}', f'ds_write_b32 v34, v{t} offset:{YOFF + row * PITCH}']
    sy = []
    for it in range(8):
        cv = [pY(4 * it + c, Y[c], 86 + c) for c in range(4)]
        sy += [x[0] for x in cv]
        if it < 7: sy += [cm(Y[c], Y[c], Z32, TM[c])[0] for c in range(4)]
        sy += [x[1] for x in cv]
        if it < 7: sy += [cm(Y[c], Y[c], Z32, TM[c])[1] for c in range(4)]
    sa = pX(0, 50, 90)
    for p in range(1, 8): sa += cm(50, 50, Z1, 52) + pX(p, 50, 90)
    Wc = 84; sb = []
    def wstep(row): return cm(Wc, Wc, Z256, 92) + pX(row, Wc, 91)
    def bstep(src, z, row): return cm(94, src, z, 96) + pX(row, 94, 98)
    sb += wstep(8) + bstep(Wc, Z2, 9) + bstep(94, Z2, 10) + bstep(94, Z2, 11) + wstep(12) + bstep(Wc, Z4, 13) + wstep(14) + bstep(Wc, Z4, 15)
    for row in range(16, 21): sb += wstep(row)
    iy = ia = ib = 0
    while iy < len(sy) or ia < len(sa) or ib < len(sb):
        for _ in range(2):
            if iy < len(sy): A(sy[iy]); iy += 1
        if ib < len(sb): A(sb[ib]); ib += 1
        if iy < len(sy): A(sy[iy]); iy += 1
        if ia < len(sa): A(sa[ia]); ia += 1
        elif ib < len(sb): A(sb[ib]); ib += 1
    seg = A; A = outerA
    interleave(A, seg, early, first=ENV('EARLY0', 95), last_frac=0.95)
    stamp(A, 5)
    A(f'v_lshlrev_b32 v208, 6, v0\n v_add_u32 v208, {WS_GR}, v208')
    for k in range(4): A(f'global_load_dwordx4 v[{192 + 4 * k}:{195 + 4 * k}], v208, s[20:21] offset:{16 * k} sc1')
    A(f'''
    v_mul_u32_u24 v38, {PITCH}, v3
    v_lshlrev_b32 v39, 4, v4
    v_add_u32 v38, v38, v39
    s_lshr_b32 s50, s22, 1
    s_mul_i32 s50, s50, {2 * WSZ}
    s_add_u32 s50, s50, {L_XY}
    v_add_u32 v35, s50, v38
    s_and_b32 s51, s22, 1
    s_mul_i32 s51, s51, {16 * PITCH}
    s_add_u32 s51, s51, {YOFF}
    v_add_u32 v36, s51, v35
    s_waitcnt lgkmcnt(0)
    s_barrier
    ''')
    stamp(A, '5b')
    A.auto(True)
    for ks in range(8):
        o = (ks >> 2) * WSZ + (ks & 3) * 64; b = 88 + 12 * ks
        A(f'ds_read_b128 v[{b}:{b + 3}], v36 offset:{o}')
        A(f'ds_read_b128 v[{b + 4}:{b + 7}], v35 offset:{o}')
        A(f'ds_read_b128 v[{b + 8}:{b + 11}], v35 offset:{o + 16 * PITCH}')
    for ks in range(8):
        b = 88 + 12 * ks
        for rt in range(2):
            acc = 184 + 4 * rt
            cin = '0' if ks == 0 else f'v[{acc}:{acc + 3}]'
            A(f'v_mfma_f32_16x16x32_bf16 v[{acc}:{acc + 3}], v[{b + 4 + 4 * rt}:{b + 7 + 4 * rt}], v[{b}:{b + 3}], {cin}')
    A.auto(False)
    for k in range(8): A(f'ds_write_b32 v{40 + k}, v{184 + k}')
    A('s_waitcnt lgkmcnt(0)\n s_barrier')
    stamp(A, 6)
    for ch in range(2):
        for e in range(9): A(f'ds_read_b32 v{64 + 9 * ch + e}, v{24 + e} offset:{TSZ * ch}')
    A(f'''
    v_lshlrev_b32 v54, 4, v0
    v_add_u32 v54, {L_R + 32}, v54
    v_cmp_eq_u32 vcc, 255, v0
    s_waitcnt lgkmcnt(0)
    ''')
    for ch in range(2):
        b = 64 + 9 * ch
        A(f'v_cndmask_b32_e64 v{b + 8}, v{b + 8}, 0, vcc')
        for k in range(4):
            A(f'v_cvt_pk_bf16_f32 v{104 + 8 * ch + k}, v{b + 2 * k}, v{b + 2 * k + 1}')
            A(f'v_cvt_pk_bf16_f32 v{108 + 8 * ch + k}, v{b + 2 * k + 1}, v{b + 2 * k + 2}')
        A(f'ds_write_b128 v54, v[{104 + 8 * ch}:{107 + 8 * ch}] offset:{2 * RSZ * ch}')
        A(f'ds_write_b128 v54, v[{108 + 8 * ch}:{111 + 8 * ch}] offset:{2 * RSZ * ch + RSZ}')
    stamp(A, 7)

def phase_b(A, N):
    loads = '\n'.join(f'global_load_dwordx4 v[{192 + 4 * k}:{195 + 4 * k}], v208, s[20:21] offset:{16 * k} sc1' for k in range(4))
    chk = 'v_cmp_eq_u32 vcc, s38, v193\n'
    for r in (195, 197, 199, 201, 203, 205, 207):
        chk += f'v_cmp_eq_u32 s[52:53], s38, v{r}\n s_and_b64 vcc, vcc, s[52:53]\n'
    chk += 's_cmp_eq_u64 vcc, -1'
    A('s_waitcnt vmcnt(0)')
    A(chk)
    A(f's_cbranch_scc1 {N}_p1_ok')
    poll_loop(A, f'{N}_p1', loads, chk)
    stamp(A, 8)
    A(f'''
    s_lshl_b32 s45, s27, 13
    s_add_u32 s45, s45, {WS_XT2}
    v_lshlrev_b32 v5, 4, v0
    v_add_u32 v6, s45, v5
    v_add_u32 v7, 4096, v6
    global_load_dwordx4 v[80:83], v6, s[20:21] sc1
    global_load_dwordx4 v[84:87], v7, s[20:21] sc1
    s_lshr_b32 s55, s26, 1
    s_lshr_b32 s42, s22, 1
    s_and_b32 s44, s22, 1
    ''')
    A(f'''
    s_cmp_lt_u32 s2, 112
    s_cbranch_scc0 {N}_nw2b
    v_bfe_u32 v50, v2, 2, 2
    v_and_b32 v52, 3, v2
    v_lshlrev_b32 v52, 3, v52
    v_lshl_add_u32 v50, v4, 2, v50
    v_lshlrev_b32 v50, 7, v50
    v_add3_u32 v50, v50, v52, s49
    s_mul_i32 s48, s23, {4 * 56}
    s_add_u32 s48, s48, s47
    s_lshl_b32 s48, s48, 10
    s_add_u32 s48, s48, {WS_W2P}
    v_lshlrev_b32 v53, 4, v2
    v_add_u32 v53, s48, v53
    ''')
    for i in range(4):
        A(f'ds_read_b64_tr_b16 v[{100 + 4 * i}:{101 + 4 * i}], v50 offset:{32 * i}')
        A(f'ds_read_b64_tr_b16 v[{102 + 4 * i}:{103 + 4 * i}], v50 offset:{32 * i + 2048}')
    A('s_waitcnt lgkmcnt(0)')
    for i in range(4):
        A(f'v_add_u32 v54, {56 * 1024 * i}, v53')
        A(f'global_store_dwordx4 v54, v[{100 + 4 * i}:{103 + 4 * i}], s[20:21] sc1')
    if ABL('w2drain'): A('s_waitcnt vmcnt(0)')
    A(f'{N}_nw2b:')
    stamp(A, '8w')
    A(f's_mul_i32 s56, s22, {32 * 3584}\n s_mul_i32 s57, s22, {32 * 224}')
    for j in range(7): A(f'v_add_u32 v{232 + j}, s56, v{232 + j}')
    w1f = [f's_add_u32 m0, s57, {W1S + b * 4 * 32 * 224 + j * 1024}\n global_load_lds_dwordx4 v{232 + j}, s[28:29]' + (f'\n v_add_u32 v{232 + j}, {4 * 32 * 3584}, v{232 + j}' if b < 2 else '') for b in range(3) for j in range(7)]
    NW1U = ENV('NW1U', 0)
    for x in w1f[:NW1U]: A(x)
    for e in range(8):
        p = 64 + 2 * e; q = 192 + 2 * e
        A(f'v_and_b32 v{p + 1}, 0xffff0000, v{q}\n v_lshlrev_b32 v{p}, 16, v{q}\n v_rcp_f32 v{p + 1}, v{p + 1}')
    A(f'''
    v_lshlrev_b32 v56, 5, v3
    v_lshlrev_b32 v57, 4, v4
    v_add_u32 v56, v56, v57
    s_lshl_b32 s45, s44, 8
    s_mul_i32 s46, s42, {USZ}
    s_sub_u32 s46, s46, s45
    s_add_u32 s46, s46, {L_U + 448}
    v_add_u32 v60, s46, v56
    v_lshrrev_b32 v58, 1, v3
    v_lshlrev_b32 v58, 2, v58
    v_sub_u32 v58, v57, v58
    v_and_b32 v59, 1, v3
    v_sub_u32 v59, 1, v59
    v_mul_u32_u24 v59, {RSZ}, v59
    v_add_u32 v58, v58, v59
    s_mul_i32 s46, s42, {2 * RSZ}
    s_sub_u32 s46, s46, s45
    s_add_u32 s46, s46, {L_R + 4092}
    v_add_u32 v58, s46, v58
    ''')
    for k in range(4): A(f'v_subrev_u32 v{12 + k}, {512 * (2 * k + 1)}, v58')
    A(f's_cmp_lt_u32 s2, 112\n s_cbranch_scc1 {N}_wx1\n s_waitcnt vmcnt({NW1U})\n s_branch {N}_wx2\n {N}_wx1:\n s_waitcnt vmcnt({4 + NW1U})\n {N}_wx2:')
    stamp(A, '8b')
    for ch in range(2):
        b = 88 + 8 * ch; src = 80 + 4 * ch
        for k in range(4):
            A(f'v_lshlrev_b32 v{b + 2 * k}, 16, v{src + k}')
            A(f'v_and_b32 v{b + 2 * k + 1}, 0xffff0000, v{src + k}')
    for e in range(8):
        for ch in range(2): A(f'v_sub_f32 v{88 + 8 * ch + e}, v{88 + 8 * ch + e}, v{64 + 2 * e}')
    for ch in range(2):
        for k in range(4): A(f'v_cvt_pk_bf16_f32 v{104 + 4 * ch + k}, v{88 + 8 * ch + 2 * k}, v{89 + 8 * ch + 2 * k}')
    for ch in range(2):
        for k in range(4):
            A(f'v_lshlrev_b32 v{88 + 8 * ch + 2 * k}, 16, v{104 + 4 * ch + k}')
            A(f'v_and_b32 v{89 + 8 * ch + 2 * k}, 0xffff0000, v{104 + 4 * ch + k}')
    for e in range(8):
        for ch in range(2): A(f'v_mul_f32 v{88 + 8 * ch + e}, v{88 + 8 * ch + e}, v{65 + 2 * e}')
    for ch in range(2):
        for k in range(4): A(f'v_cvt_pk_bf16_f32 v{104 + 4 * ch + k}, v{88 + 8 * ch + 2 * k}, v{89 + 8 * ch + 2 * k}')
    A(f'''
    v_add_u32 v5, {L_U + 480}, v5
    ds_write_b128 v5, v[104:107]
    ds_write_b128 v5, v[108:111] offset:{USZ}
    s_waitcnt lgkmcnt(0)
    s_barrier
    ''')
    stamp(A, 9)
    A(f'''
    v_lshlrev_b32 v56, 5, v3
    v_lshlrev_b32 v57, 3, v4
    v_add_u32 v56, v56, v57
    s_lshl_b32 s45, s44, 11
    s_lshl_b32 s46, s27, 1
    s_add_u32 s46, s46, s42
    s_lshl_b32 s46, s46, 12
    s_add_u32 s46, s46, s45
    s_add_u32 s46, s46, {WS_XT2}
    v_add_u32 v59, s46, v56
    ''')
    for t in range(4): A(f'global_load_dwordx2 v[{240 + 2 * t}:{241 + 2 * t}], v59, s[20:21] offset:{512 * t} sc1')
    A(f'''
    s_and_b32 s59, s26, 7
    s_mul_i32 s45, s59, {4 * 56}
    s_mul_i32 s46, s22, 14
    s_add_u32 s45, s45, s46
    s_lshl_b32 s45, s45, 10
    s_add_u32 s45, s45, {WS_W2P}
    v_lshlrev_b32 v6, 4, v2
    v_add_u32 v8, s45, v6
    ''')
    G = [72, 136]; F = [104, 168]; ACC = 200
    def loads_(set_):
        Gs = [f'ds_read_b128 v[{G[set_] + 4 * t}:{G[set_] + 4 * t + 3}], v60 offset:{512 * t}' for t in range(8)]
        Fs = []
        for j in range(8):
            k = j >> 1; o = 0 if (j & 1) else 128
            Fs.append([f'ds_read2_b32 v[{F[set_] + 4 * j}:{F[set_] + 4 * j + 1}], v{12 + k} offset0:{o} offset1:{o + 1}',
                       f'ds_read2_b32 v[{F[set_] + 4 * j + 2}:{F[set_] + 4 * j + 3}], v{12 + k} offset0:{o + 2} offset1:{o + 3}'])
        return Fs[0] + Gs + [x for f in Fs[1:] for x in f]
    adv = ['v_subrev_u32 v60, 64, v60'] + [f'v_subrev_u32 v{12 + k}, 64, v{12 + k}' for k in range(4)]
    def mfmas(set_, first):
        out = []
        for j in range(8):
            for t in range(8 - j):
                acc = ACC + 4 * (t + j)
                cin = '0' if (first and j == 0) else f'v[{acc}:{acc+3}]'
                out.append(f'v_mfma_f32_16x16x32_bf16 v[{acc}:{acc+3}], v[{F[set_] + 4 * j}:{F[set_] + 4 * j + 3}], v[{G[set_] + 4 * t}:{G[set_] + 4 * t + 3}], {cin}')
        return out
    W2W = ENV('W2W', 0)
    A(f's_lshl_b32 s45, s2, 6\n s_lshl_b32 s46, s22, 2\n s_add_u32 s45, s45, s46\n s_add_u32 s45, s45, {WS_FW}\n v_mov_b32 v10, s45\n v_mov_b32 v11, s38')
    A.auto(True)
    for x in loads_(0) + adv: A(x)
    wi = NW1U
    NW1 = ENV('NW1', 21); W2B = ENV('W2B', 0); W2BSTEP = ENV('W2BSTEP', 7); w2b = 0
    nvm_loop = 0
    for it in range(4):
        if it == 1 and W2W:
            A(f's_waitcnt vmcnt({4 + (wi - NW1U)})\n s_mov_b64 exec, 1\n global_store_dword v10, v11, s[20:21] sc1\n s_mov_b64 exec, -1')
        fill = (loads_((it + 1) & 1) + adv) if it < 3 else []
        ms = mfmas(it & 1, it == 0)
        fi = 0
        for i, m in enumerate(ms):
            A(m)
            if fi < len(fill): A(fill[fi]); fi += 1
            if i % ENV('W1STEP', 6) == ENV('W1STEP', 6) - 1 and wi < NW1: A(w1f[wi]); wi += 1
            if i % W2BSTEP == 2 and w2b < W2B: A(w2txt(w2b)); w2b += 1
        assert fi == len(fill)
    A.auto(False)
    assert w2b == W2B, w2b
    global W2DONE_B
    W2DONE_B = w2b
    stamp(A, 10)
    for x in w1f[wi:]: A(x)
    if W2W:
        A(f'''
        v_lshlrev_b32 v66, 6, v2
        v_add_u32 v66, {WS_FW}, v66
        v_add_u32 v67, 64, v2
        v_min_u32 v67, 111, v67
        v_lshlrev_b32 v67, 6, v67
        v_add_u32 v67, {WS_FW}, v67
        global_load_dwordx4 v[24:27], v66, s[20:21] sc1
        global_load_dwordx4 v[28:31], v67, s[20:21] sc1
        ''')
    A(f'''
    s_lshl_b32 s45, s22, 12
    s_add_u32 s45, s45, {L_RED}
    v_lshlrev_b32 v68, 4, v2
    v_add_u32 v69, s45, v68
    s_xor_b32 s46, s22, 1
    s_lshl_b32 s46, s46, 12
    s_add_u32 s46, s46, {L_RED}
    v_add_u32 v70, s46, v68
    s_cmp_eq_u32 s44, 0
    s_cbranch_scc0 {N}_odd
    ''')
    for t in range(4): A(f'ds_write_b128 v69, v[{ACC + 16 + 4 * t}:{ACC + 16 + 4 * t + 3}] offset:{1024 * t}')
    A(f's_branch {N}_join\n {N}_odd:')
    for t in range(4): A(f'ds_write_b128 v69, v[{ACC + 4 * t}:{ACC + 4 * t + 3}] offset:{1024 * t}')
    for t in range(0, 16, 2): A(f'v_pk_mul_f32 v[{ACC + t}:{ACC + t + 1}], v[{ACC + 16 + t}:{ACC + 17 + t}], 1.0 op_sel_hi:[1,0]')
    A(f'{N}_join:')
    A(f'''
    s_lshl_b32 s45, s44, 11
    s_mul_i32 s46, s42, {USZ}
    s_add_u32 s46, s46, s45
    s_add_u32 s46, s46, {L_U + 480}
    v_add_u32 v57, s46, v56
    ''')
    for t in range(4): A(f'ds_read_b64 v[{88 + 2 * t}:{89 + 2 * t}], v57 offset:{512 * t}')
    A(f'''
    s_lshl_b32 s46, s27, 1
    s_add_u32 s46, s46, s42
    s_lshl_b32 s46, s46, 6
    s_lshl_b32 s47, s44, 20
    s_add_u32 s46, s46, s47
    s_add_u32 s46, s46, {WS_HT}
    v_lshrrev_b32 v58, 1, v3
    v_lshlrev_b32 v58, 15, v58
    v_and_b32 v55, 1, v3
    v_lshlrev_b32 v55, 5, v55
    v_lshlrev_b32 v54, 3, v4
    v_add3_u32 v58, v58, v55, v54
    v_add_u32 v58, s46, v58
    s_waitcnt lgkmcnt(0)
    s_barrier
    ''')
    for t in range(4): A(f'ds_read_b128 v[{72 + 4 * t}:{72 + 4 * t + 3}], v70 offset:{1024 * t}')
    for t in range(4):
        for pr in range(2):
            u = 88 + 2 * t + pr; d = 112 + 4 * t + 2 * pr
            A(f'v_lshlrev_b32 v{d}, 16, v{u}\n v_and_b32 v{d + 1}, 0xffff0000, v{u}')
    for k in range(8): A(f'v_pk_mul_f32 v[{112 + 2 * k}:{113 + 2 * k}], v[{112 + 2 * k}:{113 + 2 * k}], v[22:23] op_sel:[0,1] op_sel_hi:[1,1]')
    for k in range(8): A(f'v_cvt_pk_bf16_f32 v{128 + k}, v{112 + 2 * k}, v{113 + 2 * k}')
    for k in range(8): A(f'v_lshlrev_b32 v{112 + 2 * k}, 16, v{128 + k}\n v_and_b32 v{113 + 2 * k}, 0xffff0000, v{128 + k}')
    A('s_waitcnt lgkmcnt(0)')
    for k in range(8): A(f'v_pk_add_f32 v[{ACC + 2 * k}:{ACC + 2 * k + 1}], v[{ACC + 2 * k}:{ACC + 2 * k + 1}], v[{72 + 2 * k}:{73 + 2 * k}]')
    for k in range(8): A(f'v_cvt_pk_bf16_f32 v{128 + k}, v{ACC + 2 * k}, v{ACC + 2 * k + 1}')
    for k in range(8): A(f'v_lshlrev_b32 v{ACC + 2 * k}, 16, v{128 + k}\n v_and_b32 v{ACC + 2 * k + 1}, 0xffff0000, v{128 + k}')
    for k in range(8): A(f'v_pk_add_f32 v[{ACC + 2 * k}:{ACC + 2 * k + 1}], v[{ACC + 2 * k}:{ACC + 2 * k + 1}], v[{112 + 2 * k}:{113 + 2 * k}]')
    for k in range(8): A(f'v_cvt_pk_bf16_f32 v{128 + k}, v{ACC + 2 * k}, v{ACC + 2 * k + 1}')
    for k in range(8): A(f'v_lshlrev_b32 v{ACC + 2 * k}, 16, v{128 + k}\n v_and_b32 v{ACC + 2 * k + 1}, 0xffff0000, v{128 + k}')
    A(f's_waitcnt vmcnt({21 - NW1U + w2b + (2 if W2W else 0)})')
    for k in range(8): A(f'v_lshlrev_b32 v{112 + 2 * k}, 16, v{240 + k}\n v_and_b32 v{113 + 2 * k}, 0xffff0000, v{240 + k}')
    for k in range(8): A(f'v_pk_add_f32 v[{ACC + 2 * k}:{ACC + 2 * k + 1}], v[{ACC + 2 * k}:{ACC + 2 * k + 1}], v[{112 + 2 * k}:{113 + 2 * k}]')
    if ABL('hx2'):
        for t in range(4):
            for pr in range(2): A(f'v_cvt_pk_bf16_f32 v{128 + 2 * t + pr}, v{ACC + 4 * t + 2 * pr}, v{ACC + 4 * t + 2 * pr + 1}')
            A(f'global_store_dwordx2 v58, v[{128 + 2 * t}:{129 + 2 * t}], s[20:21] sc1')
            if t < 3: A('v_add_u32 v58, 0x40000, v58')
    else:
        for t in range(4):
            for pr in range(2): A(f'v_cvt_pk_bf16_f32 v{128 + 2 * t + pr}, v{ACC + 4 * t + 2 * pr}, v{ACC + 4 * t + 2 * pr + 1}')
            A(f'ds_write_b64 v57, v[{128 + 2 * t}:{129 + 2 * t}] offset:{512 * t}')
        A(f'''
        v_lshrrev_b32 v54, 3, v2
        s_lshl_b32 s45, s22, 4
        v_add_u32 v54, s45, v54
        v_bfe_u32 v55, v2, 2, 1
        v_mul_u32_u24 v55, {USZ}, v55
        v_and_b32 v58, 3, v2
        v_lshlrev_b32 v58, 4, v58
        v_lshlrev_b32 v56, 6, v54
        v_add3_u32 v56, v56, v55, v58
        v_add_u32 v56, {L_U + 480}, v56
        v_lshlrev_b32 v54, 15, v54
        v_and_b32 v58, 7, v2
        v_lshlrev_b32 v58, 4, v58
        s_lshl_b32 s45, s27, 7
        s_add_u32 s45, s45, {WS_HT}
        v_add3_u32 v58, v54, v58, s45
        v_add_u32 v59, {8 * 32768}, v58
        s_waitcnt lgkmcnt(0)
        s_barrier
        ds_read_b128 v[128:131], v56
        ds_read_b128 v[132:135], v56 offset:512
        s_waitcnt lgkmcnt(1)
        global_store_dwordx4 v58, v[128:131], s[20:21] sc1
        s_waitcnt lgkmcnt(0)
        global_store_dwordx4 v59, v[132:135], s[20:21] sc1
        ''')
    stamp(A, '10a')
    A(f'''
    s_waitcnt vmcnt(0)
    s_barrier
    s_cmp_eq_u32 s22, 0
    s_cbranch_scc0 {N}_nf2
    s_lshl_b32 s45, s2, 6
    s_add_u32 s45, s45, {WS_F2}
    v_mov_b32 v5, s45
    v_mov_b32 v6, s38
    ''')
    lane0_store(A, f'global_store_dword v5, v6, s[20:21] sc1\n s_cmp_eq_u32 s2, 0\n s_cbranch_scc0 {N}_nf2b\n v_mov_b32 v5, {WS_TAG}\n global_store_dword v5, v6, s[20:21] sc1\n {N}_nf2b:')
    A(f'{N}_nf2:')
    stamp(A, 11)
    A('v_lshlrev_b32 v5, 4, v2')
    A(f's_cmp_eq_u32 s22, 0\n s_cbranch_scc0 {N}_np2a\n v_lshlrev_b32 v9, 6, v2\n v_add_u32 v9, {WS_F2}, v9\n v_add_u32 v10, 4096, v9\n v_add_u32 v11, 8192, v9\n v_add_u32 v6, 12288, v9')
    for k, r in enumerate((9, 10, 11, 6)): A(f'global_load_dword v{176 + k}, v{r}, s[20:21] sc1')
    A(f'{N}_np2a:')
    for i in range(4): A(f'v_add_u32 v{252 + i}, {i * 56 * 1024}, v8')
    A('s_mov_b32 s65, 0')
    if W2W:
        A('v_cmp_eq_u32 vcc, s38, v24')
        for r in range(25, 32): A(f'v_cmp_eq_u32 s[52:53], s38, v{r}\n s_and_b64 vcc, vcc, s[52:53]')
        A(f's_cmp_eq_u64 vcc, -1\n s_cbranch_scc0 {N}_nearly\n s_mov_b32 s65, 1')
        for k in range(W2W): A(w2txt(k))
        A(f'{N}_nearly:')
    global W2WIN
    W2WIN = W2W
    A(f'''
    v_bfe_u32 v14, v2, 2, 2
    v_lshl_add_u32 v14, v4, 2, v14
    v_mul_u32_u24 v14, 224, v14
    v_and_b32 v15, 3, v2
    v_lshlrev_b32 v15, 3, v15
    v_add_u32 v14, v14, v15
    s_lshl_b32 s45, s22, 6
    s_min_u32 s46, s45, 160
    s_min_u32 s45, s45, 192
    s_add_u32 s46, s46, 32
    v_add_u32 v12, s45, v14
    v_add_u32 v13, s46, v14
    v_add_u32 v16, {8 * 7168}, v12
    v_add_u32 v17, {8 * 7168}, v13
    v_mov_b32 v18, 0x3f803f80
    v_mov_b32 v19, 0x3f803f80
    v_mov_b32 v20, 0x3f803f80
    v_mov_b32 v21, 0x3f803f80
    ''')
    A.auto(True)
    NB = 6
    def cs_reads(s_):
        out = []
        for t in range(2):
            b = 24 + 8 * (s_ % NB) + 4 * t
            base = (12 + t) if s_ < 8 else (16 + t)
            out.append(f'ds_read_b64_tr_b16 v[{b}:{b + 1}], v{base} offset:{7168 * (s_ % 8)}')
            out.append(f'ds_read_b64_tr_b16 v[{b + 2}:{b + 3}], v{base} offset:{7168 * (s_ % 8) + 3584}')
        return out
    for s_ in range(NB - 2):
        for x in cs_reads(s_): A(x)
    for s_ in range(16):
        if s_ + NB - 2 < 16:
            for x in cs_reads(s_ + NB - 2): A(x)
        for t in range(2):
            b = 24 + 8 * (s_ % NB) + 4 * t; acc = 140 + 8 * (s_ & 1) + 4 * t
            cin = '0' if s_ < 2 else f'v[{acc}:{acc+3}]'
            A(f'v_mfma_f32_16x16x32_bf16 v[{acc}:{acc+3}], v[{b}:{b+3}], v[18:21], {cin}')
    A.auto(False)
    for k in range(0, 8, 2): A(f'v_pk_add_f32 v[{140 + k}:{141 + k}], v[{140 + k}:{141 + k}], v[{148 + k}:{149 + k}]')
    stamp(A, '11a')
    A(f'''
    s_lshl_b32 s45, s22, 7
    s_add_u32 s45, s45, {L_CSX}
    v_lshlrev_b32 v13, 4, v4
    v_add_u32 v13, s45, v13
    v_cmp_eq_u32 vcc, 0, v3
    s_and_saveexec_b64 s[52:53], vcc
    ds_write_b128 v13, v[140:143]
    ds_write_b128 v13, v[144:147] offset:64
    s_mov_b64 exec, s[52:53]
    s_mul_i32 s45, s55, 112
    v_lshlrev_b32 v10, 2, v4
    v_add_u32 v10, s45, v10
    v_lshlrev_b32 v10, 1, v10
    ''')
    for i in range(7): A(f'global_load_dwordx2 v[{228 + 2 * i}:{229 + 2 * i}], v10, s[30:31] offset:{32 * i}')
    A(f'''
    s_waitcnt lgkmcnt(0)
    s_barrier
    v_lshlrev_b32 v13, 4, v4
    v_add_u32 v13, {L_CSX}, v13
    ''')
    CS = 200
    for ft in range(7): A(f'ds_read_b128 v[{CS + 4 * ft}:{CS + 4 * ft + 3}], v13 offset:{64 * ft}')
    stamp(A, '11b')
    A(f's_cmp_eq_u32 s22, 0\n s_cbranch_scc0 {N}_np2')
    A(f'v_lshlrev_b32 v9, 6, v2\n v_add_u32 v9, {WS_F2}, v9\n v_add_u32 v10, 4096, v9\n v_add_u32 v11, 8192, v9\n v_add_u32 v12, 12288, v9')
    A(f's_mov_b32 s79, {SPIN_MAX}\n s_cmp_eq_u32 s65, 1\n s_cbranch_scc1 {N}_p2w\n s_waitcnt vmcnt(7)\n s_branch {N}_p2\n {N}_p2w:\n s_waitcnt vmcnt({7 + W2W})\n {N}_p2:')
    for k in range(4): A(f'v_cmp_ne_u32 s[{66 + 2 * k}:{67 + 2 * k}], s38, v{176 + k}')
    A('s_or_b64 s[52:53], s[66:67], s[68:69]\n s_or_b64 vcc, s[70:71], s[72:73]\n s_or_b64 vcc, vcc, s[52:53]\n s_cmp_eq_u64 vcc, 0')
    A(f's_cbranch_scc1 {N}_p2_ok')
    for k in range(4):
        A(f's_mov_b64 exec, s[{66 + 2 * k}:{67 + 2 * k}]\n s_cbranch_execz {N}_p2s{k}\n global_load_dword v{176 + k}, v{9 + k}, s[20:21] sc1\n {N}_p2s{k}:')
    A(f's_mov_b64 exec, -1\n s_waitcnt vmcnt(0)\n s_sub_u32 s79, s79, 1\n s_cmp_eq_u32 s79, 0\n s_cbranch_scc0 {N}_p2\n {N}_p2_ok:\n {N}_np2:')
    A('s_waitcnt lgkmcnt(0)\n s_barrier')
    stamp(A, 12)

def w2txt(k):
    s_, i = k // 4, k % 4
    t = f'global_load_dwordx4 a[{16 * s_ + 4 * i}:{16 * s_ + 4 * i + 3}], v{252 + i}, s[20:21] offset:{(s_ % 4) * 1024} sc1'
    if s_ % 4 == 3: t += f'\n v_add_u32 v{252 + i}, 4096, v{252 + i}'
    return t

def RES(ft, m): return 168 + 16 * m + 2 * ft

def gelu_block(A, N, tag, sc, fillers):
    ACC = 96
    seg = Asm()
    for ft in range(7):
        seg(f'''
        v_lshlrev_b32 v68, 16, v{228 + 2 * ft}
        v_and_b32 v69, 0xffff0000, v{228 + 2 * ft}
        v_lshlrev_b32 v70, 16, v{229 + 2 * ft}
        v_and_b32 v71, 0xffff0000, v{229 + 2 * ft}
        ''')
        cs = 200 + 4 * ft
        P2 = [(m, p) for m in range(2) for p in range(2)]
        for m, p in P2:
            ab = 60 + 2 * m; T = 72 + 4 * m + 2 * p
            seg(f'v_pk_fma_f32 v[{T}:{T + 1}], v[{cs + 2 * p}:{cs + 2 * p + 1}], v[{ab}:{ab + 1}], v[{68 + 2 * p}:{69 + 2 * p}] op_sel:[0,1,0] op_sel_hi:[1,1,1]')
        for m, p in P2:
            x = ACC + 4 * (2 * ft + m) + 2 * p; ab = 60 + 2 * m; T = 72 + 4 * m + 2 * p
            seg(f'v_pk_fma_f32 v[{x}:{x + 1}], v[{x}:{x + 1}], v[{ab}:{ab + 1}], v[{T}:{T + 1}] op_sel:[0,0,0] op_sel_hi:[1,0,1]')
        for m, p in P2:
            x = ACC + 4 * (2 * ft + m) + 2 * p; T = 72 + 4 * m + 2 * p
            seg(f'v_pk_mul_f32 v[{T}:{T + 1}], v[{x}:{x + 1}], v[{x}:{x + 1}]')
        for m, p in P2:
            T = 72 + 4 * m + 2 * p
            seg(f'v_pk_fma_f32 v[{T}:{T + 1}], v[{T}:{T + 1}], v[66:67], v[64:65]')
        for m, p in P2:
            x = ACC + 4 * (2 * ft + m) + 2 * p; T = 72 + 4 * m + 2 * p
            seg(f'v_pk_mul_f32 v[{T}:{T + 1}], v[{T}:{T + 1}], v[{x}:{x + 1}]')
        for k in range(8): seg(f'v_exp_f32 v{72 + k}, v{72 + k}')
        for k in range(4): seg(f'v_pk_add_f32 v[{72 + 2 * k}:{73 + 2 * k}], v[{72 + 2 * k}:{73 + 2 * k}], 1.0 op_sel_hi:[1,0]')
        for k in range(8): seg(f'v_rcp_f32 v{72 + k}, v{72 + k}')
        for m, p in P2:
            x = ACC + 4 * (2 * ft + m) + 2 * p; T = 72 + 4 * m + 2 * p
            seg(f'v_pk_mul_f32 v[{x}:{x + 1}], v[{x}:{x + 1}], v[{T}:{T + 1}]')
        for m in range(2):
            acc = ACC + 4 * (2 * ft + m)
            seg(f'v_cvt_pk_bf16_f32 v{RES(ft, m)}, v{acc}, v{acc + 1}')
            seg(f'v_cvt_pk_bf16_f32 v{RES(ft, m) + 1}, v{acc + 2}, v{acc + 3}')
        ev = []; od = []
        for m in range(2):
            if ft % 2 == 1: ev.append(f'global_store_dwordx4 v{10 + m}, v[{RES(ft - 1, m)}:{RES(ft - 1, m) + 3}], s[20:21] offset:{1024 * (ft // 2)}' + sc)
            if ft == 6: ev.append(f'global_store_dwordx2 v{12 + m}, v[{RES(6, m)}:{RES(6, m) + 1}], s[20:21] offset:3072' + sc)
            if ft == 0: od.append(f'global_store_dwordx2 v{12 + m}, v[{RES(0, m)}:{RES(0, m) + 1}], s[20:21] offset:512' + sc)
            if ft % 2 == 0 and ft > 0: od.append(f'global_store_dwordx4 v{10 + m}, v[{RES(ft - 1, m)}:{RES(ft - 1, m) + 3}], s[20:21] offset:{1024 * (ft // 2)}' + sc)
        if ev:
            seg(f's_cmp_eq_u32 s46, 0\n s_cbranch_scc0 {N}_se{tag}{ft}')
            for x in ev: seg(x)
            seg(f'{N}_se{tag}{ft}:')
        if od:
            seg(f's_cmp_eq_u32 s46, 0\n s_cbranch_scc1 {N}_so{tag}{ft}')
            for x in od: seg(x)
            seg(f'{N}_so{tag}{ft}:')
    interleave(A, seg, fillers, first=4, last_frac=0.8)

def phase_c(A, N):
    vm = VM()
    A(f'''
    s_and_b32 s54, s26, 1
    s_lshl_b32 s45, s23, 1
    s_add_u32 s54, s54, s45
    v_lshrrev_b32 v7, 2, v2
    v_lshlrev_b32 v7, 6, v7
    v_and_b32 v10, 3, v2
    v_bfe_u32 v9, v2, 4, 1
    v_lshlrev_b32 v9, 1, v9
    v_xor_b32 v10, v10, v9
    v_lshlrev_b32 v10, 4, v10
    s_lshl_b32 s45, s54, 2
    s_add_u32 s45, s45, s22
    s_lshl_b32 s45, s45, 15
    s_add_u32 s45, s45, {WS_HT}
    v_add3_u32 v7, v7, v10, s45
    s_mul_i32 s58, s22, 12288
    s_add_u32 s58, s58, {HS}
    s_cmp_eq_u32 s22, 0
    s_cbranch_scc0 {N}_nwarmh
    s_lshl_b32 s45, s23, 18
    s_lshl_b32 s46, s26, 13
    s_add_u32 s45, s45, s46
    s_add_u32 s45, s45, {WS_HT}
    v_lshlrev_b32 v9, 7, v2
    v_add_u32 v9, s45, v9
    global_load_dword v250, v9, s[20:21] sc1
    {N}_nwarmh:
    ''')
    A('s_lshr_b32 s45, s55, 1')
    for i in range(8): A(f's_add_u32 s{66 + i}, s45, {i}\n s_and_b32 s{66 + i}, s{66 + i}, 7')
    def hdma_parts(i):
        slot = i % 3
        return [f's_add_u32 m0, s58, {slot * 4096}\n s_lshl_b32 s45, s{66 + i}, 12\n v_add_u32 v10, s45, v7\n global_load_lds_dwordx4 v10, s[20:21] sc1'] + [f'global_load_lds_dwordx4 v10, s[20:21] offset:{1024 * k} sc1' for k in range(1, 4)]
    def hdma(i):
        for x in hdma_parts(i): A(x); vm.issue()
        vm.mark(f'H{i}')
    hdma(0); hdma(1); hdma(2)
    for i in range(4): A(f'v_add_u32 v{252 + i}, {i * 56 * 1024 + (W2WIN // 16) * 4096}, v8')
    A(f'''
    v_bfe_u32 v14, v2, 2, 2
    v_lshl_add_u32 v14, v4, 2, v14
    v_and_b32 v15, 3, v2
    v_lshlrev_b32 v15, 3, v15
    v_mul_u32_u24 v11, 224, v14
    v_add_u32 v11, v11, v15
    s_mul_i32 s45, s66, 14336
    v_add_u32 v12, s45, v11
    v_lshlrev_b32 v14, 6, v14
    v_add3_u32 v14, v14, v15, s58
    v_and_b32 v15, 1, v4
    v_lshlrev_b32 v15, 5, v15
    v_add_u32 v16, v14, v15
    v_xor_b32 v15, 32, v15
    v_add_u32 v17, v14, v15
    s_lshl_b32 s45, s54, 15
    s_lshl_b32 s46, s22, 9
    s_add_u32 s45, s45, s46
    s_add_u32 s45, s45, {WS_PS}
    v_lshlrev_b32 v246, 4, v2
    s_lshl_b32 s46, s55, 11
    s_add_u32 s46, s46, s45
    v_add_u32 v247, s46, v246
    v_lshlrev_b32 v248, 4, v3
    v_lshlrev_b32 v249, 13, v4
    v_add3_u32 v248, v248, v249, s45
    v_cmp_eq_u32 s[76:77], 1, v4
    s_and_b32 s46, s55, 1
    s_cmp_eq_u32 s46, 1
    s_cselect_b64 s[74:75], -1, 0
    ''')
    for r in range(4):
        A(f'v_lshl_add_u32 v24, v4, 2, {r}\n v_cmp_eq_u32 vcc, v24, v3\n v_cndmask_b32 v{242 + r}, 0, 1.0, vcc')
    AF = [24, 60]; BF = [52, 88]; ACC = 96; SUM = 152; GR = 160
    def reads(s_):
        st = s_ & 1; outA = []; outB = []
        base = 12 + ((s_ >> 1) & 1)
        for ft in range(7):
            off = 7168 * (s_ & 1) + 32 * ft
            outA.append(f'ds_read_b64_tr_b16 v[{AF[st] + 4 * ft}:{AF[st] + 4 * ft + 1}], v{base} offset:{off}')
            outA.append(f'ds_read_b64_tr_b16 v[{AF[st] + 4 * ft + 2}:{AF[st] + 4 * ft + 3}], v{base} offset:{off + 3584}')
        o = ((s_ // 2) % 3) * 4096 + (s_ & 1) * 2048
        for m in range(2):
            outB.append(f'ds_read_b64_tr_b16 v[{BF[st] + 4 * m}:{BF[st] + 4 * m + 1}], v{16 + m} offset:{o}')
            outB.append(f'ds_read_b64_tr_b16 v[{BF[st] + 4 * m + 2}:{BF[st] + 4 * m + 3}], v{16 + m} offset:{o + 1024}')
        return outB[:2] + outA + outB[2:]
    A(f'''
    s_mul_i32 s45, s23, {16 * 56 * 1024}
    s_mul_i32 s46, s26, {224 * 128}
    s_add_u32 s45, s45, s46
    s_mul_i32 s46, s22, {56 * 128}
    s_add_u32 s45, s45, s46
    s_add_u32 s45, s45, {WS_H1}
    v_min_u32 v6, 55, v2
    v_lshlrev_b32 v6, 7, v6
    v_add_u32 v6, s45, v6
    ''')
    vm.wait(A, 'H0')
    stamp(A, 13)
    A.auto(True)
    for r in reads(0): A(r)
    w2i = W2WIN
    HQPOS = eval(os.environ.get('HQPOS', '(0,)'))
    W2LOOP = w2i + ENV('W2LOOP', 44); W2POS = eval(os.environ.get('W2POS', '(4, 8, 12)'))
    COARSE = ENV('COARSE', 0)
    S0, S1 = 152, 168
    pub = []
    for m in range(2):
        pub.append(f'v_cndmask_b32_e64 v{184 + 4 * m}, v{S0 + 4 * m}, v{S1 + 4 * m}, s[74:75]')
        for r in range(4): pub.append(f'v_cndmask_b32_e64 v{S0 + 8 + 4 * m + r}, v{S0 + 8 + 4 * m + r}, v{S1 + 8 + 4 * m + r}, s[74:75]')
    for m in range(2):
        pub.append(f'v_mul_f32 v{186 + 4 * m}, v{S0 + 8 + 4 * m}, v242')
        for r in range(1, 4): pub.append(f'v_fmac_f32 v{186 + 4 * m}, v{S0 + 8 + 4 * m + r}, v{242 + r}')
    for sw in ('v_permlane16_swap_b32', 'v_permlane32_swap_b32'):
        for m in range(2): pub.append(f'v_mov_b32 v{192 + m}, v{186 + 4 * m}')
        for m in range(2): pub.append(f'{sw} v{186 + 4 * m}, v{192 + m}')
        for m in range(2): pub.append(f'v_add_f32 v{186 + 4 * m}, v{186 + 4 * m}, v{192 + m}')
    for m in range(2): pub.append(f'v_mov_b32 v{185 + 4 * m}, s38\n v_mov_b32 v{187 + 4 * m}, s38')
    pub.append('v_cndmask_b32_e64 v184, v184, v188, s[76:77]')
    pub.append('v_cndmask_b32_e64 v186, v186, v190, s[76:77]')
    pub.append('s_mov_b32 exec_hi, 0\n global_store_dwordx4 v247, v[184:187], s[20:21] sc1\n s_mov_b32 exec_hi, -1')
    PSL = 152
    psl = [f'global_load_dwordx4 v[{PSL + 16 * m + 4 * k}:{PSL + 16 * m + 4 * k + 3}], v{248 if k < 2 else 250}, s[20:21] offset:{256 * m + 2048 * (k & 1)} sc1' for m in range(2) for k in range(4)]
    for s_ in range(16):
        st = s_ & 1
        hq = []
        if s_ % 2 == 0 and s_ >= 2 and (s_ - 2) // 2 + 3 < 8:
            hq = hdma_parts((s_ - 2) // 2 + 3); hst = (s_ - 2) // 2 + 3
        if s_ % 2 == 0 and s_ // 2 + 1 < 8:
            i1 = s_ // 2 + 1
            A(f's_mul_i32 s45, s{66 + i1}, 14336\n v_add_u32 v{12 + (i1 & 1)}, s45, v11')
        if s_ < 15:
            n = s_ + 1
            if n % 2 == 0: vm.wait(A, f'H{n // 2}')
            rd = reads(n)
        else: rd = []
        ms = []
        for m in range(2):
            b = BF[st] + 4 * m
            for ft in range(7):
                acc = ACC + 4 * (2 * ft + m)
                cin = '0' if s_ == 0 else f'v[{acc}:{acc+3}]'
                ms.append(f'v_mfma_f32_16x16x32_bf16 v[{acc}:{acc+3}], v[{AF[st] + 4 * ft}:{AF[st] + 4 * ft + 3}], v[{b}:{b+3}], {cin}')
            if s_ < 2:
                S = S0 if s_ == 0 else S1
                ms.append(f'v_mfma_f32_16x16x32_bf16 v[{S + 4 * m}:{S + 4 * m + 3}], v[18:21], v[{b}:{b+3}], 0')
                ms.append(f'v_mfma_f32_16x16x32_bf16 v[{S + 8 + 4 * m}:{S + 8 + 4 * m + 3}], v[{b}:{b+3}], v[{b}:{b+3}], 0')
        ri = 0; nm = len(ms)
        for i, mi in enumerate(ms):
            if COARSE and i == 0: A(f's_waitcnt lgkmcnt({COARSE})')
            A(mi)
            left = len(rd) - ri; gaps = nm - i
            for _ in range(2 if left > gaps - 1 and left > 1 and i % 3 == 0 else 1):
                if ri < len(rd): A(rd[ri]); ri += 1
            while hq and i in HQPOS:
                A(hq.pop(0)); vm.issue()
                if not hq: vm.mark(f'H{hst}')
                if len(HQPOS) > 1: break
            if i in W2POS and w2i < W2LOOP and s_ >= 1: A(w2txt(w2i)); vm.issue(); w2i += 1
            if s_ in (3, 4) and pub and i % 2 == 1:
                x = pub.pop(0); A(x)
                if 'global_store' in x: vm.issue(1)
        while ri < len(rd): A(rd[ri]); ri += 1
        if s_ == 4:
            while pub:
                x = pub.pop(0); A(x)
                if 'global_store' in x: vm.issue(1)
        if s_ == 11:
            A('v_add_u32 v250, 4096, v248')
            for x in psl: A(x); vm.issue()
            ps_mark = vm.n
        if s_ in (3, 7, 11): stamp(A, f'c{s_}')
    A.auto(False)
    stamp(A, 14)
    ck = ''
    first = True
    for m in range(2):
        for k in range(4):
            for o in (1, 3):
                r = 152 + 16 * m + 4 * k + o
                if first: ck += f'v_cmp_eq_u32 vcc, s38, v{r}\n'; first = False
                else: ck += f'v_cmp_eq_u32 s[52:53], s38, v{r}\n s_and_b64 vcc, vcc, s[52:53]\n'
    ck += 's_cmp_eq_u64 vcc, -1'
    A('s_waitcnt vmcnt(0)' if False else f's_waitcnt vmcnt({vm.n - ps_mark})')
    A(ck)
    A(f's_cbranch_scc1 {N}_ps_ok')
    poll_loop(A, f'{N}_ps', '\n'.join(psl), ck)
    for m in range(2):
        b = 152 + 16 * m
        A(f'v_add_f32 v{SUM + 4 * m}x, v{b}, v{b + 4}'.replace(f'v{SUM + 4 * m}x', f'v{36 + m}'))
        A(f'v_add_f32 v{38 + m}, v{b + 8}, v{b + 12}')
        A(f'v_add_f32 v{32 + m}, v{b + 2}, v{b + 6}')
        A(f'v_add_f32 v{40 + m}, v{b + 10}, v{b + 14}')
    for m in range(2):
        A(f'v_add_f32 v{36 + m}, v{36 + m}, v{38 + m}')
        A(f'v_add_f32 v{32 + m}, v{32 + m}, v{40 + m}')
    for sw in ('v_permlane16_swap_b32', 'v_permlane32_swap_b32'):
        for m in range(2): A(f'v_mov_b32 v{34 + m}, v{32 + m}\n v_mov_b32 v{38 + m}, v{36 + m}')
        for m in range(2): A(f'{sw} v{32 + m}, v{34 + m}\n {sw} v{36 + m}, v{38 + m}')
        for m in range(2): A(f'v_add_f32 v{32 + m}, v{32 + m}, v{34 + m}\n v_add_f32 v{36 + m}, v{36 + m}, v{38 + m}')
    R2 = lambda f: [f(m) for m in range(2)]
    mu, var, m1, r1, t, m2, r2 = (lambda o: (lambda m: o + 8 * m))(44), (lambda m: 45 + 8 * m), (lambda m: 46 + 8 * m), (lambda m: 47 + 8 * m), (lambda m: 48 + 8 * m), (lambda m: 49 + 8 * m), (lambda m: 50 + 8 * m)
    steps = [
        lambda m: f'v_mul_f32 v{mu(m)}, 0x3b000000, v{36 + m}',
        lambda m: f'v_mul_f32 v{var(m)}, 0x3b000000, v{32 + m}',
        lambda m: f'v_fma_f32 v{var(m)}, -v{mu(m)}, v{mu(m)}, v{var(m)}',
        lambda m: f'v_max_f32 v{var(m)}, 0, v{var(m)}',
        lambda m: f'v_cvt_pk_bf16_f32 v{m1(m)}, v{mu(m)}, v{mu(m)}',
        lambda m: f'v_cvt_pk_bf16_f32 v{t(m)}, v{var(m)}, v{var(m)}',
        lambda m: f'v_lshlrev_b32 v{m1(m)}, 16, v{m1(m)}',
        lambda m: f'v_lshlrev_b32 v{t(m)}, 16, v{t(m)}',
        lambda m: f'v_add_f32 v{t(m)}, {EPS:#x}, v{t(m)}',
        lambda m: f'v_cvt_pk_bf16_f32 v{t(m)}, v{t(m)}, v{t(m)}',
        lambda m: f'v_lshlrev_b32 v{t(m)}, 16, v{t(m)}',
        lambda m: f'v_sqrt_f32 v{t(m)}, v{t(m)}',
        lambda m: f'v_sub_f32 v{m2(m)}, v{mu(m)}, v{m1(m)}',
        lambda m: f'v_cvt_pk_bf16_f32 v{t(m)}, v{t(m)}, v{t(m)}',
        lambda m: f'v_lshlrev_b32 v{t(m)}, 16, v{t(m)}',
        lambda m: f'v_rcp_f32 v{r1(m)}, v{t(m)}',
        lambda m: f'v_mul_f32 v{m2(m)}, v{m2(m)}, v{r1(m)}',
        lambda m: f'v_mul_f32 v{t(m)}, v{var(m)}, v{r1(m)}',
        lambda m: f'v_cvt_pk_bf16_f32 v{m2(m)}, v{m2(m)}, v{m2(m)}',
        lambda m: f'v_mul_f32 v{t(m)}, v{t(m)}, v{r1(m)}',
        lambda m: f'v_lshlrev_b32 v{m2(m)}, 16, v{m2(m)}',
        lambda m: f'v_cvt_pk_bf16_f32 v{t(m)}, v{t(m)}, v{t(m)}',
        lambda m: f'v_lshlrev_b32 v{t(m)}, 16, v{t(m)}',
        lambda m: f'v_add_f32 v{t(m)}, {EPS:#x}, v{t(m)}',
        lambda m: f'v_cvt_pk_bf16_f32 v{t(m)}, v{t(m)}, v{t(m)}',
        lambda m: f'v_lshlrev_b32 v{t(m)}, 16, v{t(m)}',
        lambda m: f'v_sqrt_f32 v{t(m)}, v{t(m)}',
        lambda m: f'v_cvt_pk_bf16_f32 v{t(m)}, v{t(m)}, v{t(m)}',
        lambda m: f'v_lshlrev_b32 v{t(m)}, 16, v{t(m)}',
        lambda m: f'v_rcp_f32 v{r2(m)}, v{t(m)}',
        lambda m: f'v_fma_f32 v{t(m)}, v{m1(m)}, v{r1(m)}, v{m2(m)}',
        lambda m: f'v_mul_f32 v{60 + 2 * m}, v{r1(m)}, v{r2(m)}',
        lambda m: f'v_mul_f32 v{t(m)}, v{t(m)}, v{r2(m)}',
        lambda m: f'v_sub_f32 v{61 + 2 * m}, 0, v{t(m)}',
    ]
    for st_ in steps:
        for m in range(2): A(st_(m))
    A(f'''
    v_mov_b32 v64, {hex(f2u(GC1))}
    v_mov_b32 v65, {hex(f2u(GC1))}
    v_mov_b32 v66, {hex(f2u(GC2))}
    v_mov_b32 v67, {hex(f2u(GC2))}
    s_lshl_b32 s45, s54, 3
    s_lshl_b32 s46, s22, 1
    s_add_u32 s45, s45, s46
    s_mul_i32 s45, s45, {56 * 1024}
    s_mul_i32 s46, s55, 7
    s_lshr_b32 s47, s46, 1
    s_lshl_b32 s47, s47, 10
    s_add_u32 s45, s45, s47
    s_add_u32 s45, s45, {WS_H1}
    v_add_u32 v10, s45, v5
    v_add_u32 v11, {56 * 1024}, v10
    v_lshlrev_b32 v12, 3, v2
    v_add_u32 v12, s45, v12
    v_add_u32 v13, {56 * 1024}, v12
    s_and_b32 s46, s55, 1
    ''')
    if ABL('fast'): A(f's_cmp_eq_u32 s64, 1\n s_cbranch_scc0 {N}_gslow')
    W2G = ENV('W2GELU', 0)
    w2g_end = min(56, w2i + W2G)
    fill = [w2txt(k) for k in range(w2i, w2g_end)]
    if ABL('fast'):
        gelu_block(A, N, 'f', '', fill)
        A(f's_branch {N}_gdone')
    A(f'{N}_gslow:')
    gelu_block(A, N, 's', ' sc1', fill)
    A(f'{N}_gdone:')
    stamp(A, 15)
    A(f'''
    s_lshl_b32 s45, s54, 4
    s_add_u32 s45, s45, s55
    s_lshl_b32 s45, s45, 6
    s_lshl_b32 s46, s22, 2
    s_add_u32 s45, s45, s46
    s_add_u32 s45, s45, {WS_F3}
    v_mov_b32 v6, s45
    v_mov_b32 v7, s38
    s_waitcnt vmcnt(0)
    ''')
    stamp(A, '15a')
    lane0_store(A, 'global_store_dword v6, v7, s[20:21] sc1')
    A('s_barrier')
    for k in range(w2g_end, 56): A(w2txt(k))
    if W2WIN:
        A(f's_cmp_eq_u32 s65, 1\n s_cbranch_scc1 {N}_nlate')
        for i in range(4): A(f'v_add_u32 v{252 + i}, {i * 56 * 1024}, v8')
        for k in range(W2WIN): A(w2txt(k))
        A(f'{N}_nlate:')

def phase_d(A, N):
    A(f'''
    s_lshr_b32 s60, s26, 3
    s_lshl_b32 s45, s23, 2
    s_add_u32 s60, s60, s45
    s_lshl_b32 s45, s60, 16
    s_lshl_b32 s46, s59, 12
    s_add_u32 s45, s45, s46
    s_lshl_b32 s46, s22, 10
    s_add_u32 s45, s45, s46
    s_add_u32 s45, s45, {WS_HT}
    v_add_u32 v6, s45, v5
    s_lshl_b32 s61, s22, 11
    s_add_u32 s61, s61, 49152
    s_mov_b32 m0, s61
    v_add_u32 v7, 32768, v6
    global_load_lds_dwordx4 v6, s[20:21] sc1
    s_add_u32 m0, s61, 1024
    s_nop 0
    global_load_lds_dwordx4 v7, s[20:21] sc1
    s_lshl_b32 s46, s59, 7
    s_lshl_b32 s47, s22, 5
    s_add_u32 s46, s46, s47
    v_lshlrev_b32 v7, 3, v4
    v_add_u32 v7, s46, v7
    global_load_dwordx2 v[12:13], v7, s[34:35]
    s_lshl_b32 s45, s60, 6
    v_add_u32 v6, s45, v3
    v_lshlrev_b32 v6, 10, v6
    v_add_u32 v14, v6, v7
    s_mul_i32 s45, s60, {4 * 56}
    s_mul_i32 s46, s22, 14
    s_add_u32 s45, s45, s46
    s_lshl_b32 s45, s45, 10
    s_add_u32 s45, s45, {WS_H1}
    ''')
    for m in range(4): A(f'v_add_u32 v{8 + m}, {m * 56 * 1024}, v5\n v_add_u32 v{8 + m}, s45, v{8 + m}')
    A('v_lshlrev_b32 v244, 3, v2')
    A(f'''
    s_cmp_eq_u32 s22, 3
    s_cbranch_scc0 {N}_np3
    s_lshr_b32 s45, s60, 1
    s_lshl_b32 s45, s45, 10
    s_add_u32 s45, s45, {WS_F3}
    s_and_b32 s46, s60, 1
    s_lshl_b32 s46, s46, 3
    s_add_u32 s45, s45, s46
    v_lshlrev_b32 v6, 6, v3
    v_add_u32 v6, s45, v6
    ''')
    poll_loop(A, f'{N}_p3', 'global_load_dwordx2 v[30:31], v6, s[20:21] sc1', 'v_cmp_eq_u32 vcc, s38, v30\n v_cmp_eq_u32 s[52:53], s38, v31\n s_and_b64 vcc, vcc, s[52:53]\n s_cmp_eq_u64 vcc, -1')
    A(f'{N}_np3:\n s_barrier')
    stamp(A, 16)
    NS = 7; B0 = 16; ACC = 176
    PD0 = ENV('PD0', 3); PD = ENV('PD', 5)
    def ltxt(s_):
        st = B0 + 16 * (s_ % NS); o = (s_ % 4) * 1024; out = []
        for m in range(4):
            t = ''
            if s_ % 4 == 0 and s_ > 0: t += f'v_add_u32 v{8 + m}, 4096, v{8 + m}\n'
            if s_ in (3, 10):
                out.append(t + f'v_sub_u32 v{240 + m}, v{8 + m}, v244\n global_load_dwordx2 v[{st + 4 * m}:{st + 4 * m + 1}], v{240 + m}, s[20:21] offset:{o}' + H1LD + f'\n global_load_dwordx2 v[{st + 4 * m + 2}:{st + 4 * m + 3}], v{240 + m}, s[20:21] offset:{o + 512}' + H1LD)
            else:
                out.append(t + f'global_load_dwordx4 v[{st + 4 * m}:{st + 4 * m + 3}], v{8 + m}, s[20:21] offset:{o}' + H1LD)
        return out
    A.auto(True)
    for s_ in range(PD0):
        for t in ltxt(s_): A(t)
    A(f's_waitcnt vmcnt({4 * PD0})')
    issued = PD0
    for s_ in range(14):
        st = B0 + 16 * (s_ % NS)
        q = []
        tgt = min(14, s_ + PD + 1)
        nq = 2 if issued < tgt - 1 else 1
        for _ in range(nq):
            if issued < tgt: q += ltxt(issued); issued += 1
        k = 0; every = 2 if len(q) > 4 else 4
        for m in range(4):
            for i in range(4):
                acc = ACC + 4 * (4 * i + m)
                cin = '0' if s_ == 0 else f'v[{acc}:{acc+3}]'
                A(f'v_mfma_f32_16x16x32_bf16 v[{acc}:{acc+3}], a[{16 * s_ + 4 * i}:{16 * s_ + 4 * i + 3}], v[{st + 4 * m}:{st + 4 * m + 3}], {cin}')
                k += 1
                if q and k % every == 0: A(q.pop(0))
        while q: A(q.pop(0))
        if s_ in (0, 3, 7, 11): stamp(A, f'd{s_}')
    A.auto(False)
    stamp(A, 17)
    A(f's_mul_i32 s45, s22, {3 * 4096}\n v_add_u32 v15, s45, v5')
    A(f'''
    v_bfe_u32 v8, v2, 2, 2
    v_lshl_add_u32 v8, v4, 2, v8
    v_lshlrev_b32 v8, 6, v8
    v_and_b32 v9, 3, v2
    v_lshlrev_b32 v9, 3, v9
    v_add3_u32 v8, v8, v9, s61
    ''')
    for m in range(4): A(f'ds_read_b64_tr_b16 v[{16 + 2 * m}:{17 + 2 * m}], v8 offset:{1024 * (m >> 1) + 32 * (m & 1)}')
    for w in range(4):
        A(f's_cmp_eq_u32 s22, {w}\n s_cbranch_scc0 {N}_r{w}')
        for idx in range(3):
            i = (w + 1 + idx) & 3
            for m in range(4):
                acc = ACC + 4 * (4 * i + m)
                A(f'ds_write_b128 v15, v[{acc}:{acc+3}] offset:{idx * 4096 + m * 1024}')
        if w != 0:
            for k in range(0, 16, 2): A(f'v_pk_mul_f32 v[{ACC + k}:{ACC + k + 1}], v[{ACC + 16 * w + k}:{ACC + 16 * w + k + 1}], 1.0 op_sel_hi:[1,0]')
        A('s_waitcnt lgkmcnt(0)\n s_barrier')
        for q in range(3):
            wp = (w + 1 + q) & 3
            idx = (w - wp - 1) & 3
            for m in range(4):
                A(f'ds_read_b128 v[{32 + 16 * q + 4 * m}:{32 + 16 * q + 4 * m + 3}], v5 offset:{(wp * 3 + idx) * 4096 + m * 1024}')
        A(f's_branch {N}_fin\n {N}_r{w}:')
    A(f'{N}_fin:')
    A(f'''
    v_lshlrev_b32 v24, 16, v12
    v_and_b32 v25, 0xffff0000, v12
    v_lshlrev_b32 v26, 16, v13
    v_and_b32 v27, 0xffff0000, v13
    ''')
    for k in range(8): A(f'v_lshlrev_b32 v{96 + 2 * k}, 16, v{16 + k}\n v_and_b32 v{97 + 2 * k}, 0xffff0000, v{16 + k}')
    A('s_waitcnt lgkmcnt(0)')
    for q in range(3):
        for k in range(8): A(f'v_pk_add_f32 v[{ACC + 2 * k}:{ACC + 2 * k + 1}], v[{ACC + 2 * k}:{ACC + 2 * k + 1}], v[{32 + 16 * q + 2 * k}:{33 + 16 * q + 2 * k}]')
    for k in range(8): A(f'v_cvt_pk_bf16_f32 v{112 + k}, v{ACC + 2 * k}, v{ACC + 2 * k + 1}')
    for k in range(8): A(f'v_lshlrev_b32 v{ACC + 2 * k}, 16, v{112 + k}\n v_and_b32 v{ACC + 2 * k + 1}, 0xffff0000, v{112 + k}')
    for k in range(8): A(f'v_pk_add_f32 v[{ACC + 2 * k}:{ACC + 2 * k + 1}], v[{ACC + 2 * k}:{ACC + 2 * k + 1}], v[{24 + 2 * (k & 1)}:{25 + 2 * (k & 1)}]')
    for k in range(8): A(f'v_cvt_pk_bf16_f32 v{112 + k}, v{ACC + 2 * k}, v{ACC + 2 * k + 1}')
    for k in range(8): A(f'v_lshlrev_b32 v{ACC + 2 * k}, 16, v{112 + k}\n v_and_b32 v{ACC + 2 * k + 1}, 0xffff0000, v{112 + k}')
    for k in range(8): A(f'v_pk_add_f32 v[{ACC + 2 * k}:{ACC + 2 * k + 1}], v[{ACC + 2 * k}:{ACC + 2 * k + 1}], v[{96 + 2 * k}:{97 + 2 * k}]')
    for m in range(4):
        for pr in range(2): A(f'v_cvt_pk_bf16_f32 v{112 + 2 * m + pr}, v{ACC + 4 * m + 2 * pr}, v{ACC + 4 * m + 2 * pr + 1}')
        A(f'v_add_u32 v9, {m * 16384}, v14')
        A(f'global_store_dwordx2 v9, v[{112 + 2 * m}:{113 + 2 * m}], s[36:37]' + os.environ.get('OUTSC', ''))

def gen_mega(N):
    A = Asm()
    stamp(A, 0)
    A(f'''
    s_cmp_ge_u32 s2, 256
    s_cbranch_scc1 {N}_end
    s_load_dwordx16 s[4:19], s[0:1], 0
    s_load_dwordx2 s[20:21], s[0:1], 128
    s_load_dwordx2 s[24:25], s[0:1], 64
    s_load_dwordx4 s[28:31], s[0:1], 80
    s_load_dwordx4 s[32:35], s[0:1], 96
    s_load_dwordx2 s[36:37], s[0:1], 112
    v_lshrrev_b32 v1, 6, v0
    v_and_b32 v2, 63, v0
    v_and_b32 v3, 15, v2
    v_lshrrev_b32 v4, 4, v2
    v_readfirstlane_b32 s22, v1
    s_and_b32 s23, s2, 7
    s_lshr_b32 s26, s2, 3
    s_lshl_b32 s27, s23, 5
    s_add_u32 s27, s27, s26
    ''')
    phase_a(A, N); phase_b(A, N); phase_c(A, N); phase_d(A, N)
    if STAMPS:
        A('s_waitcnt vmcnt(0)')
        stamp(A, 'end')
        stamp_flush(A, 0, 18, tmpv=8)
    A(f'{N}_end:\n s_endpgm')
    A.resolve()
    txt = A.text() + f'.p2align 8\n.type {N}_tbl,@object\n{N}_tbl:\n' + ''.join('.long ' + ', '.join(hex(x) for x in row) + '\n' for row in const_table()) + f'.size {N}_tbl, 16384\n'
    return txt, dict(name=N, grid=256, block=256, lds=LDS_TOTAL, nvgpr=256, accum=256, total=512)
if __name__ == '__main__':
    import sys
    from build import build
    NM = 'sequential_preLN__ssm_conv_s4__mixer_channel_mlp__prompt'
    k = gen_mega(NM + '_kernel')
    path = sys.argv[1] if len(sys.argv) > 1 else f'cdna_kernels/{NM}.s'
    build([k], path, single=True)
    import common
    if common.STAMPS: open(path + '.names', 'w').write(','.join(common._stamp_state['names']))
```
